```python
import torch

def _softmax(x, axis=-1):
    return torch.softmax(x, dim=axis)
def _gelu(x):
    return torch.nn.functional.gelu(x, approximate="tanh")
def _silu(x):
    return torch.nn.functional.silu(x)
def _sigmoid(x):
    return torch.sigmoid(x)
def _layernorm(x, axis=-1, eps=1e-5):
    m = x.mean(dim=axis, keepdim=True)
    v = x.var(dim=axis, keepdim=True, unbiased=False)
    return (x - m) / torch.sqrt(v + eps)
def _scatter_add(tgt, idx, src, axis=0):
    return tgt.clone().index_add_(axis, idx, src)
def _segment_sum(src, seg, n):
    out = torch.zeros((n,) + src.shape[1:], dtype=src.dtype)
    return out.index_add_(0, seg, src)
def _pad(x, pw):
    flat = tuple(v for pair in reversed(pw) for v in pair)
    return torch.nn.functional.pad(x, flat)

kernel_name = 'gated_mix__mha_block_cached__gqa_block_cached__decode'

def setup_inputs():

    _w = (lambda a: (lambda t: t.to(torch.bfloat16) if t.is_floating_point() else t)(torch.as_tensor(a)))
    def _A_setup():
        B, Sq, D = 1, 1, 448
        H, Sk, Dh = 16, 8192, 256
        return {
            "x": _w((lambda *s: torch.randn(*s, dtype=torch.bfloat16) * 0.05)(B, Sq, D)),
            "k_cache": _w((lambda *s: torch.randn(*s, dtype=torch.bfloat16) * 3.2)(B, H, Sk, Dh)),
            "v_cache": _w((lambda *s: torch.randn(*s, dtype=torch.bfloat16) * 0.1)(B, H, Sk, Dh)),
            "wq": _w((lambda *s: torch.randn(*s, dtype=torch.bfloat16) * 3.2)(D, H * Dh) * (D ** -0.5)),
            "wo": _w((lambda *s: torch.randn(*s, dtype=torch.bfloat16) * 0.1)(H * Dh, D) * ((H * Dh) ** -0.5)),
        }
    _A_in = _A_setup()

    def _B_setup():
        B, Sq, D = 1, 1, 448
        Hq, Hkv, Sk, Dh = 16, 8, 8192, 256
        assert Hq % Hkv == 0, (Hq, Hkv)
        return {
            "x": _w((lambda *s: torch.randn(*s, dtype=torch.bfloat16) * 0.05)(B, Sq, D)),
            "k_cache": _w((lambda *s: torch.randn(*s, dtype=torch.bfloat16) * 3.2)(B, Hkv, Sk, Dh)),
            "v_cache": _w((lambda *s: torch.randn(*s, dtype=torch.bfloat16) * 0.05)(B, Hkv, Sk, Dh)),
            "wq": _w((lambda *s: torch.randn(*s, dtype=torch.bfloat16) * 3.2)(D, Hq * Dh) * (D ** -0.5)),
            "wo": _w((lambda *s: torch.randn(*s, dtype=torch.bfloat16) * 0.05)(Hq * Dh, D) * ((Hq * Dh) ** -0.5)),
        }
    _B_in = _B_setup()

    return {
        "A_x": _A_in["x"],
        "A_k_cache": _A_in["k_cache"],
        "A_v_cache": _A_in["v_cache"],
        "A_wq": _A_in["wq"],
        "A_wo": _A_in["wo"],
        "B_x": _B_in["x"],
        "B_k_cache": _B_in["k_cache"],
        "B_v_cache": _B_in["v_cache"],
        "B_wq": _B_in["wq"],
        "B_wo": _B_in["wo"],
        "gate_w": _w((lambda *s: torch.randn(*s, dtype=torch.bfloat16) * 0.1)(448) * 16.0),
    }

def reference(A_x, A_k_cache, A_v_cache, A_wq, A_wo, B_x, B_k_cache, B_v_cache, B_wq, B_wo, gate_w):
    def _A_ref(x, k_cache, v_cache, wq, wo):
        B, Sq, D = x.shape
        H, Dh = 16, 256
        q = (lambda x, *d: x.permute(*d))((x @ wq).reshape(B, Sq, H, Dh), 0, 2, 1, 3)
        scores = torch.einsum("bhqd,bhkd->bhqk", q, k_cache) * (Dh ** -0.5)
        p = _softmax(scores, axis=-1)
        o = torch.einsum("bhqk,bhkd->bhqd", p, v_cache)
        return (lambda x, *d: x.permute(*d))(o, 0, 2, 1, 3).reshape(B, Sq, H * Dh) @ wo

    def _B_ref(x, k_cache, v_cache, wq, wo):
        B, Sq, D = x.shape
        Hq, Dh = 16, 256
        Hkv = k_cache.shape[1]
        rep = Hq // Hkv
        q = (lambda x, *d: x.permute(*d))((x @ wq).reshape(B, Sq, Hq, Dh), 0, 2, 1, 3)
        k = (lambda x, n, axis: torch.repeat_interleave(x, n, dim=axis))(k_cache, rep, axis=1)
        v = (lambda x, n, axis: torch.repeat_interleave(x, n, dim=axis))(v_cache, rep, axis=1)
        scores = torch.einsum("bhqd,bhkd->bhqk", q, k) * (Dh ** -0.5)
        p = _softmax(scores, axis=-1)
        o = torch.einsum("bhqk,bhkd->bhqd", p, v)
        return (lambda x, *d: x.permute(*d))(o, 0, 2, 1, 3).reshape(B, Sq, Hq * Dh) @ wo

    x = A_x
    g = _sigmoid((x * gate_w).sum(-1, keepdims=True))
    a = _A_ref(x, A_k_cache, A_v_cache, A_wq, A_wo)
    b = _B_ref(x, B_k_cache, B_v_cache, B_wq, B_wo)
    return g * a + (1 - g) * b
```

```python
import re

def regs(op):
    op = op.strip()
    op = re.sub(r'^-', '', op)
    m = re.match(r'^abs\((.*)\)$', op)
    if m: op = m.group(1)
    m = re.match(r'^([vsa])\[(\d+):(\d+)\]$', op)
    if m: return {(m.group(1), i) for i in range(int(m.group(2)), int(m.group(3)) + 1)}
    m = re.match(r'^([vsa])(\d+)$', op)
    if m: return {(m.group(1), int(m.group(2)))}
    if op in ('vcc', 'vcc_lo', 'vcc_hi'): return {('vcc', 0)}
    return set()

TRANS = ('v_exp_f32', 'v_log_f32', 'v_rcp_f32', 'v_rsq_f32', 'v_sqrt_f32', 'v_sin_f32', 'v_cos_f32')

class Ins:
    def __init__(self, text):
        self.text = text
        t = text.split(';')[0].strip()
        parts = t.split(None, 1)
        self.mn = parts[0]
        rest = parts[1] if len(parts) > 1 else ''
        ops = []; depth = 0; cur = ''
        for ch in rest:
            if ch in '[(': depth += 1
            if ch in '])': depth -= 1
            if ch == ',' and depth == 0:
                ops.append(cur.strip()); cur = ''
            else: cur += ch
        if cur.strip(): ops.append(cur.strip())
        self.mods = ''
        if ops:
            sp = ops[-1].split(None, 1)
            ops[-1] = sp[0]
            self.mods = sp[1] if len(sp) > 1 else ''
        self.ops = ops
        mn = self.mn
        self.w = set(); self.r = set()
        self.kind = 'other'
        self.srcA = self.srcB = self.srcC = set()
        self.dpp = mn.endswith('_dpp')
        if mn.startswith('v_mfma'):
            self.kind = 'mfma'
            self.w = regs(ops[0]); self.srcA = regs(ops[1]); self.srcB = regs(ops[2]); self.srcC = regs(ops[3])
            self.r = self.srcA | self.srcB | self.srcC
            self.passes = 8 if '32x32x16' in mn else 4
        elif mn.startswith('v_'):
            self.kind = 'valu'
            self.w = regs(ops[0])
            for o in ops[1:]: self.r |= regs(o)
            if mn.startswith('v_permlane'):
                self.w = regs(ops[0]) | regs(ops[1]); self.r = set(self.w)
            if mn.startswith(('v_fmac', 'v_dot2c', 'v_pk_fmac')): self.r |= self.w
            if mn.startswith(('v_add_co', 'v_addc_co', 'v_sub_co')):
                self.w |= regs(ops[1])
            if mn.startswith('v_cndmask') and len(ops) == 3: self.r |= {('vcc', 0)}
            if mn.startswith('v_dot2_'):
                self.srcC = regs(ops[3]); self.srcA = regs(ops[1]) | regs(ops[2])
            if mn.startswith('v_dot2c'):
                self.srcC = regs(ops[0]); self.srcA = regs(ops[1]) | regs(ops[2])
            if self.dpp: self.dppsrc = regs(ops[1])
        elif mn.startswith('ds_'):
            self.kind = 'ds'
            if mn.startswith('ds_read') or '_rtn' in mn or mn.startswith(('ds_bpermute', 'ds_permute', 'ds_swizzle')):
                self.w = regs(ops[0])
                for o in ops[1:]: self.r |= regs(o)
            else:
                for o in ops: self.r |= regs(o)
        elif mn.startswith(('buffer_', 'global_')):
            self.kind = 'vmem'
            if '_load' in mn or ('atomic' in mn and 'sc0' in self.mods):
                self.w = regs(ops[0])
                for o in ops[1:]: self.r |= regs(o)
            else:
                for o in ops: self.r |= regs(o)
            self.widestore = ('store' in mn and ('x4' in mn or 'x3' in mn))
            if self.widestore:
                self.data = regs(ops[0]) if mn.startswith('buffer') else regs(ops[1])
        elif mn.startswith('s_'):
            self.kind = 'salu'
    def states(self):
        if self.mn == 's_nop': return int(self.ops[0], 0) + 1
        return 1

def need(p, c):
    n = 0
    vw = {x for x in p.w if x[0] in 'va' and x[0] != 'vcc'}
    sw = {x for x in p.w if x[0] == 's' or x[0] == 'vcc'}
    isdot = lambda i: i.mn.startswith('v_dot')
    if p.kind == 'valu':
        if c.kind == 'valu':
            if c.dpp and (vw & c.dppsrc): n = max(n, 2)
            if c.mn.startswith('v_permlane') and (vw & c.r): n = max(n, 2)
            if c.mn.startswith(('v_readlane', 'v_readfirstlane')) and (vw & c.r): n = max(n, 1)
            if p.mn.startswith(TRANS) and not c.mn.startswith(TRANS) and (vw & c.r): n = max(n, 1)
            if sw & c.r: n = max(n, 2)
            if c.mn.startswith(('v_readlane', 'v_writelane')) and (sw & c.r): n = max(n, 4)
        if c.kind == 'mfma' and (vw & c.r): n = max(n, 2)
        if c.kind == 'vmem' and (sw & c.r): n = max(n, 5)
        if isdot(p):
            if c.mn == p.mn:
                if vw & c.srcA: n = max(n, 3)
            elif (vw & (c.r | c.w)): n = max(n, 3)
    if p.kind == 'mfma':
        tab_read = {4: 8, 8: 12}[p.passes]
        tab_ovl = {4: 6, 8: 10}[p.passes]
        tab_war = {4: 3, 8: 7}[p.passes]
        if c.kind == 'mfma':
            if vw & (c.srcA | c.srcB): n = max(n, tab_read)
            if (vw & c.srcC) and not (c.srcC == p.w and c.passes == p.passes): n = max(n, tab_ovl)
            if (vw & c.w) and not (c.srcC == p.w): n = max(n, tab_read)
        elif c.kind in ('valu', 'ds', 'vmem'):
            if vw & (c.r | c.w): n = max(n, tab_read)
            if c.kind == 'valu' and (p.srcC & c.w): n = max(n, tab_war)
    if p.kind == 'vmem' and getattr(p, 'widestore', False):
        if (p.data & c.w): n = max(n, 2)
    return n

class Asm:
    def __init__(self):
        self.lines = []
        self.hist = []
        self.nops = 0
    def raw(self, text):
        self.lines.append(text)
    def label(self, name, keep=True):
        self.lines.append(name + ':')
    def flush(self, n=12):
        self.hist = []
    def __call__(self, text):
        for t in text.split('\n'):
            t = t.strip()
            if not t: continue
            if t.startswith(';'):
                self.lines.append('    ' + t); continue
            if t.endswith(':'):
                self.lines.append(t); continue
            ins = Ins(t)
            dist = 0; req = 0
            for p in reversed(self.hist):
                nn = need(p, ins)
                if nn - dist > req: req = nn - dist
                dist += p.states()
                if dist > 20: break
            while req > 0:
                k = min(req, 16)
                nop = Ins('s_nop %d' % (k - 1))
                self.lines.append('    s_nop %d' % (k - 1)); self.hist.append(nop); self.nops += 1
                req -= k
            self.lines.append('    ' + t)
            self.hist.append(ins)
            if len(self.hist) > 40: self.hist = self.hist[-40:]
    def text(self):
        return '\n'.join(self.lines) + '\n'
```

```python
import sys, math, struct
from asmlib import Asm
NAME = "gated_mix__mha_block_cached__gqa_block_cached__decode_kernel"
HEADER = open("gated_mix__mha_block_cached__gqa_block_cached__decode.s.ref").read().split("; Override launch")[0]

WS_Q = 0x0
WS_EPOCH = 0x8000
WS_CNT = 0x10000
WS_Y = 0x100000
WS_PB = 0x200000
WS_PA = 0x300000
WS_END = 0x400000
YS = 640; PBS = 2176; PAS = 1152
STAMP_OFF = 200 * 1024 * 1024
L_Q = 0; L_QP = 1536; L_MW = 3584; L_LW = 3712; L_CNT = 3840; L_ACCB = 4096; L_ACCA = 20480; LDS_BYTES = 28672
C_QARR, C_QRDY, C_QARDY, C_KD, C_VDB, C_VDA, C_LS, C_CLR, C_YB, C_PRG, C_TAG, C_YARR, C_G = 0, 4, 8, 12, 16, 20, 24, 32, 36, 40, 44, 48, 52
L_YB = L_ACCB
SC = math.log2(math.e) / 16.0
def f32(x): return "0x%08x" % struct.unpack("<I", struct.pack("<f", x))[0]

def gen(fname, W0=4, G=2, BUD=60, RAMP=4, nt=True, round_s=True, spin=400000, ntw=True, dbgt=0, dis=(), NPOLL=3, PSL=6, BTRIG=1, xl=1, prio=None, touch=0, WS_=None, wperm=0, QT=16, CLT=1, YINC=1, WQW=8, SP=0, HP=3, wqx=0, amap=1, NS=14, ATL=4, VAT=8, PSLP=0, PMASK=0, LSL=1, bmap=0, wqm=0, FIN=0, dumat=0, LB=1, PP=1, YP=1, PD=2, YD=2, YMASK=0):
    a = Asm()
    NT = " nt" if nt else ""
    NTW = " nt" if ntw else ""
    a.raw(HEADER.rstrip("\n"))
    a.raw("; @launch grid=(256,1,1) block=(768,1,1) lds=%d" % LDS_BYTES)
    a.raw('.amdgcn_target "amdgcn-amd-amdhsa--gfx950"\n.text\n.globl %s\n.p2align 8\n.type %s,@function\n%s:' % (NAME, NAME, NAME))
    SB = 4
    def stamp(idx):
        if not dbgt: return
        a("s_memrealtime s[88:89]\ns_waitcnt lgkmcnt(0)\nv_writelane_b32 v63, s88, %d" % idx)

    def allrows(op, x, t):
        a("v_mov_b32 v%d, v%d" % (t, x))
        a("v_permlane16_swap_b32 v%d, v%d" % (t, x))
        a("%s v%d, v%d, v%d" % (op, x, t, x))
        a("v_mov_b32 v%d, v%d" % (t, x))
        a("v_permlane32_swap_b32 v%d, v%d" % (t, x))
        a("%s v%d, v%d, v%d" % (op, x, t, x))
    def dpp(op, d, s0, s1, ctrl, bank=0xf):
        return "%s_dpp v%d, v%d, v%d %s row_mask:0xf bank_mask:0x%x" % (op, d, s0, s1, ctrl, bank)
    def masks(M, t0, t1):
        a("v_and_b32 v%d, 1, v0\nv_lshlrev_b32 v%d, 4, v%d" % (t0, t0, t0))
        a("v_mov_b32 v%d, 0xffff\nv_lshlrev_b32 v%d, v%d, v%d" % (t1, t0, t0, t1))
        a("v_bfe_u32 v%d, v0, 1, 2" % t1)
        for k in range(4):
            a("v_cmp_eq_u32 vcc, %d, v%d" % (k, t1))
            a("v_cndmask_b32 v%d, 0, v%d, vcc" % (M + k, t0))
    def ldswait(lab, vz, vt, off, cmp, val, slp=1, sreg=76, cnt=83):
        a("s_mov_b32 s%d, %d" % (cnt, spin * 8))
        a("L_%s_w:" % lab)
        a("ds_read_b32 v%d, v%d offset:%d\ns_waitcnt lgkmcnt(0)\nv_readfirstlane_b32 s%d, v%d" % (vt, vz, off, sreg, vt))
        a("s_sub_u32 s%d, s%d, 1\ns_cbranch_scc1 L_%s_g" % (cnt, cnt, lab))
        a("s_cmp_%s_u32 s%d, %d\ns_cbranch_scc1 L_%s_g\ns_sleep %d\ns_branch L_%s_w" % (cmp, sreg, val, lab, slp, lab))
        a("L_%s_g:" % lab)

    a("s_cmp_ge_u32 s2, 256\ns_cbranch_scc1 L_end")
    a("s_load_dwordx16 s[4:19], s[0:1], 0")
    if bmap == 1: a("s_mov_b32 s92, s2")
    if xl == 2: a("s_add_u32 s3, s2, 2\ns_and_b32 s3, s3, 7\ns_and_b32 s2, s2, 0xf8\ns_or_b32 s2, s2, s3")
    if xl == 3: a("s_lshr_b32 s3, s2, 3\ns_add_u32 s3, s3, s2\ns_and_b32 s3, s3, 7\ns_and_b32 s2, s2, 0xf8\ns_or_b32 s2, s2, s3")
    if xl == 1: a("s_and_b32 s3, s2, 7\ns_lshr_b32 s2, s2, 3\ns_lshl_b32 s3, s3, 5\ns_add_u32 s2, s2, s3")
    a("s_load_dwordx8 s[20:27], s[0:1], 64")
    a("s_load_dwordx4 s[28:31], s[0:1], 96")
    if dbgt: a("s_memrealtime s[90:91]")
    if amap:
        a("s_bfe_u32 s93, s2, 0x40001\ns_lshl_b32 s93, s93, 4\ns_lshr_b32 s3, s2, 5\ns_lshl1_add_u32 s93, s3, s93\ns_and_b32 s3, s2, 1\ns_add_u32 s93, s93, s3")
    else:
        a("s_mov_b32 s93, s2")
    if bmap == 0: a("s_mov_b32 s92, s2")
    if bmap == 2: a("s_mov_b32 s92, s93")
    assert not (bmap and wqx)
    a("v_lshrrev_b32 v1, 6, v0\nv_and_b32 v0, 63, v0\nv_readfirstlane_b32 s3, v1")
    a("s_nop 0\ns_cmp_lt_u32 s3, 4\ns_cbranch_scc1 L_helper")

    OFF = 1; T = [2, 3, 4, 5]; MC = 6; LS = 7; M = 8; E = 12; X = 16; S = 32; RING = 40
    QA = 104; TB = [112, 128]; ONES = 144; ACL = 148; TK = [152, 154]; AD = 156; AV = 158; TV = 159; SD = 160; WA = 161; RA = 162; R8 = 163
    SO = 52
    NP = 16 + 2 * NS
    NL = 2 * NP
    NT_ = (16 - NS) * 16
    a("s_sub_u32 s3, s3, 4")
    if SP: a("s_setprio %d" % SP)
    a("v_lshrrev_b32 v2, 4, v0\nv_and_b32 v3, 15, v0\nv_lshlrev_b32 v2, 9, v2\nv_lshl_or_b32 v%d, v3, 4, v2" % OFF)
    a("s_add_u32 s80, s3, s93\ns_and_b32 s80, s80, 7\ns_lshl_b32 s79, s80, 12")
    a("s_lshl_b32 s77, s92, 17\ns_add_u32 s77, s77, s79")
    for j in range(1, 8): a("s_mov_b32 s%d, 0x%x" % (SO + j, j * 32768))
    a("s_mov_b32 s34, 0x19000\ns_mov_b32 s35, 0x20000\ns_mov_b32 s38, 0x19000\ns_mov_b32 s39, 0x20000")
    a("s_waitcnt lgkmcnt(0)")
    if not LB: a("s_barrier")
    a("s_add_u32 s32, s16, s77\ns_addc_u32 s33, s17, 0")
    a("s_add_u32 s36, s18, s77\ns_addc_u32 s37, s19, 0")
    pairs = [(32, j) for j in range(8)] + [(36, j) for j in range(8)] + [(40, j) for j in range(NS)] + [(44, j) for j in range(NS)]
    def slot(n): return RING + (n % 16 if n < 24 else n % 8) * 8
    def prev_in_slot(n): return n - 16 if n < 24 else n - 8
    def atomic(k):
        a("s_mov_b64 exec, 1")
        a("global_atomic_add_x2 v[%d:%d], v%d, v[%d:%d], s[30:31] sc0 sc1" % (TK[k], TK[k] + 1, AV, AD, AD + 1))
        a("s_mov_b64 exec, -1")
    st = {"issued": 0, "landed": 0, "at": None}
    def issue_load(i):
        n = i >> 1; c = i & 1
        srd, j = pairs[n]; r = slot(n) + 4 * c
        if dbgt == 2 and c == 0 and n % 6 == 0 and n > 0: a("s_memrealtime s[%d:%d]" % (84 + 2 * (n // 6 - 1) + (4 if n // 6 > 3 else 0), 85 + 2 * (n // 6 - 1) + (4 if n // 6 > 3 else 0)))
        if i == NL - ATL and NT_:
            atomic(0); st["at"] = i
        so = "0" if j < 2 else "s%d" % (SO + (j >> 1))
        a("buffer_load_dwordx4 v[%d:%d], v%d, s[%d:%d], %s offen offset:%d%s" % (r, r + 3, OFF, srd, srd + 3, so, (j & 1) * 2048 + c * 256, NT))
    def Wn(i):
        w = W0
        for (frm, ww) in (WS_ or []):
            if i >= frm: w = ww
        return w
    extra = {"n": 0}
    def wait_landed(k):
        if k > st["landed"]:
            cnt = st["issued"] - k + extra["n"]
            if st["at"] is not None and k <= st["at"]: cnt += 1
            a("s_waitcnt vmcnt(%d)" % cnt); st["landed"] = k
    def issue_event():
        i = st["issued"]
        wait_landed(i + G - Wn(i))
        for t in range(G): issue_load(i + t)
        st["issued"] = i + G
    while st["issued"] + G <= Wn(0): issue_event()
    if LB: a("s_barrier")
    a("s_lshr_b32 s81, s93, 4\ns_lshl_b32 s78, s81, 22\ns_add_u32 s78, s78, s79\ns_and_b32 s76, s93, 15\ns_mul_i32 s76, s76, %d\ns_add_u32 s76, s76, s78\ns_add_u32 s78, s78, %d" % (NS * 16384, NS * 262144))
    nrec = (NS // 2 - 1) * 32768 + 4096
    a("s_add_u32 s40, s6, s76\ns_addc_u32 s41, s7, 0\ns_mov_b32 s42, 0x%x\ns_mov_b32 s43, 0x20000" % nrec)
    a("s_add_u32 s44, s8, s76\ns_addc_u32 s45, s9, 0\ns_mov_b32 s46, 0x%x\ns_mov_b32 s47, 0x20000" % nrec)
    prec = max((NT_ // 2 - 1) * 32768 + 4096, 0)
    a("s_add_u32 s60, s6, s78\ns_addc_u32 s61, s7, 0\ns_mov_b32 s62, 0x%x\ns_mov_b32 s63, 0x20000" % prec)
    a("s_add_u32 s64, s8, s78\ns_addc_u32 s65, s9, 0\ns_mov_b32 s66, 0x%x\ns_mov_b32 s67, 0x20000" % prec)
    a("s_lshl3_add_u32 s81, s81, s80\ns_lshl_b32 s81, s81, 7\ns_add_u32 s81, s81, %d" % WS_CNT)
    a("s_mov_b32 s48, s30\ns_mov_b32 s49, s31\ns_mov_b32 s50, 0x%x\ns_mov_b32 s51, 0x20000" % WS_END)
    a("s_mul_i32 s75, s93, %d\ns_add_u32 s75, s75, %d" % (PAS, WS_PA))
    masks(M, T[0], T[1])
    a("s_mov_b32 s82, %s" % f32(SC))
    a("v_mov_b32 v%d, 0" % T[0])
    a("v_mov_b32 v%d, 1" % T[1])
    while st["issued"] < 32:
        if QT and st["issued"] <= QT < st["issued"] + G:
            a("s_mov_b64 exec, 1\nds_add_u32 v%d, v%d offset:%d\ns_mov_b64 exec, -1" % (T[0], T[1], L_CNT + C_PRG))
        issue_event()
    ldswait("sq", T[0], T[1], L_CNT + C_QRDY, "lg", 0)

    chunks = []
    class Rec:
        def __init__(self): self.l = []
        def __call__(self, t): self.l += [x for x in t.split("\n") if x.strip()]
    def phase(ph, n0, ng):
        nonlocal a
        real = a
        def begin():
            nonlocal a
            a = Rec(); return a
        def done(need=None, pre=None):
            chunks.append((need, pre or [], a.l))
        nh = 2 if ph == 0 else 1
        Q = X if ph == 0 else QA
        sc = [S + j for j in range(8)] if ph == 0 else ([X + 8 + j for j in range(8)] + [S + j for j in range(8)])[:ng]
        begin()
        a("v_and_b32 v%d, 15, v0\nv_lshlrev_b32 v%d, 4, v%d" % (T[0], T[0], T[0]))
        for h in range(nh):
            for c in range(2):
                a("ds_read_b128 v[%d:%d], v%d offset:%d" % (Q + h * 8 + c * 4, Q + h * 8 + c * 4 + 3, T[0], L_Q + ph * 1024 + h * 512 + c * 256))
        if ph == 1:
            a("v_mov_b32 v%d, 0\nds_read_b32 v%d, v%d offset:%d" % (AD + 1, T[1], AD + 1, L_CNT + C_TAG))
            a("v_mov_b32 v%d, 1\nv_mov_b32 v%d, s81" % (AD, AV))
            for k in range(4): a("v_mov_b32 v%d, 0x3f803f80" % (ONES + k))
            a("v_and_b32 v%d, 15, v0\nv_and_b32 v%d, 16, v0\nv_lshlrev_b32 v%d, 3, v0\nv_lshl_or_b32 v%d, v%d, 5, v%d" % (WA, RA, R8, WA, WA, RA))
            a("s_lshl_b32 s76, s3, 10\nv_add_u32 v%d, s76, v%d\nv_lshlrev_b32 v%d, 4, v0" % (WA, WA, RA))
        a("s_waitcnt lgkmcnt(0)")
        if ph == 1: a("v_readfirstlane_b32 s74, v%d\ns_mov_b32 s83, %d" % (T[1], spin))
        done()
        pend = []
        for j in range(ng):
            begin()
            n = n0 + j; r = slot(n)
            ta, tb = (T[0], T[1]) if j % 2 == 0 else (T[2], T[3])
            dots = []
            for k in range(8):
                dots.append("v_dot2_f32_bf16 v%d, v%d, v%d, %s" % (ta, r + k, Q + k, "0" if k == 0 else "v%d" % ta))
                if nh == 2:
                    dots.append("v_dot2_f32_bf16 v%d, v%d, v%d, %s" % (tb, r + k, Q + 8 + k, "0" if k == 0 else "v%d" % tb))
            step = 3 if nh == 2 else 2
            for i, dline in enumerate(dots):
                a(dline)
                if i % step == step - 1 and pend: a(pend.pop(0))
            while pend: a(pend.pop(0))
            done(n)
            s_ = sc[j]
            pend = [dpp("v_add_f32", s_, ta, ta, "row_ror:8")]
            if nh == 2: pend.append(dpp("v_add_f32", s_, tb, tb, "row_ror:8", 0xc))
            pend += [dpp("v_add_f32", s_, s_, s_, "quad_perm:[1,0,3,2]"), dpp("v_add_f32", s_, s_, s_, "quad_perm:[2,3,0,1]"), dpp("v_add_f32", s_, s_, s_, "row_half_mirror")]
        begin()
        while pend: a(pend.pop(0))
        if round_s:
            for s_ in sc: a("v_cvt_pk_bf16_f32 v%d, v%d, v%d" % (s_, s_, s_))
            for s_ in sc: a("v_and_b32 v%d, 0xffff0000, v%d" % (s_, s_))
        done(); begin()
        a("v_max3_f32 v%d, v%d, v%d, v%d" % (MC, sc[0], sc[1], sc[2]))
        i = 3
        while i + 1 < ng:
            a("v_max3_f32 v%d, v%d, v%d, v%d" % (MC, MC, sc[i], sc[i + 1])); i += 2
        if i < ng: a("v_max_f32 v%d, v%d, v%d" % (MC, MC, sc[i]))
        allrows("v_max_f32", MC, T[0])
        a("v_mul_f32 v%d, s82, v%d" % (MC, MC))
        a("v_and_b32 v%d, 8, v0\nv_lshlrev_b32 v%d, 2, v%d\ns_lshl_b32 s76, s3, 2\nv_add_u32 v%d, s76, v%d" % (T[3], T[3], T[3], T[3], T[3]))
        a("v_mov_b32 v%d, 0\nv_mov_b32 v%d, 1" % (T[1], T[2]))
        if ph == 1:
            a("s_mov_b64 exec, 1")
            a("ds_add_u32 v%d, v%d offset:%d" % (T[1], T[2], L_CNT + C_KD))
            a("s_mov_b64 exec, -1")
        done(); begin()
        for s_ in sc: a("v_fma_f32 v%d, v%d, s82, -v%d" % (s_, s_, MC))
        for s_ in sc: a("v_exp_f32 v%d, v%d" % (s_, s_))
        done(); begin()
        L_ = LS if ph == 0 else ACL
        a("v_add_f32 v%d, v%d, v%d" % (L_, sc[0], sc[1]))
        for s_ in sc[2:]: a("v_add_f32 v%d, v%d, v%d" % (L_, L_, s_))
        for s_ in sc: a("v_cvt_pk_bf16_f32 v%d, v%d, v%d" % (s_, s_, s_))
        allrows("v_add_f32", L_, T[0])
        if ph == 0:
            a("s_mov_b64 exec, 0x101")
            a("ds_write_b32 v%d, v%d offset:%d" % (T[3], MC, L_MW))
            a("ds_write_b32 v%d, v%d offset:%d" % (T[3], LS, L_LW))
            a("s_mov_b64 exec, -1")
            a("v_and_b32 v%d, 15, v0\nv_and_b32 v%d, 16, v0\nv_lshl_or_b32 v%d, v%d, 5, v%d" % (T[0], T[3], T[0], T[0], T[3]))
            a("v_lshrrev_b32 v%d, 5, v0\nv_lshl_or_b32 v%d, v%d, 13, v%d" % (T[3], T[0], T[3], T[0]))
            a("s_lshl_b32 s76, s3, 10\nv_add_u32 v%d, s76, v%d" % (T[0], T[0]))
        else:
            for k in range(1, 4): a("v_mov_b32 v%d, 0" % (ACL + k))
        done()
        for j in range(ng):
            n = n0 + ng + j; r = slot(n)
            begin()
            pre = ["v_and_b32 v%d, v%d, v%d" % (E + k, sc[j], M + k) for k in range(4)]
            a("v_mfma_f32_16x16x32_bf16 v[%d:%d], v[%d:%d], v[%d:%d], %s" % (X, X + 3, E, E + 3, r, r + 3, "0" if j == 0 else "v[%d:%d]" % (X, X + 3)))
            a("v_mfma_f32_16x16x32_bf16 v[%d:%d], v[%d:%d], v[%d:%d], %s" % (X + 4, X + 7, E, E + 3, r + 4, r + 7, "0" if j == 0 else "v[%d:%d]" % (X + 4, X + 7)))
            if ph == 0 and j == ng - 1:
                for c in range(2):
                    a("ds_write_b128 v%d, v[%d:%d] offset:%d" % (T[0], X + c * 4, X + c * 4 + 3, L_ACCB + c * 512))
                a("s_mov_b64 exec, 1")
                a("ds_add_u32 v%d, v%d offset:%d" % (T[1], T[2], L_CNT + C_VDB))
                a("s_mov_b64 exec, -1")
            done(n, pre)
        a = real

    phase(0, 0, 8)
    phase(1, 16, NS)

    def ticket(k, lab):
        a("L_tk%s:" % lab)
        a("v_readfirstlane_b32 s68, v%d\nv_readfirstlane_b32 s69, v%d" % (TK[k], TK[k] + 1))
        a("s_nop 0\ns_cmp_lg_u32 s69, s74\ns_cbranch_scc1 L_tr%s" % lab)
        a("L_tg%s:" % lab)
        a("s_min_u32 s76, s68, %d\ns_lshr_b32 s77, s76, 1\ns_lshl_b32 s77, s77, 15\ns_and_b32 s76, s76, 1\ns_lshl_b32 s76, s76, 11\ns_add_u32 s76, s76, s77" % NT_)
        a("v_add_u32 v%d, s76, v%d" % (TV, OFF))
    retries = []
    TV2 = 164
    def tload(b, kv, tv=TV):
        r = TB[b] + 8 * kv; srd = 60 + 4 * kv
        a("buffer_load_dwordx4 v[%d:%d], v%d, s[%d:%d], 0 offen%s" % (r, r + 3, tv, srd, srd + 3, NT))
        a("buffer_load_dwordx4 v[%d:%d], v%d, s[%d:%d], 0 offen offset:256%s" % (r + 4, r + 7, tv, srd, srd + 3, NT))

    consumed = 0; budget = 0; dyn_stage = 0
    for (need, pre, lines) in chunks:
        def can_issue(): return st["issued"] < NL and prev_in_slot((st["issued"] + G - 1) // 2) < consumed
        for l in pre: a(l)
        while can_issue() and ((need is not None and 2 * need + 2 > st["landed"] and st["issued"] + G - Wn(st["issued"]) <= 2 * need + 2) or (budget > 0 and budget + len(lines) > BUD) or st["issued"] - 32 < RAMP):
            issue_event(); budget = 0
        if need is not None: wait_landed(2 * need + 2)
        if need == NP - 2 and dbgt == 2: a("s_memrealtime s[70:71]")
        if need == NP - 2 and NT_:
            assert st["issued"] == NL and st["landed"] > st["at"]
            ticket(0, "p"); retries.append((0, "p"))
            atomic(1); tload(0, 0); extra["n"] += 3
        if need == NP - 1 and NT_:
            tload(0, 1)
        for l in lines:
            if "comp" in dis and l.startswith(("v_dot", "v_add_f32", "v_mfma", "v_exp", "v_fma", "v_cvt", "v_max", "v_perm")): continue
            a(l)
        budget += len(lines) + len(pre)
        if need is not None: consumed = need + 1
    assert st["issued"] == NL
    if dbgt == 2: a("s_mov_b32 s72, 0")
    if NT_:
        a("s_cmp_ge_u32 s68, %d\ns_cbranch_scc1 L_dend" % NT_)
        a.flush()
        a("L_dloop:")
    for b in range(2 if NT_ else 0):
        r = TB[b]; lab = "d%d" % b
        if dbgt == 2: a("s_add_u32 s72, s72, 1")
        a("s_waitcnt vmcnt(2)")
        ticket(1 - b, lab); retries.append((1 - b, lab))
        if FIN: a("s_cmp_ge_u32 s68, %d\ns_cselect_b32 s77, s76, %d\nv_add_u32 v%d, s77, v%d" % (max(NT_ - FIN, 0), NT_ // 2 * 32768, TV2, OFF))
        atomic(b); tload(1 - b, 0)
        if FIN: tload(1 - b, 1, TV2)
        for k in range(8):
            a("v_dot2_f32_bf16 v%d, v%d, v%d, %s" % (SD, r + k, QA + k, "0" if k == 0 else "v%d" % SD))
        for ctl in ("row_ror:8", "quad_perm:[1,0,3,2]", "quad_perm:[2,3,0,1]", "row_half_mirror"):
            a(dpp("v_add_f32", SD, SD, SD, ctl))
        if round_s: a("v_cvt_pk_bf16_f32 v%d, v%d, v%d\nv_and_b32 v%d, 0xffff0000, v%d" % (SD, SD, SD, SD, SD))
        a("v_fma_f32 v%d, v%d, s82, -v%d" % (T[0], SD, MC))
        a("v_cmp_lt_f32 vcc, 0, v%d\ns_cbranch_vccnz L_rs%d" % (T[0], b))
        a("L_rb%d:" % b)
        a("v_exp_f32 v%d, v%d\nv_cvt_pk_bf16_f32 v%d, v%d, v%d" % (T[0], T[0], T[0], T[0], T[0]))
        for k in range(4): a("v_and_b32 v%d, v%d, v%d" % (E + k, T[0], M + k))
        a("v_mfma_f32_16x16x32_bf16 v[%d:%d], v[%d:%d], v[%d:%d], v[%d:%d]" % (ACL, ACL + 3, E, E + 3, ONES, ONES + 3, ACL, ACL + 3))
        a("s_waitcnt vmcnt(%d)" % (5 if FIN else 3))
        a("v_mfma_f32_16x16x32_bf16 v[%d:%d], v[%d:%d], v[%d:%d], v[%d:%d]" % (X, X + 3, E, E + 3, r + 8, r + 11, X, X + 3))
        a("v_mfma_f32_16x16x32_bf16 v[%d:%d], v[%d:%d], v[%d:%d], v[%d:%d]" % (X + 4, X + 7, E, E + 3, r + 12, r + 15, X + 4, X + 7))
        a("s_cmp_ge_u32 s68, %d\ns_cbranch_scc1 L_dend" % NT_)
        if FIN: a("s_cmp_ge_u32 s68, %d\ns_cbranch_scc1 %s" % (max(NT_ - FIN, 0), "L_dl1" if b == 0 else "L_dloop"))
        tload(1 - b, 1)
        if FIN and b == 0:
            a.flush(); a("L_dl1:")
    if NT_:
        a("s_branch L_dloop")
        a("L_dend:")
        a("s_nop 2")
    a("s_lshl_b32 s76, s3, 3\nv_mov_b32 v%d, s76\nv_mov_b32 v%d, v%d" % (T[0], LS, ACL))
    a("s_mov_b32 s53, 0x03020105\ns_mov_b32 s54, 0x03020106\ns_mov_b32 s55, 0x03020107")
    a("s_mov_b32 exec_hi, 0")
    for c in range(2):
        a("ds_write_b128 v%d, v[%d:%d] offset:%d" % (WA, X + c * 4, X + c * 4 + 3, L_ACCA + c * 512))
    a("s_mov_b64 exec, 1")
    a("ds_write_b64 v%d, v[%d:%d] offset:%d" % (T[0], MC, LS, L_MW + 64))
    a("ds_add_rtn_u32 v%d, v%d, v%d offset:%d" % (T[3], AD + 1, AD, L_CNT + C_VDA))
    a("s_mov_b64 exec, -1")
    G0 = RING; ML = RING + 32
    a("L_mrg:")
    for k in range(4):
        a("ds_read_b128 v[%d:%d], v%d offset:%d" % (ML + 4 * k, ML + 4 * k + 3, AD + 1, L_MW + 64 + 16 * k))
    a("ds_read_b32 v%d, v%d offset:%d" % (T[2], AD + 1, L_CNT + C_CLR))
    for w in range(8):
        a("ds_read_b128 v[%d:%d], v%d offset:%d" % (G0 + 4 * w, G0 + 4 * w + 3, RA, L_ACCA + w * 1024))
    a("s_waitcnt lgkmcnt(8)")
    mw = [ML + 2 * w for w in range(8)]
    a("v_max3_f32 v%d, v%d, v%d, v%d\nv_max3_f32 v%d, v%d, v%d, v%d" % (MC, mw[0], mw[1], mw[2], T[0], mw[3], mw[4], mw[5]))
    a("v_readfirstlane_b32 s79, v%d\nv_readfirstlane_b32 s78, v%d" % (T[3], T[2]))
    a("v_max3_f32 v%d, v%d, v%d, v%d\nv_max_f32 v%d, v%d, v%d" % (MC, MC, mw[6], mw[7], MC, MC, T[0]))
    a("s_cmp_lg_u32 s79, 7\ns_cbranch_scc1 %s" % ("L_sst" if dbgt >= 2 else "L_end"))
    for w in range(8): a("v_sub_f32 v%d, v%d, v%d" % (mw[w], mw[w], MC))
    for w in range(8): a("v_exp_f32 v%d, v%d" % (mw[w], mw[w]))
    a("s_cmp_lg_u32 s78, 2\ns_cbranch_scc1 L_mwait")
    a("v_mul_f32 v%d, v%d, v%d\nv_mul_f32 v%d, v%d, v%d" % (LS, mw[0], mw[0] + 1, T[0], mw[1], mw[1] + 1))
    for w in (2, 4, 6):
        a("v_fmac_f32 v%d, v%d, v%d\nv_fmac_f32 v%d, v%d, v%d" % (LS, mw[w], mw[w] + 1, T[0], mw[w + 1], mw[w + 1] + 1))
    a("v_add_f32 v%d, v%d, v%d" % (LS, LS, T[0]))
    a("v_rcp_f32 v%d, v%d\nv_log_f32 v%d, v%d" % (T[0], LS, LS, LS))
    a("s_waitcnt lgkmcnt(0)")
    for k in (0, 2):
        a("v_pk_mul_f32 v[%d:%d], v[%d:%d], v[%d:%d] op_sel_hi:[1,0]" % (G0 + k, G0 + k + 1, G0 + k, G0 + k + 1, mw[0], mw[0] + 1))
        a("v_pk_mul_f32 v[%d:%d], v[%d:%d], v[%d:%d] op_sel_hi:[1,0]" % (G0 + 16 + k, G0 + 17 + k, G0 + 16 + k, G0 + 17 + k, mw[4], mw[4] + 1))
    for w in (1, 2, 3):
        for base in (0, 4):
            for k in (0, 2):
                d = G0 + 4 * base + k; s0 = G0 + 4 * (base + w) + k
                a("v_pk_fma_f32 v[%d:%d], v[%d:%d], v[%d:%d], v[%d:%d] op_sel_hi:[1,0,1]" % (d, d + 1, s0, s0 + 1, mw[base + w], mw[base + w] + 1, d, d + 1))
    for k in (2, 0):
        a("v_pk_add_f32 v[%d:%d], v[%d:%d], v[%d:%d]" % (G0 + k, G0 + k + 1, G0 + k, G0 + k + 1, G0 + 16 + k, G0 + 17 + k))
    for k in (2, 0):
        a("v_pk_mul_f32 v[%d:%d], v[%d:%d], v[%d:%d] op_sel_hi:[1,0]" % (G0 + k, G0 + k + 1, G0 + k, G0 + k + 1, T[0], T[0] + 1))
    for k in (2, 0, 1):
        a("v_perm_b32 v%d, v%d, v%d, s%d" % (G0 + k, G0 + 3, G0 + k, 53 + k))
    a("v_add_f32 v%d, v%d, v%d" % (G0 + 3, MC, LS))
    a("buffer_store_dwordx4 v[%d:%d], v%d, s[48:51], s75 offen sc1" % (G0, G0 + 3, RA))
    if dbgt >= 2:
        a("L_sst:")
        a("s_mov_b64 exec, -1\ns_memrealtime s[100:101]\ns_waitcnt lgkmcnt(0)\nv_mov_b32 v100, 0\nv_mov_b32 v101, 0")
        for i, r in enumerate([90, 84, 86, 88, 94, 96, 98, 70, 70, 100, 72]):
            a("v_writelane_b32 v100, s%d, %d" % (r, i))
        a("s_lshl3_add_u32 s76, s2, s3\ns_add_u32 s76, s76, 256\ns_lshl_b32 s76, s76, 7\ns_add_u32 s76, s76, %d\ns_add_u32 s52, s76, s30\ns_addc_u32 s53, s31, 0\ns_mov_b32 s54, 128\ns_mov_b32 s55, 0x20000" % STAMP_OFF)
        a("v_lshlrev_b32 v102, 3, v0\nbuffer_store_dwordx2 v[100:101], v102, s[52:55], 0 offen")
    a("s_endpgm")
    a.flush()
    a("L_mwait:")
    a("s_waitcnt lgkmcnt(0)\ns_sleep 4\ns_sub_u32 s83, s83, 1\ns_cbranch_scc0 L_mrg\ns_endpgm")
    for b in range(2 if NT_ else 0):
        a.flush()
        a("L_rs%d:" % b)
        a("v_max_f32 v%d, 0, v%d" % (T[1], T[0]))
        allrows("v_max_f32", T[1], T[2])
        a("v_add_f32 v%d, v%d, v%d\nv_sub_f32 v%d, v%d, v%d" % (MC, MC, T[1], T[0], T[0], T[1]))
        a("v_sub_f32 v%d, 0, v%d\nv_exp_f32 v%d, v%d" % (T[1], T[1], T[1], T[1]))
        for k in range(8): a("v_mul_f32 v%d, v%d, v%d" % (X + k, X + k, T[1]))
        a("v_mul_f32 v%d, v%d, v%d" % (ACL, ACL, T[1]))
        a("s_branch L_rb%d" % b)
    for (k, lab) in retries:
        a.flush()
        a("L_tr%s:" % lab)
        a("s_mov_b32 s68, -1\ns_sub_u32 s83, s83, 1\ns_cbranch_scc1 L_tg%s" % lab)
        a("s_sleep 8")
        atomic(k)
        a("s_waitcnt vmcnt(0)\ns_branch L_tk%s" % lab)

    a.flush()
    a("L_helper:")
    a("s_setprio %d" % HP)
    W = 104
    W2 = 64
    XV = 16; AC = 20
    a("v_mov_b32 v4, 0\nv_mov_b32 v5, 0\nv_mov_b32 v6, 0\nv_mov_b32 v7, 0")
    a("v_lshlrev_b32 v1, 4, v0")
    a("v_and_b32 v3, 48, v1\nds_write_b128 v3, v[4:7] offset:%d" % L_CNT)
    if wqm:
        XV = 16; AC = 24; PT = 32
        a("v_lshrrev_b32 v8, 3, v0\nv_mul_u32_u24 v8, 14, v8\ns_mul_i32 s76, s3, 112\nv_add_u32 v8, s76, v8")
        a("v_lshlrev_b32 v9, 1, v8\nv_and_b32 v11, 0x70, v1\nv_lshl_or_b32 v8, v8, 13, v11")
        a("s_lshr_b32 s76, s2, 4\ns_lshl_b32 s76, s76, 9")
        a("s_and_b32 s77, s2, 3\ns_lshl_b32 s77, s77, 7\ns_add_u32 s76, s76, s77")
        for i in range(1, 14): a("s_mov_b32 s%d, %d" % (52 + i, i * 8192))
        a("s_sub_u32 s34, 3670016, s76\ns_bitcmp1_b32 s2, 3\ns_cselect_b32 s34, 0, s34\ns_mov_b32 s35, 0x20000\ns_mov_b32 s38, 896\ns_mov_b32 s39, 0x20000")
    else:
        a("v_lshrrev_b32 v8, 2, v0\ns_lshl_b32 s76, s3, 4\nv_add_u32 v8, s76, v8")
        a("v_lshlrev_b32 v9, 4, v8")
        a("v_lshl_or_b32 v8, v8, 16, v3")
        a("s_lshr_b32 s76, s2, 4\ns_lshl_b32 s76, s76, 9")
        a("s_and_b32 s77, s2, 3\ns_lshl_b32 s77, s77, 7\ns_add_u32 s76, s76, s77")
        a("s_bfe_u32 s77, s2, 0x10003\ns_lshl_b32 s77, s77, 6\ns_add_u32 s76, s76, s77")
        for i in range(1, 8): a("s_mov_b32 s%d, %d" % (52 + i, i * 8192))
        a("s_sub_u32 s34, 3670016, s76\ns_mov_b32 s35, 0x20000\ns_mov_b32 s38, 896\ns_mov_b32 s39, 0x20000")
    a("s_mov_b32 s50, 0x%x\ns_mov_b32 s51, 0x20000" % WS_END)
    if wqx:
        a("v_lshrrev_b32 v8, 4, v0\ns_mul_i32 s77, s3, 28\nv_add_u32 v8, s77, v8\nv_and_b32 v11, 15, v0\nv_lshlrev_b32 v11, 4, v11\nv_lshl_or_b32 v8, v8, 13, v11")
        a("s_lshr_b32 s76, s2, 5\ns_lshl_b32 s76, s76, 10\ns_and_b32 s77, s2, 3\ns_lshl_b32 s77, s77, 8\ns_add_u32 s76, s76, s77")
        a("s_bfe_u32 s77, s2, 0x20003\ns_mul_i32 s77, s77, %d\ns_add_u32 s92, s76, s77" % (112 * 8192))
        for i in range(1, 7): a("s_mov_b32 s%d, %d" % (52 + i, i * 32768))
        a("s_mov_b32 s59, 0\ns_sub_u32 s34, 3670016, s92")
        a("s_lshr_b32 s76, s2, 4\ns_lshl_b32 s76, s76, 9")
        a("s_and_b32 s77, s2, 3\ns_lshl_b32 s77, s77, 7\ns_add_u32 s76, s76, s77")
        a("s_bfe_u32 s77, s2, 0x10003\ns_lshl_b32 s77, s77, 6\ns_add_u32 s76, s76, s77")
    a("s_bitcmp1_b32 s2, 2")
    a("s_waitcnt lgkmcnt(0)")
    if not LB or "helper" in dis: a("s_barrier")
    if "helper" in dis:
        a("v_mov_b32 v6, 0\nv_mov_b32 v7, 2\nds_write_b32 v6, v7 offset:%d\nds_write_b32 v6, v7 offset:%d" % (L_CNT + C_QRDY, L_CNT + C_CLR))
        a("s_lshl_b32 s84, s2, 7\ns_add_u32 s84, s84, %d\ns_add_u32 s84, s84, s30\ns_addc_u32 s85, s31, 0\ns_mov_b32 s86, 128\ns_mov_b32 s87, 0x20000" % STAMP_OFF)
        a("v_mov_b32 v16, s90\nv_mov_b32 v17, 0\nbuffer_store_dwordx2 v[16:17], v6, s[84:87], 0 offen\ns_endpgm")
    a("s_cselect_b32 s32, s20, s10\ns_cselect_b32 s33, s21, s11\ns_cselect_b32 s77, 0x2000, 0")
    a("s_add_u32 s32, s32, s%d\ns_addc_u32 s33, s33, 0\ns_mov_b32 s36, s4\ns_mov_b32 s37, s5" % (92 if wqx else 76))
    a("buffer_load_dwordx4 v[%d:%d], v9, s[36:39], 0 offen" % (XV, XV + 3))
    def wql(i): a("buffer_load_dwordx4 v[%d:%d], v8, s[32:35], %s offen%s" % (W + 4 * i, W + 4 * i + 3, "0" if i == 0 else "s%d" % (52 + i), NTW))
    if wqm: a("buffer_load_dwordx3 v[%d:%d], v9, s[36:39], 0 offen offset:16" % (XV + 4, XV + 6))
    for i in range(14 if wqm else WQW):
        if wqx == 2 or (wqx and i == 7): continue
        wql(i)
    a("s_load_dword s70, s[30:31], 0x%x" % WS_EPOCH)
    if LB: a("s_barrier")
    a("s_add_u32 s75, s76, s77\ns_lshl_b32 s75, s75, 1")
    a("s_mov_b32 s48, s30\ns_mov_b32 s49, s31")
    a("s_lshl_b32 s74, s2, 12")
    a("s_mov_b32 s76, 0x05040100\ns_mov_b32 s77, 0x07060302")
    if wqm:
        a("v_lshrrev_b32 v4, 4, v0\nv_lshlrev_b32 v4, 3, v4\nv_lshl_or_b32 v4, v11, 1, v4\ns_lshl_b32 s78, s3, 8\nv_add_u32 v4, s78, v4")
        a("v_and_b32 v5, 31, v0\nv_lshlrev_b32 v5, 3, v5\nv_add_u32 v5, %d, v5" % L_QP)
    else:
        a("v_lshrrev_b32 v4, 4, v0\ns_lshl_b32 s78, s3, 2\nv_add_u32 v4, s78, v4\nv_lshlrev_b32 v4, 7, v4\nv_lshl_or_b32 v4, v3, 1, v4")
        a("v_and_b32 v5, 31, v0\nv_lshlrev_b32 v5, 2, v5\nv_lshrrev_b32 v6, 5, v0\nv_lshl_or_b32 v5, v6, 10, v5")
        a("v_add_u32 v5, %d, v5" % L_QP)
    a("v_mov_b32 v6, 0\nv_mov_b32 v7, 1\nv_lshlrev_b32 v2, 2, v0")
    if dbgt: a("v_mov_b32 v63, 0\nv_writelane_b32 v63, s90, 0")
    a("s_lshr_b32 s72, s%d, 5\ns_lshl_b32 s72, s72, 11\ns_add_u32 s72, s72, 0x4000" % (2 if wqx else 92))
    a("s_lshr_b32 s73, s93, 4\ns_lshl_b32 s73, s73, 10")
    a("v_lshlrev_b32 v10, 3, v0")
    for i in range(WQW, 8):
        a("s_waitcnt vmcnt(%d)" % (WQW - 1)); wql(i)
    a("s_setprio 3")
    if wqm:
        for k in range(7):
            a("s_waitcnt vmcnt(%d)" % (12 - 2 * k))
            w0 = W + 8 * k; w1 = w0 + 4
            for d in range(4):
                a("v_perm_b32 v%d, v%d, v%d, s76" % (PT + 2 * d, w1 + d, w0 + d))
                a("v_perm_b32 v%d, v%d, v%d, s77" % (PT + 1 + 2 * d, w1 + d, w0 + d))
            for e in range(8):
                a("v_dot2_f32_bf16 v%d, v%d, v%d, %s" % (AC + e, PT + e, XV + k, "0" if k == 0 else "v%d" % (AC + e)))
        stamp(1)
        for j in range(4): a("v_permlane32_swap_b32 v%d, v%d" % (AC + j, AC + j + 4))
        for j in range(4): a("v_add_f32 v%d, v%d, v%d" % (AC + j, AC + j, AC + j + 4))
        for j in range(2): a("v_permlane16_swap_b32 v%d, v%d" % (AC + j, AC + j + 2))
        for j in range(2): a("v_add_f32 v%d, v%d, v%d" % (AC + j, AC + j, AC + j + 2))
        for j in range(2): a(dpp("v_add_f32", AC + j, AC + j, AC + j, "row_ror:8"))
        a("ds_write_b64 v4, v[%d:%d] offset:%d" % (AC, AC + 1, L_QP))
        a("s_mov_b64 exec, 1")
        a("ds_add_rtn_u32 v9, v6, v7 offset:%d" % (L_CNT + C_QARR))
        a("s_mov_b64 exec, -1")
        a("ds_read2_b64 v[28:31], v5 offset0:0 offset1:32\nds_read2_b64 v[32:35], v5 offset0:64 offset1:96")
        a("s_waitcnt lgkmcnt(0)\nv_readfirstlane_b32 s71, v9")
        a("s_mul_i32 s70, s70, 0x9e3779b1\ns_add_u32 s70, s70, 0x7f4a7c15")
        a("s_cmp_lg_u32 s71, 3\ns_cbranch_scc1 L_h_wq")
        a("v_pk_add_f32 v[28:29], v[28:29], v[30:31]\nv_pk_add_f32 v[32:33], v[32:33], v[34:35]\nv_pk_add_f32 v[28:29], v[28:29], v[32:33]")
        a("v_cvt_pk_bf16_f32 v28, v28, v29\nv_mov_b32 v29, s70")
        a("s_bitcmp1_b32 s2, 3\ns_cselect_b32 exec_lo, 0, -1\ns_mov_b32 exec_hi, 0")
        a("buffer_store_dwordx2 v[28:29], v10, s[48:51], s75 offen sc1")
    else:
        a("s_waitcnt vmcnt(0)")
        stamp(1)
    if not wqm:
        for k in range(4):
            w0 = W + 8 * k; w1 = w0 + 4
            for d in range(4):
                a("v_perm_b32 v%d, v%d, v%d, s76" % (28 + 2 * d, w1 + d, w0 + d))
                a("v_perm_b32 v%d, v%d, v%d, s77" % (29 + 2 * d, w1 + d, w0 + d))
            for e in range(8):
                a("v_dot2_f32_bf16 v%d, v%d, v%d, %s" % (AC + e, 28 + e, XV + k, "0" if k == 0 else "v%d" % (AC + e)))
        for e in range(8): a(dpp("v_add_f32", AC + e, AC + e, AC + e, "row_ror:4"))
        for e in range(8): a(dpp("v_add_f32", AC + e, AC + e, AC + e, "row_ror:8"))
        a("s_mov_b32 exec_lo, 0x000f000f\ns_mov_b32 exec_hi, 0x000f000f")
        a("ds_write_b128 v4, v[%d:%d] offset:%d" % (AC, AC + 3, L_QP))
        a("ds_write_b128 v4, v[%d:%d] offset:%d" % (AC + 4, AC + 7, L_QP + 16))
        a("s_mov_b64 exec, 1")
        a("ds_add_rtn_u32 v9, v6, v7 offset:%d" % (L_CNT + C_QARR))
        a("s_mov_b64 exec, -1")
        for i in range(4):
            a("ds_read2_b32 v[%d:%d], v5 offset0:%d offset1:%d" % (28 + 2 * i, 29 + 2 * i, 64 * i, 64 * i + 32))
        a("s_waitcnt lgkmcnt(0)\nv_readfirstlane_b32 s71, v9")
        a("s_mul_i32 s70, s70, 0x9e3779b1\ns_add_u32 s70, s70, 0x7f4a7c15")
        a("s_cmp_lg_u32 s71, 3\ns_cbranch_scc1 L_h_wq")
        a("v_add_f32 v28, v28, v29\nv_add_f32 v30, v30, v31\nv_add_f32 v32, v32, v33\nv_add_f32 v34, v34, v35")
        a("v_add_f32 v28, v28, v30\nv_add_f32 v32, v32, v34\nv_add_f32 v28, v28, v32")
        a("v_mov_b32 v29, v28\nv_permlane32_swap_b32 v29, v28\nv_add_f32 v28, v28, v29")
        a("v_mov_b32_dpp v29, v28 quad_perm:[1,0,3,2] row_mask:0xf bank_mask:0xf")
        a("v_cvt_pk_bf16_f32 v28, v28, v29\nv_mov_b32 v29, s70")
        a("s_mov_b32 exec_lo, 0x55555555\ns_mov_b32 exec_hi, 0")
        a("buffer_store_dwordx2 v[28:29], v2, s[48:51], s75 offen sc1")
    a("s_mov_b64 exec, 0xffff")
    a("v_mov_b32 v30, 0\nv_mov_b32 v31, s70\nds_write_b32 v6, v31 offset:%d" % (L_CNT + C_TAG))
    a("s_cmp_ge_u32 s2, 128\ns_cbranch_scc1 L_h_noci")
    a("s_lshl_b32 s76, s2, 7\ns_add_u32 s76, s76, %d" % WS_CNT)
    a("buffer_store_dwordx2 v[30:31], v10, s[48:51], s76 offen sc1")
    a("L_h_noci:")
    a("s_mov_b64 exec, -1")
    stamp(2)
    ldswait("prg", 6, 4, L_CNT + C_PRG, "ge", 4, slp=2)
    a("s_mov_b32 s83, %d" % spin)
    a("L_h_fw:")
    a("buffer_load_dwordx4 v[16:19], v1, s[48:51], s72 offen sc1")
    a("buffer_load_dwordx4 v[20:23], v1, s[48:51], s72 offen offset:1024 sc1")
    a("buffer_load_dwordx4 v[24:27], v1, s[48:51], s73 offen sc1")
    a("s_waitcnt vmcnt(0)")
    a("v_xor_b32 v4, s70, v17\nv_xor_b32 v5, s70, v19\nv_xor_b32 v8, s70, v21\nv_xor_b32 v9, s70, v23\nv_xor_b32 v11, s70, v25\nv_xor_b32 v12, s70, v27")
    a("v_or3_b32 v4, v4, v5, v8\nv_or3_b32 v9, v9, v11, v12\nv_or_b32 v4, v4, v9\nv_cmp_ne_u32 vcc, 0, v4")
    a("s_sub_u32 s83, s83, 1\ns_cbranch_scc1 L_h_fg")
    a("s_cbranch_vccnz L_h_fw")
    a("L_h_fg:")
    a("ds_write2_b32 v10, v16, v18 offset0:0 offset1:1")
    a("ds_write2_b32 v10, v20, v22 offset0:128 offset1:129")
    a("v_add_u32 v10, 1024, v10")
    a("ds_write2_b32 v10, v24, v26 offset0:0 offset1:1")
    a("s_mov_b64 exec, 1")
    a("ds_write_b32 v6, v7 offset:%d" % (L_CNT + C_QRDY))
    a("s_mov_b64 exec, -1")
    stamp(3)
    a("L_h_wq:")
    ldswait("bq", 6, 4, L_CNT + C_QRDY, "lg", 0, slp=4)
    WB = 104; WA_ = 120; WC = 136
    G_ = 60; GA = 61; OV = 62; YV = 64; PV = 68; MLV = 69; PVA = 70; MLA = 71; EE = 32; ACC = 72
    a("v_lshrrev_b32 v12, 4, v0\nv_mul_u32_u24 v12, 896, v12\nv_and_b32 v13, 15, v0\nv_lshl_add_u32 v12, v13, 4, v12")
    a("s_and_b32 s78, s2, 3\ns_cmp_eq_u32 s78, 3\ns_cselect_b32 s77, 8, 0\nv_and_b32 v13, s77, v0\nv_lshl_or_b32 v12, v13, 24, v12")
    for rg in range(1, 4): a("v_add_u32 v%d, %d, v12" % (12 + rg, rg * 3584))
    a("s_lshr_b32 s76, s2, 2\ns_lshl2_add_u32 s69, s76, s71\ns_mul_i32 s76, s69, 14336\ns_lshl_b32 s78, s78, 8\ns_add_u32 s76, s76, s78")
    a("s_sub_u32 s34, 14336, s78\ns_mov_b32 s46, s34\ns_mov_b32 s47, 0x20000")
    a("s_add_u32 s32, s22, s76\ns_addc_u32 s33, s23, 0\ns_add_u32 s44, s12, s76\ns_addc_u32 s45, s13, 0")
    if "wo" not in dis:
        for rg in range(4): a("buffer_load_dwordx4 v[%d:%d], v%d, s[32:35], 0 offen%s" % (WC + 4 * rg, WC + 4 * rg + 3, 12 + rg, NTW))
        for rg in range(4): a("buffer_load_dwordx4 v[%d:%d], v%d, s[44:47], 0 offen%s" % (WA_ + 4 * rg, WA_ + 4 * rg + 3, 12 + rg, NTW))
    masks(8, 4, 5)
    for r in range(4): a("v_mov_b32 v%d, 0" % (ACC + r))
    a("v_lshrrev_b32 v4, 2, v0\nv_mul_u32_u24 v%d, %d, v4\nv_add_u32 v%d, v%d, v3" % (PVA, PAS, PVA, PVA))
    a("s_mov_b32 s63, 0x0c04000c")
    a("v_mul_u32_u24 v%d, %d, v0" % (YV, 4 * YS))
    a("v_and_b32 v4, 15, v0\nv_lshrrev_b32 v5, 4, v0\nv_lshlrev_b32 v5, 1, v5\nv_lshl_or_b32 v%d, v4, 20, v5" % OV)
    a("s_lshl_b32 s76, s71, 9\nv_add_u32 v%d, s76, v1" % (YV + 1))
    a("s_and_b32 s76, s2, 0xf0\ns_mul_i32 s76, s76, %d\ns_add_u32 s76, s76, %d" % (PAS, WS_PA))
    a("s_and_b32 s77, s69, 15\ns_lshl_b32 s77, s77, 6\ns_add_u32 s62, s76, s77")
    a("s_mul_i32 s68, s2, %d\ns_add_u32 s68, s68, %d" % (YS, WS_Y))
    a("s_add_u32 s56, s30, s68\ns_addc_u32 s57, s31, 0\ns_mov_b32 s58, 0\ns_mov_b32 s59, 0x20000")
    a("s_and_b32 s78, s2, 3\ns_cmp_eq_u32 s78, 3\ns_cselect_b32 s72, 0x00ff00ff, -1")
    a("s_lshr_b32 s73, s2, 1\ns_add_u32 s77, s73, 8\ns_cmp_ge_u32 s73, 104\ns_cselect_b32 s76, s77, s73")
    a("s_lshr_b32 s77, s76, 5\ns_mul_i32 s60, s77, %d\ns_and_b32 s78, s76, 31\ns_lshl4_add_u32 s60, s78, s60\ns_add_u32 s60, s60, %d" % (YS, WS_Y))
    a("s_lshl_b32 s77, s77, 8\ns_and_b32 s78, s76, 15\ns_lshl4_add_u32 s77, s78, s77\ns_bfe_u32 s78, s76, 0x10004\ns_lshl3_add_u32 s77, s78, s77")
    a("s_add_u32 s64, s26, s77\ns_addc_u32 s65, s27, 0\ns_mov_b32 s66, 0\ns_mov_b32 s67, 0x20000")
    a("s_and_b32 s76, s2, 1\ns_lshl_b32 s76, s76, 8\ns_or_b32 s73, s73, s76")
    a("s_mov_b32 s40, s28\ns_mov_b32 s41, s29\ns_mov_b32 s42, 256\ns_mov_b32 s43, 0x20000")
    if "clear" in dis: a("v_mov_b32 v4, 2\nds_write_b32 v6, v4 offset:%d" % (L_CNT + C_CLR))
    if "bchain" in dis and "clear" in dis: a("s_branch L_t_a")
    if "clear" not in dis: a("s_cmp_lt_u32 s71, 2\ns_cbranch_scc1 L_h_clr")
    if "clear" in dis: a("s_cmp_lt_u32 s71, 2\ns_cbranch_scc1 L_b_rd")
    if "bchain" in dis: a("s_branch L_t_a")
    a("s_cmp_eq_u32 s71, 3\ns_cbranch_scc1 L_b_rd")
    a("s_mov_b32 s44, s24\ns_mov_b32 s45, s25\ns_mov_b32 s46, 896")
    a("buffer_load_dwordx4 v[16:19], v1, s[36:39], 0 offen")
    a("buffer_load_dwordx4 v[20:23], v1, s[44:47], 0 offen")
    a("s_waitcnt vmcnt(0)")
    for d in range(4):
        a("v_lshlrev_b32 v24, 16, v%d\nv_and_b32 v25, 0xffff0000, v%d\nv_lshlrev_b32 v26, 16, v%d\nv_and_b32 v27, 0xffff0000, v%d" % (16 + d, 16 + d, 20 + d, 20 + d))
        a("v_mul_f32 v24, v24, v26\nv_mul_f32 v25, v25, v27\nv_cvt_pk_bf16_f32 v24, v24, v25")
        a("v_lshlrev_b32 v25, 16, v24\nv_and_b32 v24, 0xffff0000, v24")
        if d == 0: a("v_add_f32 v28, v24, v25")
        else: a("v_add_f32 v28, v28, v24\nv_add_f32 v28, v28, v25")
    for ctl in ("quad_perm:[1,0,3,2]", "quad_perm:[2,3,0,1]", "row_half_mirror", "row_mirror"):
        a(dpp("v_add_f32", 28, 28, 28, ctl))
    allrows("v_add_f32", 28, 29)
    a("v_cvt_pk_bf16_f32 v28, v28, v28\nv_and_b32 v28, 0xffff0000, v28")
    a("v_mul_f32 v28, %s, v28\nv_exp_f32 v28, v28\nv_add_f32 v28, 1.0, v28\nv_rcp_f32 v28, v28" % f32(-math.log2(math.e)))
    a("v_cvt_pk_bf16_f32 v28, v28, v28\nv_and_b32 v%d, 0xffff0000, v28" % GA)
    a("v_sub_f32 v28, 1.0, v%d\nv_cvt_pk_bf16_f32 v28, v28, v28\nv_and_b32 v%d, 0xffff0000, v28" % (GA, G_))
    a("ds_write_b32 v6, v%d offset:%d" % (GA, L_CNT + C_G))
    ldswait("vb", 6, 4, L_CNT + C_VDB, "eq", 8, slp=4)
    stamp(4)
    a("s_mul_i32 s76, s%d, %d\ns_add_u32 s76, s76, %d" % (2 if wqx else 92, PBS, WS_PB))
    for h in range(2):
        a("ds_read_b128 v[16:19], v6 offset:%d\nds_read_b128 v[20:23], v6 offset:%d" % (L_MW + 32 * h, L_MW + 32 * h + 16))
        a("ds_read_b128 v[24:27], v6 offset:%d\nds_read_b128 v[28:31], v6 offset:%d" % (L_LW + 32 * h, L_LW + 32 * h + 16))
        a("s_waitcnt lgkmcnt(0)")
        mx = 88 + 4 * h
        a("v_max3_f32 v%d, v16, v17, v18\nv_max3_f32 v%d, v%d, v19, v20\nv_max3_f32 v%d, v%d, v21, v22\nv_max_f32 v%d, v%d, v23" % (mx, mx, mx, mx, mx, mx, mx))
        for w in range(8): a("v_sub_f32 v%d, v%d, v%d" % (16 + w, 16 + w, mx))
        for w in range(8): a("v_exp_f32 v%d, v%d" % (16 + w, 16 + w))
        a("v_mul_f32 v%d, v16, v24" % (mx + 2))
        for w in range(1, 8): a("v_fmac_f32 v%d, v%d, v%d" % (mx + 2, 16 + w, 24 + w))
        o = 96 + 4 * h
        for half in range(2):
            for w in range(4):
                a("ds_read_b128 v[%d:%d], v1 offset:%d" % (32 + 4 * w, 35 + 4 * w, L_ACCB + h * 8192 + (half * 4 + w) * 1024))
            a("s_waitcnt lgkmcnt(0)")
            for w in range(4):
                for k in range(4):
                    if half == 0 and w == 0: a("v_mul_f32 v%d, v%d, v16" % (o + k, 32 + k))
                    else: a("v_fmac_f32 v%d, v%d, v%d" % (o + k, 32 + 4 * w + k, 16 + half * 4 + w))
        a("buffer_store_dwordx4 v[%d:%d], v1, s[48:51], s76 offen offset:%d sc1" % (o, o + 3, 1024 * h))
    a("v_and_b32 v4, 1, v0\nv_cmp_eq_u32 vcc, 1, v4")
    a("v_cndmask_b32 v88, v88, v92, vcc\nv_cndmask_b32 v90, v90, v94, vcc\nv_mov_b32 v89, s70\nv_mov_b32 v91, s70")
    a("s_waitcnt vmcnt(0)")
    a("s_mov_b64 exec, 0xff")
    a("buffer_store_dwordx4 v[88:91], v1, s[48:51], s76 offen offset:2048 sc1")
    a("s_mov_b64 exec, -1")
    stamp(5)
    a("s_mov_b32 s79, 0x01010101")
    a("v_and_b32 v4, 31, v0\nv_mul_u32_u24 v%d, %d, v4" % (MLV, PBS))
    a("v_lshrrev_b32 v5, 4, v0\nv_mul_u32_u24 v%d, %d, v5\nv_and_b32 v16, 15, v0\nv_lshl_add_u32 v%d, v16, 4, v%d" % (PV, PBS, PV, PV))
    a("v_lshlrev_b32 v66, 5, v5")
    a("v_and_b32 v16, 3, v0\nv_lshrrev_b32 v4, 2, v4\nv_lshl_or_b32 v67, v16, 3, v4\nv_lshlrev_b32 v67, 2, v67")
    a("s_and_b32 s76, s2, 0xe0\ns_mul_i32 s76, s76, %d\ns_add_u32 s76, s76, %d" % (PBS, WS_PB))
    a("s_bfe_u32 s77, s2, 0x10004\ns_lshl4_add_u32 s54, s77, s76\ns_add_u32 s54, s54, 2048")
    a("s_and_b32 s77, s2, 28\ns_lshl_b32 s77, s77, 6\ns_add_u32 s52, s76, s77")
    ldswait("kb", 6, 4, L_CNT + C_KD, "ge", BTRIG, slp=8)
    a("s_mov_b32 s83, %d" % spin)
    a("L_b_w:")
    if "clear" in dis: a("v_mov_b32 v4, s79")
    else: a("buffer_load_dword v4, v2, s[40:43], 0 offen sc1")
    a("buffer_load_dwordx4 v[24:27], v%d, s[48:51], s54 offen sc1" % MLV)
    a("s_waitcnt vmcnt(0)")
    a("v_xor_b32 v4, s79, v4\nv_xor_b32 v5, s70, v25\nv_xor_b32 v16, s70, v27")
    a("v_or3_b32 v4, v4, v5, v16\nv_cmp_ne_u32 vcc, 0, v4")
    a("s_sub_u32 s83, s83, 1\ns_cbranch_scc1 L_b_g")
    a("s_cbranch_vccz L_b_g\ns_sleep 32\ns_branch L_b_w")
    a("L_b_g:")
    for i in range(8):
        a("buffer_load_dwordx4 v[%d:%d], v%d, s[48:51], s52 offen sc1" % (28 + 4 * i, 31 + 4 * i, PV))
        if i < 7: a("s_add_u32 s52, s52, %d" % (4 * PBS))
    a("v_mov_b32 v4, v24")
    for ctl in ("quad_perm:[1,0,3,2]", "quad_perm:[2,3,0,1]", "row_half_mirror", "row_mirror"):
        a(dpp("v_max_f32", 4, 4, 4, ctl))
    allrows("v_max_f32", 4, 5)
    a("v_sub_f32 v24, v24, v4\nv_exp_f32 v24, v24\nv_mul_f32 v26, v26, v24")
    for ctl in ("quad_perm:[1,0,3,2]", "quad_perm:[2,3,0,1]", "row_half_mirror", "row_mirror"):
        a(dpp("v_add_f32", 26, 26, 26, ctl))
    a("v_mov_b32 v5, v26\nv_permlane16_swap_b32 v5, v26\nv_add_f32 v26, v26, v5")
    a("v_rcp_f32 v26, v26\nv_mul_f32 v24, v24, v%d\nv_mul_f32 v24, v24, v26" % G_)
    a("ds_write_b32 v67, v24 offset:%d" % L_ACCB)
    a("ds_read_b128 v[16:19], v66 offset:%d\nds_read_b128 v[20:23], v66 offset:%d" % (L_ACCB, L_ACCB + 16))
    a("s_waitcnt vmcnt(0) lgkmcnt(0)")
    for i in range(8):
        for r in range(4):
            if i == 0: a("v_mul_f32 v%d, v%d, v16" % (24 + r, 28 + r))
            else: a("v_fmac_f32 v%d, v%d, v%d" % (24 + r, 28 + 4 * i + r, 16 + i))
    for r in range(4): allrows("v_add_f32", 24 + r, 5)
    a("s_mov_b32 s53, 0x03020105\ns_mov_b32 s54, 0x03020106\ns_mov_b32 s55, 0x03020107")
    for k in range(3): a("v_perm_b32 v%d, v27, v%d, s%d" % (24 + k, 24 + k, 53 + k))
    a("v_mov_b32 v27, 0")
    a("ds_write_b128 v1, v[24:27] offset:%d" % (L_ACCB + 1024))
    a("s_mov_b64 exec, 1")
    a("ds_write_b32 v6, v7 offset:%d" % (L_CNT + C_YB))
    a("s_mov_b64 exec, -1")
    a("L_b_rd:")
    ldswait("yb", 6, 4, L_CNT + C_YB, "lg", 0, slp=8)
    PR = 76; YR = 80
    a("v_mov_b32 v%d, 0\nv_mov_b32 v%d, 0\nv_mov_b32 v%d, 0\nv_mov_b32 v%d, %s\nv_mov_b32 v%d, 1.0" % (PR, PR + 1, PR + 2, PR + 3, f32(-1e30), G_))
    a("ds_read_b32 v%d, v6 offset:%d" % (GA, L_CNT + C_G))
    a("s_lshl_b32 s76, s71, 6\nv_add_u32 v4, s76, v1\ns_mov_b64 exec, 0xf")
    a("ds_read_b128 v[%d:%d], v4 offset:%d" % (PR, PR + 3, L_ACCB + 1024))
    a("s_mov_b64 exec, -1")
    a("s_mov_b32 s61, 0\ns_mov_b32 s74, 1")
    a("s_waitcnt vmcnt(0) lgkmcnt(0)")
    stamp(6)
    a("s_branch L_t_pg")
    a("L_t_a:")
    a("s_mov_b32 s61, 4\ns_mov_b32 s74, %d\ns_movk_i32 s58, 512\ns_mov_b32 s66, 8" % spin)
    a("v_mov_b32 v%d, v%d" % (G_, GA))
    for r in range(16): a("v_mov_b32 v%d, v%d" % (WC + r, WA_ + r))
    stamp(8)
    if dumat:
        a("s_lshr_b32 s76, s93, 4\ns_lshl_b32 s76, s76, 10\ns_lshl_b32 s77, s71, 8\ns_add_u32 s76, s76, s77\ns_add_u32 s76, s76, %d" % (WS_CNT + 0x10000))
        a("v_lshlrev_b32 v20, 7, v0\nv_add_u32 v20, s76, v20\nv_mov_b32 v22, 1\nv_mov_b32 v23, 0\ns_mov_b32 s83, 4000")
        a("L_du_w:")
        a("s_mov_b64 exec, %d" % (2 ** dumat - 1))
        a("global_atomic_add_x2 v[24:25], v20, v[22:23], s[30:31] sc0 sc1")
        a("s_mov_b64 exec, -1")
        a("ds_read_b32 v4, v6 offset:%d\ns_waitcnt vmcnt(0) lgkmcnt(0)\nv_readfirstlane_b32 s76, v4" % (L_CNT + C_VDA))
        a("s_sub_u32 s83, s83, 1\ns_cbranch_scc1 L_du_g")
        a("s_cmp_eq_u32 s76, 0\ns_cbranch_scc1 L_du_w")
        a("L_du_g:")
    ldswait("va", 6, 4, L_CNT + C_VDA, "ge", VAT, slp=LSL)
    if "apass" in dis: a("s_mov_b32 s76, 3\ns_branch L_fin")
    stamp(9)
    a("s_mov_b32 s83, %d" % spin)
    PL = 84 if PP > 1 else PR
    pl = "buffer_load_dwordx4 v[%d:%d], v%d, s[48:51], s62 offen sc1" % (PL, PL + 3, PVA)
    for i in range(PP - 1): a(pl + "\ns_sleep %d" % PD)
    a("L_t_pw:")
    a(pl)
    a("s_waitcnt vmcnt(%d)" % (PP - 1))
    if PP > 1: a("v_mov_b64 v[%d:%d], v[%d:%d]\nv_mov_b64 v[%d:%d], v[%d:%d]" % (PR, PR + 1, PL, PL + 1, PR + 2, PR + 3, PL + 2, PL + 3))
    a("v_max3_u32 v4, v%d, v%d, v%d\nv_max_u32 v4, v4, v%d\nv_cmp_eq_u32 vcc, -1, v4" % (PR, PR + 1, PR + 2, PR + 3))
    a("s_cbranch_vccz L_t_pg0")
    if PMASK: a("s_mov_b64 exec, vcc")
    if PSLP: a("s_sleep %d" % PSLP)
    a("s_sub_u32 s83, s83, 1\ns_cbranch_scc0 L_t_pw")
    a("L_t_pg0:")
    if PMASK: a("s_mov_b64 exec, -1")
    stamp(10)
    a("L_t_pg:")
    a(dpp("v_max_f32", 4, PR + 3, PR + 3, "row_ror:4"))
    a("v_perm_b32 v19, v%d, v%d, s63" % (PR + 1, PR))
    a("v_lshl_or_b32 v19, v%d, 24, v19" % (PR + 2))
    a(dpp("v_max_f32", 4, 4, 4, "row_ror:8"))
    allrows("v_max_f32", 4, 5)
    a("v_sub_f32 v24, v%d, v4\nv_exp_f32 v24, v24" % (PR + 3))
    for r in range(3): a("v_mul_f32 v%d, v%d, v24" % (16 + r, PR + r))
    a("v_mul_f32 v19, v19, v24")
    a(dpp("v_add_f32", 25, 24, 24, "row_ror:4"))
    a("v_permlane16_swap_b32 v16, v17\nv_permlane16_swap_b32 v18, v19")
    a(dpp("v_add_f32", 25, 25, 25, "row_ror:8"))
    a("v_add_f32 v16, v16, v17\nv_add_f32 v18, v18, v19")
    a("v_mov_b32 v5, v25\nv_permlane32_swap_b32 v16, v18\nv_permlane16_swap_b32 v5, v25")
    a("v_add_f32 v16, v16, v18\nv_add_f32 v25, v25, v5\nv_mov_b32 v5, v25")
    a(dpp("v_add_f32", 16, 16, 16, "row_ror:4"))
    a("v_permlane32_swap_b32 v5, v25\nv_add_f32 v25, v25, v5")
    a(dpp("v_add_f32", 16, 16, 16, "row_ror:8"))
    a("v_rcp_f32 v25, v25\nv_mul_f32 v16, v16, v%d\nv_mul_f32 v16, v16, v25\nv_cvt_pk_bf16_f32 v16, v16, v16" % G_)
    for rg in range(4):
        for k in range(4):
            a(dpp("v_and_b32", EE + rg * 4 + k, 16, 8 + k, "quad_perm:[%d,%d,%d,%d]" % (rg, rg, rg, rg)))
        if rg: a("v_mfma_f32_16x16x32_bf16 v[%d:%d], v[%d:%d], v[%d:%d], v[%d:%d]" % (ACC, ACC + 3, EE + rg * 4 - 4, EE + rg * 4 - 1, WC + 4 * rg - 4, WC + 4 * rg - 1, ACC, ACC + 3))
    a("v_mfma_f32_16x16x32_bf16 v[%d:%d], v[%d:%d], v[%d:%d], v[%d:%d]" % (ACC, ACC + 3, EE + 12, EE + 15, WC + 12, WC + 15, ACC, ACC + 3))
    a("s_mov_b32 exec_hi, 0")
    a("ds_write_b128 v%d, v[%d:%d] offset:%d" % (YV + 1, ACC, ACC + 3, L_QP))
    a("s_mov_b64 exec, 1")
    a("ds_add_rtn_u32 v4, v6, v7 offset:%d" % (L_CNT + C_YARR))
    a("s_mov_b32 exec_lo, s72")
    for k in range(4): a("ds_read_b128 v[%d:%d], v1 offset:%d" % (16 + 4 * k, 19 + 4 * k, L_QP + 512 * k))
    a("s_waitcnt lgkmcnt(0)\nv_readfirstlane_b32 s76, v4")
    for r in (0, 2): a("v_pk_add_f32 v[%d:%d], v[%d:%d], v[%d:%d]" % (16 + r, 17 + r, 16 + r, 17 + r, 20 + r, 21 + r))
    for r in (0, 2): a("v_pk_add_f32 v[%d:%d], v[%d:%d], v[%d:%d]" % (24 + r, 25 + r, 24 + r, 25 + r, 28 + r, 29 + r))
    a("s_sub_u32 s76, s76, s61\ns_cmp_lg_u32 s76, 3\ns_cbranch_scc1 L_t_nst")
    for r in (0, 2): a("v_pk_add_f32 v[%d:%d], v[%d:%d], v[%d:%d]" % (16 + r, 17 + r, 16 + r, 17 + r, 24 + r, 25 + r))
    a("buffer_store_dwordx4 v[16:19], v1, s[56:59], 0 offen sc1")
    stamp(11)
    a("L_t_nst:")
    a("s_mov_b64 exec, -1")
    a("s_cmp_lg_u32 s76, 0\ns_cbranch_scc1 L_t_next")
    a("s_cmp_ge_u32 s73, 112\ns_cbranch_scc1 L_t_next")
    a("s_mov_b32 s83, s74")
    YL = 80 if YP > 1 else 16
    yl = "buffer_load_dwordx4 v[%d:%d], v%d, s[48:51], s60 offen sc1" % (YL, YL + 3, YV)
    if YP > 1: a("s_cmp_eq_u32 s61, 0\ns_cbranch_scc1 L_t_yw")
    for i in range(YP - 1): a(yl + "\ns_sleep %d" % YD)
    a("L_t_yw:")
    a(yl)
    a("s_waitcnt vmcnt(%d)" % (YP - 1))
    if YP > 1: a("v_mov_b64 v[16:17], v[%d:%d]\nv_mov_b64 v[18:19], v[%d:%d]" % (YL, YL + 1, YL + 2, YL + 3))
    a("v_max3_u32 v4, v16, v17, v18\nv_max_u32 v4, v4, v19\nv_cmp_eq_u32 vcc, -1, v4")
    a("s_cbranch_vccz L_t_yg")
    if YMASK: a("s_mov_b64 exec, vcc")
    a("s_sub_u32 s83, s83, 1\ns_cmp_lg_u32 s83, 0\ns_cbranch_scc1 L_t_yw")
    a("L_t_yg:")
    if YMASK: a("s_mov_b64 exec, -1")
    stamp(12)
    a("v_permlane16_swap_b32 v16, v17\nv_permlane16_swap_b32 v18, v19")
    a("v_add_f32 v16, v16, v17\nv_add_f32 v18, v18, v19")
    a("v_permlane32_swap_b32 v16, v18\nv_add_f32 v16, v16, v18")
    for ctl in ("quad_perm:[1,0,3,2]", "quad_perm:[2,3,0,1]", "row_half_mirror", "row_mirror"):
        a(dpp("v_add_f32", 16, 16, 16, ctl))
    a("v_cvt_pk_bf16_f32 v16, v16, v16")
    a("buffer_store_short v16, v%d, s[64:67], 0 offen" % OV)
    stamp(13)
    a("s_cmp_eq_u32 s61, 0\ns_cbranch_scc1 L_t_next")
    a("s_cmp_lg_u32 s2, 0\ns_cbranch_scc1 L_t_next")
    a("v_mov_b32 v4, s70\nv_mov_b32 v5, 0x%x\ns_mov_b64 exec, 1" % WS_EPOCH)
    a("buffer_store_dword v4, v5, s[48:51], 0 offen sc1")
    a("s_mov_b64 exec, -1")
    a("L_t_next:")
    a("s_cmp_lg_u32 s61, 0\ns_cbranch_scc1 L_fin")
    ldswait("y4", 6, 4, L_CNT + C_YARR, "ge", 4, slp=2)
    a("s_branch L_t_a")
    a("L_fin:")
    if dbgt:
        a("s_lshl_b32 s84, s2, 7\ns_add_u32 s84, s84, %d\ns_add_u32 s84, s84, s30\ns_addc_u32 s85, s31, 0\ns_mov_b32 s86, 128\ns_mov_b32 s87, 0x20000" % STAMP_OFF)
        a("v_mov_b32 v16, v63\nv_mov_b32 v17, 0\nv_lshlrev_b32 v18, 3, v0")
        a("s_mov_b32 s77, 0\ns_cmp_eq_u32 s71, 3\ns_cselect_b32 s78, 0xf, 0\ns_or_b32 s77, s77, s78\ns_cmp_eq_u32 s71, 2\ns_cselect_b32 s78, 0x30, 0\ns_or_b32 s77, s77, s78")
        a("s_cmp_eq_u32 s76, 3\ns_cselect_b32 s78, 0xf40, 0\ns_or_b32 s77, s77, s78\ns_cmp_eq_u32 s76, 0\ns_cselect_b32 s78, 0x3080, 0\ns_or_b32 s77, s77, s78")
        a("s_cbranch_scc0 L_end\ns_mov_b32 exec_lo, s77\ns_mov_b32 exec_hi, 0")
        a("buffer_store_dwordx2 v[16:17], v18, s[84:87], 0 offen")
    a("s_endpgm")
    a.flush()
    a("L_h_clr:")
    if CLT: ldswait("clq", 6, 4, L_CNT + C_VDB, "ge", CLT, slp=8)
    a("v_mov_b32 v36, -1\nv_mov_b32 v37, -1\nv_mov_b32 v38, -1\nv_mov_b32 v39, -1")
    a("s_cmp_eq_u32 s71, 0\ns_cbranch_scc1 L_h_cl0")
    a("s_mov_b32 exec_lo, s72\ns_mov_b32 exec_hi, 0")
    a("buffer_store_dwordx4 v[36:39], v1, s[48:51], s68 offen sc1")
    a("s_branch L_h_cl1")
    a("L_h_cl0:")
    a("s_mul_i32 s76, s93, %d\ns_add_u32 s76, s76, %d" % (PAS, WS_PA))
    a("buffer_store_dwordx4 v[36:39], v1, s[48:51], s76 offen sc1")
    a("L_h_cl1:")
    a("s_mov_b64 exec, 1")
    a("v_mov_b32 v5, s2")
    a("s_waitcnt vmcnt(0)")
    a("ds_add_rtn_u32 v4, v6, v7 offset:%d" % (L_CNT + C_CLR))
    a("s_waitcnt lgkmcnt(0)\nv_readfirstlane_b32 s76, v4")
    a("s_nop 0\ns_cmp_lg_u32 s76, 1\ns_cbranch_scc1 L_h_cl2")
    a("buffer_store_byte v7, v5, s[40:43], 0 offen sc1")
    a("L_h_cl2:")
    a("s_mov_b64 exec, -1\ns_branch %s" % ("L_t_a" if "bchain" in dis else "L_b_rd"))
    a("L_end:")
    a("s_endpgm")
    a.raw('.section .rodata,"a"\n.p2align 6\n.amdhsa_kernel %s' % NAME)
    a.raw("  .amdhsa_next_free_vgpr 168\n  .amdhsa_next_free_sgpr 102\n  .amdhsa_accum_offset 168")
    a.raw("  .amdhsa_group_segment_fixed_size 0\n  .amdhsa_kernarg_size 112\n  .amdhsa_user_sgpr_count 2\n  .amdhsa_user_sgpr_kernarg_segment_ptr 1\n  .amdhsa_system_sgpr_workgroup_id_x 1\n.end_amdhsa_kernel")
    open(fname, "w").write(a.text())
    return a

if __name__ == "__main__":
    kw = dict(dbgt=2, G=1, W0=6, WS_=[(6, 3)])
    gen("g_a.s", NS=16, **kw)
    gen("g_b.s", NS=14, **kw)
    gen("g_c.s", NS=16, wqx=2, dis=("wo",), **kw)
    gen("g_d.s", NS=16, wqx=2, dis=("wo", "apass", "bchain"), **kw)
```

```python
import gen10
kw = dict(dbgt=0, G=1, W0=6, WS_=[(6,3)])
gen10.gen("m_a.s", NS=14, ntw=False, PMASK=1, YMASK=1, **kw)
gen10.gen("m_b.s", NS=14, ntw=False, **kw)
gen10.gen("m_c.s", NS=12, ntw=False, PMASK=1, YMASK=1, **kw)
gen10.gen("m_d.s", NS=14, ntw=True, PMASK=1, YMASK=1, **kw)
gen10.gen("m_e.s", NS=14, ntw=False, PMASK=1, YMASK=1, FIN=16, **kw)
```

```python
import sys, math, struct
from asmlib import Asm
NAME = "gated_mix__mha_block_cached__gqa_block_cached__decode_kernel"
HEADER = open("gated_mix__mha_block_cached__gqa_block_cached__decode.s.ref").read().split("; Override launch")[0]

WS_Q = 0x0
WS_EPOCH = 0x8000
WS_CNT = 0x10000
WS_Y = 0x100000
WS_PB = 0x200000
WS_PA = 0x300000
WS_END = 0x400000
YS = 640; PAS = 1152
STAMP_OFF = 200 * 1024 * 1024
L_Q = 0; L_QP = 1536; L_MW = 3584; L_LW = 3712; L_CNT = 3840; L_ACCB = 4096; L_ACCA = 20480; L_LIST = 28672; LDS_BYTES = 29184
C_QARR, C_QRDY, C_QARDY, C_KD, C_VDB, C_VDA, C_LS, C_CLR, C_YB, C_PRG, C_TAG, C_YARR, C_G, C_PC, C_FST = 0, 4, 8, 12, 16, 20, 24, 32, 36, 40, 44, 48, 52, 56, 60
L_YB = L_ACCB
SC = math.log2(math.e) / 16.0
def f32(x): return "0x%08x" % struct.unpack("<I", struct.pack("<f", x))[0]

def gen(fname, W0=4, G=2, BUD=60, RAMP=4, nt=True, round_s=True, spin=400000, ntw=True, dbgt=0, dis=(), NPOLL=3, PSL=6, BTRIG=1, xl=1, prio=None, touch=0, WS_=None, wperm=0, QT=16, CLT=1, YINC=1, WQW=8, SP=0, HP=3, wqx=0, amap=1, NS=14, ATL=4, VAT=8, PSLP=0, PMASK=0, LSL=1, bmap=0, wqm=0, FIN=0, dumat=0, LB=1, PP=1, YP=1, PD=2, YD=2, YMASK=0, CSTR=4352, SPS=1, TH=0, FK=0, DW=4, WOL=None, EXS=2, WBL=None, WST=None, CK=1, BH=1, PBS=1152):
    a = Asm()
    if not BH: PBS = 2176
    MLO = 1024 if BH else 2048
    X3 = "bitop3:0x96"
    NT = " nt" if nt else ""
    NTW = " nt" if ntw else ""
    a.raw(HEADER.rstrip("\n"))
    a.raw("; @launch grid=(256,1,1) block=(768,1,1) lds=%d" % LDS_BYTES)
    a.raw('.amdgcn_target "amdgcn-amd-amdhsa--gfx950"\n.text\n.globl %s\n.p2align 8\n.type %s,@function\n%s:' % (NAME, NAME, NAME))
    SB = 4
    def stamp(idx):
        if not dbgt: return
        a("s_memrealtime s[88:89]\ns_waitcnt lgkmcnt(0)\nv_writelane_b32 v63, s88, %d" % idx)

    def allrows(op, x, t):
        a("v_mov_b32 v%d, v%d" % (t, x))
        a("v_permlane16_swap_b32 v%d, v%d" % (t, x))
        a("%s v%d, v%d, v%d" % (op, x, t, x))
        a("v_mov_b32 v%d, v%d" % (t, x))
        a("v_permlane32_swap_b32 v%d, v%d" % (t, x))
        a("%s v%d, v%d, v%d" % (op, x, t, x))
    def dpp(op, d, s0, s1, ctrl, bank=0xf):
        return "%s_dpp v%d, v%d, v%d %s row_mask:0xf bank_mask:0x%x" % (op, d, s0, s1, ctrl, bank)
    def masks(M, t0, t1):
        a("v_and_b32 v%d, 1, v0\nv_lshlrev_b32 v%d, 4, v%d" % (t0, t0, t0))
        a("v_mov_b32 v%d, 0xffff\nv_lshlrev_b32 v%d, v%d, v%d" % (t1, t0, t0, t1))
        a("v_bfe_u32 v%d, v0, 1, 2" % t1)
        for k in range(4):
            a("v_cmp_eq_u32 vcc, %d, v%d" % (k, t1))
            a("v_cndmask_b32 v%d, 0, v%d, vcc" % (M + k, t0))
    def ldswait(lab, vz, vt, off, cmp, val, slp=1, sreg=76, cnt=83):
        a("s_mov_b32 s%d, %d" % (cnt, spin * 8))
        a("L_%s_w:" % lab)
        a("ds_read_b32 v%d, v%d offset:%d\ns_waitcnt lgkmcnt(0)\nv_readfirstlane_b32 s%d, v%d" % (vt, vz, off, sreg, vt))
        a("s_sub_u32 s%d, s%d, 1\ns_cbranch_scc1 L_%s_g" % (cnt, cnt, lab))
        a("s_cmp_%s_u32 s%d, %d\ns_cbranch_scc1 L_%s_g\ns_sleep %d\ns_branch L_%s_w" % (cmp, sreg, val, lab, slp, lab))
        a("L_%s_g:" % lab)

    a("s_cmp_ge_u32 s2, 256\ns_cbranch_scc1 L_end")
    a("s_load_dwordx16 s[4:19], s[0:1], 0")
    if bmap == 1: a("s_mov_b32 s92, s2")
    if xl == 2: a("s_add_u32 s3, s2, 2\ns_and_b32 s3, s3, 7\ns_and_b32 s2, s2, 0xf8\ns_or_b32 s2, s2, s3")
    if xl == 3: a("s_lshr_b32 s3, s2, 3\ns_add_u32 s3, s3, s2\ns_and_b32 s3, s3, 7\ns_and_b32 s2, s2, 0xf8\ns_or_b32 s2, s2, s3")
    if xl == 1: a("s_and_b32 s3, s2, 7\ns_lshr_b32 s2, s2, 3\ns_lshl_b32 s3, s3, 5\ns_add_u32 s2, s2, s3")
    a("s_load_dwordx8 s[20:27], s[0:1], 64")
    a("s_load_dwordx4 s[28:31], s[0:1], 96")
    if dbgt: a("s_memrealtime s[90:91]")
    if amap:
        a("s_bfe_u32 s93, s2, 0x40001\ns_lshl_b32 s93, s93, 4\ns_lshr_b32 s3, s2, 5\ns_lshl1_add_u32 s93, s3, s93\ns_and_b32 s3, s2, 1\ns_add_u32 s93, s93, s3")
    else:
        a("s_mov_b32 s93, s2")
    if bmap == 0: a("s_mov_b32 s92, s2")
    if bmap == 2: a("s_mov_b32 s92, s93")
    assert not (bmap and wqx)
    a("v_lshrrev_b32 v1, 6, v0\nv_and_b32 v0, 63, v0\nv_readfirstlane_b32 s3, v1")
    a("s_nop 0\ns_cmp_lt_u32 s3, 4\ns_cbranch_scc1 L_helper")

    OFF = 1; T = [2, 3, 4, 5]; MC = 6; LS = 7; M = 8; E = 12; X = 16; S = 32; RING = 40
    QA = 104; TB = [112, 128]; ONES = 144; ACL = 148; TK = [152, 154]; AD = 156; AV = 158; TV = 159; SD = 160; WA = 161; RA = 162; R8 = 163
    SO = 52
    NP = 16 + 2 * NS
    NL = 2 * NP
    NT_ = (16 - NS) * 16
    a("s_sub_u32 s3, s3, 4")
    if SP: a("s_setprio %d" % SP)
    a("v_lshrrev_b32 v2, 4, v0\nv_and_b32 v3, 15, v0\nv_lshlrev_b32 v2, 9, v2\nv_lshl_or_b32 v%d, v3, 4, v2" % OFF)
    a("s_add_u32 s80, s3, s93\ns_and_b32 s80, s80, 7\ns_lshl_b32 s79, s80, 12")
    a("s_lshl_b32 s77, s92, 17\ns_add_u32 s77, s77, s79")
    for j in range(1, 8): a("s_mov_b32 s%d, 0x%x" % (SO + j, j * 32768))
    a("s_mov_b32 s34, 0x19000\ns_mov_b32 s35, 0x20000\ns_mov_b32 s38, 0x19000\ns_mov_b32 s39, 0x20000")
    a("s_waitcnt lgkmcnt(0)")
    if not LB: a("s_barrier")
    a("s_add_u32 s32, s16, s77\ns_addc_u32 s33, s17, 0")
    a("s_add_u32 s36, s18, s77\ns_addc_u32 s37, s19, 0")
    pairs = [(32, j) for j in range(8)] + [(36, j) for j in range(8)] + [(40, j) for j in range(NS)] + [(44, j) for j in range(NS)]
    def slot(n): return RING + (n % 16 if n < 24 else n % 8) * 8
    def prev_in_slot(n): return n - 16 if n < 24 else n - 8
    def atomic(k):
        a("s_mov_b64 exec, 1")
        a("global_atomic_add_x2 v[%d:%d], v%d, v[%d:%d], s[30:31] sc0 sc1" % (TK[k], TK[k] + 1, AV, AD, AD + 1))
        a("s_mov_b64 exec, -1")
    VP = 164; DU = 165; DV = 166
    nreq = [0]
    def request():
        nreq[0] += 1; u = nreq[0]
        a("s_cbranch_scc0 L_rql%d" % u)
        a("global_atomic_add_x2 v[%d:%d], v%d, v[%d:%d], s[30:31] sc0 sc1" % (TK[0], TK[0] + 1, AV, AD, AD + 1))
        a("s_branch L_rqe%d" % u)
        a("L_rql%d:" % u)
        a("buffer_load_dword v%d, v%d, s[60:63], 0 offen" % (DU, DV))
        a("L_rqe%d:" % u)
        a("s_mov_b64 exec, -1")
    def claim(off):
        a("s_mov_b64 exec, 1\nds_add_rtn_u32 v%d, v%d, v%d offset:%d\ns_mov_b64 exec, -1" % (VP, AD + 1, AD, L_CNT + off))
    st = {"issued": 0, "landed": 0, "at": None}
    def issue_load(i):
        n = i >> 1; c = i & 1
        srd, j = pairs[n]; r = slot(n) + 4 * c
        if dbgt == 2 and c == 0 and n % 6 == 0 and n > 0: a("s_memrealtime s[%d:%d]" % (84 + 2 * (n // 6 - 1) + (4 if n // 6 > 3 else 0), 85 + 2 * (n // 6 - 1) + (4 if n // 6 > 3 else 0)))
        if i == NL - ATL - 1 and NT_:
            claim(C_FST)
            a("v_mov_b32 v%d, 0x%x" % (DV, NT_ // 2 * 32768))
        if i == NL - ATL and NT_:
            a("s_waitcnt lgkmcnt(0)\nv_readfirstlane_b32 s76, v%d\ns_mov_b64 exec, 1\ns_cmp_eq_u32 s76, %d\ns_cselect_b32 s80, %d, 0" % (VP, FK, L_LIST))
            request(); st["at"] = i
        so = "0" if j < 2 else "s%d" % (SO + (j >> 1))
        a("buffer_load_dwordx4 v[%d:%d], v%d, s[%d:%d], %s offen offset:%d%s" % (r, r + 3, OFF, srd, srd + 3, so, (j & 1) * 2048 + c * 256, NT))
    def Wn(i):
        w = W0
        for (frm, ww) in (WS_ or []):
            if i >= frm: w = ww
        return w
    extra = {"n": 0}
    def wait_landed(k):
        if k > st["landed"]:
            cnt = st["issued"] - k + extra["n"]
            if st["at"] is not None and k <= st["at"]: cnt += 1
            a("s_waitcnt vmcnt(%d)" % cnt); st["landed"] = k
    def issue_event():
        i = st["issued"]
        wait_landed(i + G - Wn(i))
        for t in range(G): issue_load(i + t)
        st["issued"] = i + G
    while st["issued"] + G <= Wn(0): issue_event()
    if LB: a("s_barrier")
    a("s_lshr_b32 s81, s93, 4\ns_lshl_b32 s78, s81, 22\ns_and_b32 s76, s93, 15\ns_mul_i32 s76, s76, %d\ns_add_u32 s76, s76, s78\ns_add_u32 s76, s76, s79\ns_add_u32 s78, s78, %d" % (NS * 16384, NS * 262144))
    nrec = (NS // 2 - 1) * 32768 + 4096
    a("s_add_u32 s40, s6, s76\ns_addc_u32 s41, s7, 0\ns_mov_b32 s42, 0x%x\ns_mov_b32 s43, 0x20000" % nrec)
    a("s_add_u32 s44, s8, s76\ns_addc_u32 s45, s9, 0\ns_mov_b32 s46, 0x%x\ns_mov_b32 s47, 0x20000" % nrec)
    prec = NT_ // 2 * 32768
    a("s_add_u32 s60, s6, s78\ns_addc_u32 s61, s7, 0\ns_mov_b32 s62, 0x%x\ns_mov_b32 s63, 0x20000" % prec)
    a("s_add_u32 s64, s8, s78\ns_addc_u32 s65, s9, 0\ns_mov_b32 s66, 0x%x\ns_mov_b32 s67, 0x20000" % prec)
    a("s_mul_i32 s81, s81, %d\ns_add_u32 s81, s81, %d" % (CSTR, WS_CNT))
    a("s_mov_b32 s48, s30\ns_mov_b32 s49, s31\ns_mov_b32 s50, 0x%x\ns_mov_b32 s51, 0x20000" % WS_END)
    a("s_mul_i32 s75, s93, %d\ns_add_u32 s75, s75, %d" % (PAS, WS_PA))
    masks(M, T[0], T[1])
    a("s_mov_b32 s82, %s" % f32(SC))
    a("v_mov_b32 v%d, 0" % T[0])
    a("v_mov_b32 v%d, 1" % T[1])
    while st["issued"] < 32:
        if QT and st["issued"] <= QT < st["issued"] + G:
            a("s_mov_b64 exec, 1\nds_add_u32 v%d, v%d offset:%d\ns_mov_b64 exec, -1" % (T[0], T[1], L_CNT + C_PRG))
        issue_event()
    ldswait("sq", T[0], T[1], L_CNT + C_QRDY, "lg", 0)

    chunks = []
    class Rec:
        def __init__(self): self.l = []
        def __call__(self, t): self.l += [x for x in t.split("\n") if x.strip()]
    def phase(ph, n0, ng):
        nonlocal a
        real = a
        def begin():
            nonlocal a
            a = Rec(); return a
        def done(need=None, pre=None):
            chunks.append((need, pre or [], a.l))
        nh = 2 if ph == 0 else 1
        Q = X if ph == 0 else QA
        sc = [S + j for j in range(8)] if ph == 0 else ([X + 8 + j for j in range(8)] + [S + j for j in range(8)])[:ng]
        begin()
        a("v_and_b32 v%d, 15, v0\nv_lshlrev_b32 v%d, 4, v%d" % (T[0], T[0], T[0]))
        for h in range(nh):
            for c in range(2):
                a("ds_read_b128 v[%d:%d], v%d offset:%d" % (Q + h * 8 + c * 4, Q + h * 8 + c * 4 + 3, T[0], L_Q + ph * 1024 + h * 512 + c * 256))
        if ph == 1:
            a("v_mov_b32 v%d, 0\nds_read_b32 v%d, v%d offset:%d" % (AD + 1, T[1], AD + 1, L_CNT + C_TAG))
            a("v_mov_b32 v%d, 1\nv_mov_b32 v%d, s81" % (AD, AV))
            for k in range(4): a("v_mov_b32 v%d, 0x3f803f80" % (ONES + k))
            a("v_and_b32 v%d, 15, v0\nv_and_b32 v%d, 16, v0\nv_lshlrev_b32 v%d, 3, v0\nv_lshl_or_b32 v%d, v%d, 5, v%d" % (WA, RA, R8, WA, WA, RA))
            a("s_lshl_b32 s76, s3, 10\nv_add_u32 v%d, s76, v%d\nv_lshlrev_b32 v%d, 4, v0" % (WA, WA, RA))
        a("s_waitcnt lgkmcnt(0)")
        if ph == 1: a("v_readfirstlane_b32 s74, v%d\ns_mov_b32 s83, %d" % (T[1], spin))
        done()
        pend = []
        for j in range(ng):
            begin()
            n = n0 + j; r = slot(n)
            ta, tb = (T[0], T[1]) if j % 2 == 0 else (T[2], T[3])
            dots = []
            for k in range(8):
                dots.append("v_dot2_f32_bf16 v%d, v%d, v%d, %s" % (ta, r + k, Q + k, "0" if k == 0 else "v%d" % ta))
                if nh == 2:
                    dots.append("v_dot2_f32_bf16 v%d, v%d, v%d, %s" % (tb, r + k, Q + 8 + k, "0" if k == 0 else "v%d" % tb))
            step = 3 if nh == 2 else 2
            for i, dline in enumerate(dots):
                a(dline)
                if i % step == step - 1 and pend: a(pend.pop(0))
            while pend: a(pend.pop(0))
            done(n)
            s_ = sc[j]
            pend = [dpp("v_add_f32", s_, ta, ta, "row_ror:8")]
            if nh == 2: pend.append(dpp("v_add_f32", s_, tb, tb, "row_ror:8", 0xc))
            pend += [dpp("v_add_f32", s_, s_, s_, "quad_perm:[1,0,3,2]"), dpp("v_add_f32", s_, s_, s_, "quad_perm:[2,3,0,1]"), dpp("v_add_f32", s_, s_, s_, "row_half_mirror")]
        begin()
        while pend: a(pend.pop(0))
        if round_s:
            for s_ in sc: a("v_cvt_pk_bf16_f32 v%d, v%d, v%d" % (s_, s_, s_))
            for s_ in sc: a("v_and_b32 v%d, 0xffff0000, v%d" % (s_, s_))
        done(); begin()
        a("v_max3_f32 v%d, v%d, v%d, v%d" % (MC, sc[0], sc[1], sc[2]))
        i = 3
        while i + 1 < ng:
            a("v_max3_f32 v%d, v%d, v%d, v%d" % (MC, MC, sc[i], sc[i + 1])); i += 2
        if i < ng: a("v_max_f32 v%d, v%d, v%d" % (MC, MC, sc[i]))
        allrows("v_max_f32", MC, T[0])
        a("v_mul_f32 v%d, s82, v%d" % (MC, MC))
        a("v_and_b32 v%d, 8, v0\nv_lshlrev_b32 v%d, 2, v%d\ns_lshl_b32 s76, s3, 2\nv_add_u32 v%d, s76, v%d" % (T[3], T[3], T[3], T[3], T[3]))
        a("v_mov_b32 v%d, 0\nv_mov_b32 v%d, 1" % (T[1], T[2]))
        if ph == 1:
            a("s_mov_b64 exec, 1")
            a("ds_add_u32 v%d, v%d offset:%d" % (T[1], T[2], L_CNT + C_KD))
            a("s_mov_b64 exec, -1")
        done(); begin()
        for s_ in sc: a("v_fma_f32 v%d, v%d, s82, -v%d" % (s_, s_, MC))
        for s_ in sc: a("v_exp_f32 v%d, v%d" % (s_, s_))
        done(); begin()
        L_ = LS if ph == 0 else ACL
        a("v_add_f32 v%d, v%d, v%d" % (L_, sc[0], sc[1]))
        for s_ in sc[2:]: a("v_add_f32 v%d, v%d, v%d" % (L_, L_, s_))
        for s_ in sc: a("v_cvt_pk_bf16_f32 v%d, v%d, v%d" % (s_, s_, s_))
        allrows("v_add_f32", L_, T[0])
        if ph == 0:
            a("s_mov_b64 exec, 0x101")
            a("ds_write_b32 v%d, v%d offset:%d" % (T[3], MC, L_MW))
            a("ds_write_b32 v%d, v%d offset:%d" % (T[3], LS, L_LW))
            a("s_mov_b64 exec, -1")
            a("v_and_b32 v%d, 15, v0\nv_and_b32 v%d, 16, v0\nv_lshl_or_b32 v%d, v%d, 5, v%d" % (T[0], T[3], T[0], T[0], T[3]))
            a("v_lshrrev_b32 v%d, 5, v0\nv_lshl_or_b32 v%d, v%d, 13, v%d" % (T[3], T[0], T[3], T[0]))
            a("s_lshl_b32 s76, s3, 10\nv_add_u32 v%d, s76, v%d" % (T[0], T[0]))
        else:
            for k in range(1, 4): a("v_mov_b32 v%d, 0" % (ACL + k))
        done()
        for j in range(ng):
            n = n0 + ng + j; r = slot(n)
            begin()
            pre = ["v_and_b32 v%d, v%d, v%d" % (E + k, sc[j], M + k) for k in range(4)]
            a("v_mfma_f32_16x16x32_bf16 v[%d:%d], v[%d:%d], v[%d:%d], %s" % (X, X + 3, E, E + 3, r, r + 3, "0" if j == 0 else "v[%d:%d]" % (X, X + 3)))
            a("v_mfma_f32_16x16x32_bf16 v[%d:%d], v[%d:%d], v[%d:%d], %s" % (X + 4, X + 7, E, E + 3, r + 4, r + 7, "0" if j == 0 else "v[%d:%d]" % (X + 4, X + 7)))
            if ph == 0 and j == ng - 1:
                for c in range(2):
                    a("ds_write_b128 v%d, v[%d:%d] offset:%d" % (T[0], X + c * 4, X + c * 4 + 3, L_ACCB + c * 512))
                a("s_mov_b64 exec, 1")
                a("ds_add_u32 v%d, v%d offset:%d" % (T[1], T[2], L_CNT + C_VDB))
                a("s_mov_b64 exec, -1")
            done(n, pre)
        a = real

    phase(0, 0, 8)
    phase(1, 16, NS)

    def acquire(lab):
        a("s_mov_b64 exec, 1")
        a("v_lshrrev_b32 v%d, 3, v%d\nv_lshlrev_b32 v%d, 2, v%d" % (T[1], VP, T[1], T[1]))
        a("s_cmp_eq_u32 s80, 0\ns_cbranch_scc1 L_rd%s" % lab)
        a("L_tk%s:" % lab)
        a("v_readfirstlane_b32 s69, v%d\nv_add_u32 v%d, 1, v%d\nv_mov_b32 v%d, s80" % (TK[0] + 1, TK[0], TK[0], T[2]))
        a("s_cmp_lg_u32 s69, s74\ns_cbranch_scc1 L_tr%s" % lab)
        a("L_tg%s:" % lab)
        a("ds_write_b32 v%d, v%d" % (T[2], TK[0]))
        a("L_rd%s:" % lab)
        a("ds_read_b32 v%d, v%d offset:%d" % (T[2], T[1], L_LIST))
        a("v_readfirstlane_b32 s77, v%d\nv_readfirstlane_b32 s80, v%d" % (VP, T[1]))
        a("s_waitcnt lgkmcnt(0)\nv_readfirstlane_b32 s68, v%d" % T[2])
        a("s_and_b32 s77, s77, 7\ns_add_u32 s80, s80, %d" % (L_LIST + 4))
        a("s_sub_u32 s68, s68, 1\ns_cbranch_scc1 L_sp%s" % lab)
        a("L_sg%s:" % lab)
        if WOL is not None: a("ds_max_u32 v%d, v%d offset:%d" % (AD + 1, T[2], L_CNT + C_LS))
        a("s_min_u32 s76, s68, %d\ns_lshr_b32 s69, s76, 1\ns_lshl3_add_u32 s69, s69, s77\ns_and_b32 s76, s76, 1\ns_lshl1_add_u32 s76, s69, s76\ns_lshl_b32 s76, s76, 11" % NT_)
        a("s_cmp_ge_u32 s68, %d\ns_cselect_b32 s69, 9, s77\ns_cmp_eq_u32 s69, %d\ns_cselect_b32 s80, s80, 0" % (NT_, TH))
        request()
        a("v_add_u32 v%d, s76, v%d" % (TV, OFF))
    retries = []
    def tload(b, kv, tv=TV, which=(0, 1)):
        r = TB[b] + 8 * kv; srd = 60 + 4 * kv
        if 0 in which: a("buffer_load_dwordx4 v[%d:%d], v%d, s[%d:%d], 0 offen%s" % (r, r + 3, tv, srd, srd + 3, NT))
        if 1 in which: a("buffer_load_dwordx4 v[%d:%d], v%d, s[%d:%d], 0 offen offset:256%s" % (r + 4, r + 7, tv, srd, srd + 3, NT))

    consumed = 0; budget = 0; dyn_stage = 0
    for (need, pre, lines) in chunks:
        def can_issue(): return st["issued"] < NL and prev_in_slot((st["issued"] + G - 1) // 2) < consumed
        for l in pre: a(l)
        while can_issue() and ((need is not None and 2 * need + 2 > st["landed"] and st["issued"] + G - Wn(st["issued"]) <= 2 * need + 2) or (budget > 0 and budget + len(lines) > BUD) or st["issued"] - 32 < RAMP):
            issue_event(); budget = 0
        if need == NP - 2 and NT_: claim(C_PC)
        if need == NP - 1 and NT_ and DW == 3:
            wait_landed(2 * need + 1); tload(0, 0, which=(1,)); extra["n"] += 1
        if need is not None: wait_landed(2 * need + 2)
        if need == NP - 2 and dbgt == 2: a("s_memrealtime s[70:71]")
        if need == NP - 2 and NT_:
            assert st["issued"] == NL and st["landed"] > st["at"]
            a("s_waitcnt lgkmcnt(0)")
            acquire("p"); retries.append("p")
            if DW == 3:
                tload(0, 0, which=(0,)); extra["n"] += 2
            else:
                tload(0, 0); extra["n"] += 3
        if need == NP - 1 and NT_:
            tload(0, 1, which=((0,) if DW == 3 else (0, 1)))
        for l in lines:
            if "comp" in dis and l.startswith(("v_dot", "v_add_f32", "v_mfma", "v_exp", "v_fma", "v_cvt", "v_max", "v_perm")): continue
            a(l)
        budget += len(lines) + len(pre)
        if need is not None: consumed = need + 1
    assert st["issued"] == NL
    if dbgt == 2: a("s_mov_b32 s72, 0")
    if NT_:
        a("s_cmp_ge_u32 s68, %d\ns_cbranch_scc1 L_dend" % NT_)
        if DW == 3:
            a("s_waitcnt vmcnt(2)"); tload(0, 1, which=(1,))
        a.flush()
        a("L_dloop:")
    for b in range(2 if NT_ else 0):
        r = TB[b]; lab = "d%d" % b
        if dbgt == 2: a("s_add_u32 s72, s72, 1")
        claim(C_PC)
        a("s_waitcnt vmcnt(2) lgkmcnt(0)")
        acquire(lab); retries.append(lab)
        tload(1 - b, 0, which=((0,) if DW == 3 else (0, 1)))
        if FIN:
            a("s_cmp_ge_u32 s68, %d\ns_cselect_b32 s77, s76, %d\nv_add_u32 v%d, s77, v%d" % (max(NT_ - FIN, 0), NT_ // 2 * 32768, 167, OFF))
            tload(1 - b, 1, 167)
        for k in range(8):
            a("v_dot2_f32_bf16 v%d, v%d, v%d, %s" % (SD, r + k, QA + k, "0" if k == 0 else "v%d" % SD))
        for ctl in ("row_ror:8", "quad_perm:[1,0,3,2]", "quad_perm:[2,3,0,1]", "row_half_mirror"):
            a(dpp("v_add_f32", SD, SD, SD, ctl))
        if round_s: a("v_cvt_pk_bf16_f32 v%d, v%d, v%d\nv_and_b32 v%d, 0xffff0000, v%d" % (SD, SD, SD, SD, SD))
        a("v_fma_f32 v%d, v%d, s82, -v%d" % (T[0], SD, MC))
        a("v_cmp_lt_f32 vcc, 0, v%d\ns_cbranch_vccnz L_rs%d" % (T[0], b))
        a("L_rb%d:" % b)
        a("v_exp_f32 v%d, v%d\nv_cvt_pk_bf16_f32 v%d, v%d, v%d" % (T[0], T[0], T[0], T[0], T[0]))
        for k in range(4): a("v_and_b32 v%d, v%d, v%d" % (E + k, T[0], M + k))
        a("v_mfma_f32_16x16x32_bf16 v[%d:%d], v[%d:%d], v[%d:%d], v[%d:%d]" % (ACL, ACL + 3, E, E + 3, ONES, ONES + 3, ACL, ACL + 3))
        if DW == 3:
            a("s_waitcnt vmcnt(3)"); tload(1 - b, 0, which=(1,))
        a("s_waitcnt vmcnt(%d)" % (5 if FIN else 3))
        if DW == 3: tload(1 - b, 1, which=(0,))
        a("v_mfma_f32_16x16x32_bf16 v[%d:%d], v[%d:%d], v[%d:%d], v[%d:%d]" % (X, X + 3, E, E + 3, r + 8, r + 11, X, X + 3))
        a("v_mfma_f32_16x16x32_bf16 v[%d:%d], v[%d:%d], v[%d:%d], v[%d:%d]" % (X + 4, X + 7, E, E + 3, r + 12, r + 15, X + 4, X + 7))
        a("s_cmp_ge_u32 s68, %d\ns_cbranch_scc1 L_dend" % NT_)
        if FIN: a("s_cmp_ge_u32 s68, %d\ns_cbranch_scc1 %s" % (max(NT_ - FIN, 0), "L_dl1" if b == 0 else "L_dloop"))
        if DW == 3:
            a("s_waitcnt vmcnt(2)"); tload(1 - b, 1, which=(1,))
        else: tload(1 - b, 1)
        if FIN and b == 0: a("L_dl1:")
    if NT_:
        a("s_branch L_dloop")
        a("L_dend:")
        a("s_nop 2")
    a("s_lshl_b32 s76, s3, 3\nv_mov_b32 v%d, s76\nv_mov_b32 v%d, v%d" % (T[0], LS, ACL))
    a("s_mov_b32 s53, 0x03020105\ns_mov_b32 s54, 0x03020106\ns_mov_b32 s55, 0x03020107")
    if CK: a("s_mov_b32 s56, 0xaaaaaaaa\ns_mov_b32 s57, 0xaaaaaaaa")
    a("s_mov_b32 exec_hi, 0")
    for c in range(2):
        a("ds_write_b128 v%d, v[%d:%d] offset:%d" % (WA, X + c * 4, X + c * 4 + 3, L_ACCA + c * 512))
    a("s_mov_b64 exec, 1")
    a("ds_write_b64 v%d, v[%d:%d] offset:%d" % (T[0], MC, LS, L_MW + 64))
    a("ds_add_rtn_u32 v%d, v%d, v%d offset:%d" % (T[3], AD + 1, AD, L_CNT + C_VDA))
    a("s_mov_b64 exec, -1")
    G0 = RING; ML = RING + 32
    a("L_mrg:")
    for k in range(4):
        a("ds_read_b128 v[%d:%d], v%d offset:%d" % (ML + 4 * k, ML + 4 * k + 3, AD + 1, L_MW + 64 + 16 * k))
    if not CK: a("ds_read_b32 v%d, v%d offset:%d" % (T[2], AD + 1, L_CNT + C_CLR))
    for w in range(8):
        a("ds_read_b128 v[%d:%d], v%d offset:%d" % (G0 + 4 * w, G0 + 4 * w + 3, RA, L_ACCA + w * 1024))
    a("s_waitcnt lgkmcnt(8)")
    mw = [ML + 2 * w for w in range(8)]
    a("v_max3_f32 v%d, v%d, v%d, v%d\nv_max3_f32 v%d, v%d, v%d, v%d" % (MC, mw[0], mw[1], mw[2], T[0], mw[3], mw[4], mw[5]))
    a("v_readfirstlane_b32 s79, v%d" % T[3])
    if not CK: a("v_readfirstlane_b32 s78, v%d" % T[2])
    a("v_max3_f32 v%d, v%d, v%d, v%d\nv_max_f32 v%d, v%d, v%d" % (MC, MC, mw[6], mw[7], MC, MC, T[0]))
    a("s_cmp_lg_u32 s79, 7\ns_cbranch_scc1 %s" % ("L_sst" if dbgt >= 2 else "L_end"))
    for w in range(8): a("v_sub_f32 v%d, v%d, v%d" % (mw[w], mw[w], MC))
    for w in range(8): a("v_exp_f32 v%d, v%d" % (mw[w], mw[w]))
    if not CK: a("s_cmp_lg_u32 s78, 2\ns_cbranch_scc1 L_mwait")
    a("v_mul_f32 v%d, v%d, v%d\nv_mul_f32 v%d, v%d, v%d" % (LS, mw[0], mw[0] + 1, T[0], mw[1], mw[1] + 1))
    for w in (2, 4, 6):
        a("v_fmac_f32 v%d, v%d, v%d\nv_fmac_f32 v%d, v%d, v%d" % (LS, mw[w], mw[w] + 1, T[0], mw[w + 1], mw[w + 1] + 1))
    a("v_add_f32 v%d, v%d, v%d" % (LS, LS, T[0]))
    a("v_rcp_f32 v%d, v%d\nv_log_f32 v%d, v%d" % (T[0], LS, LS, LS))
    if CK: a("v_add_f32 v%d, v%d, v%d\nv_xor_b32 v%d, s74, v%d" % (LS, MC, LS, MC, LS))
    a("s_waitcnt lgkmcnt(0)")
    for k in (0, 2):
        a("v_pk_mul_f32 v[%d:%d], v[%d:%d], v[%d:%d] op_sel_hi:[1,0]" % (G0 + k, G0 + k + 1, G0 + k, G0 + k + 1, mw[0], mw[0] + 1))
        a("v_pk_mul_f32 v[%d:%d], v[%d:%d], v[%d:%d] op_sel_hi:[1,0]" % (G0 + 16 + k, G0 + 17 + k, G0 + 16 + k, G0 + 17 + k, mw[4], mw[4] + 1))
    for w in (1, 2, 3):
        for base in (0, 4):
            for k in (0, 2):
                d = G0 + 4 * base + k; s0 = G0 + 4 * (base + w) + k
                a("v_pk_fma_f32 v[%d:%d], v[%d:%d], v[%d:%d], v[%d:%d] op_sel_hi:[1,0,1]" % (d, d + 1, s0, s0 + 1, mw[base + w], mw[base + w] + 1, d, d + 1))
    for k in (2, 0):
        a("v_pk_add_f32 v[%d:%d], v[%d:%d], v[%d:%d]" % (G0 + k, G0 + k + 1, G0 + k, G0 + k + 1, G0 + 16 + k, G0 + 17 + k))
    for k in (2, 0):
        a("v_pk_mul_f32 v[%d:%d], v[%d:%d], v[%d:%d] op_sel_hi:[1,0]" % (G0 + k, G0 + k + 1, G0 + k, G0 + k + 1, T[0], T[0] + 1))
    for k in (2, 0, 1):
        a("v_perm_b32 v%d, v%d, v%d, s%d" % (G0 + k, G0 + 3, G0 + k, 53 + k))
    if CK:
        a("v_bitop3_b32 v%d, v%d, v%d, v%d %s" % (T[2], G0, G0 + 1, G0 + 2, X3))
        a("v_xor_b32 v%d, v%d, v%d" % (MC, MC, T[2]))
        a(dpp("v_xor_b32", MC, T[2], MC, "quad_perm:[1,0,3,2]"))
        a("v_cndmask_b32 v%d, v%d, v%d, s[56:57]" % (G0 + 3, LS, MC))
    else:
        a("v_add_f32 v%d, v%d, v%d" % (G0 + 3, MC, LS))
    a("buffer_store_dwordx4 v[%d:%d], v%d, s[48:51], s75 offen sc1" % (G0, G0 + 3, RA))
    if dbgt >= 2:
        a("L_sst:")
        a("s_mov_b64 exec, -1\ns_memrealtime s[100:101]\ns_waitcnt lgkmcnt(0)\nv_mov_b32 v100, 0\nv_mov_b32 v101, 0")
        for i, r in enumerate([90, 84, 86, 88, 94, 96, 98, 70, 83, 100, 72]):
            a("v_writelane_b32 v100, s%d, %d" % (r, i))
        a("s_lshl3_add_u32 s76, s2, s3\ns_add_u32 s76, s76, 256\ns_lshl_b32 s76, s76, 7\ns_add_u32 s76, s76, %d\ns_add_u32 s52, s76, s30\ns_addc_u32 s53, s31, 0\ns_mov_b32 s54, 128\ns_mov_b32 s55, 0x20000" % STAMP_OFF)
        a("v_lshlrev_b32 v102, 3, v0\nbuffer_store_dwordx2 v[100:101], v102, s[52:55], 0 offen")
    a("s_endpgm")
    a.flush()
    if not CK:
        a("L_mwait:")
        a("s_waitcnt lgkmcnt(0)\ns_sleep 4\ns_sub_u32 s83, s83, 1\ns_cbranch_scc0 L_mrg\ns_endpgm")
    for b in range(2 if NT_ else 0):
        a.flush()
        a("L_rs%d:" % b)
        a("v_max_f32 v%d, 0, v%d" % (T[1], T[0]))
        allrows("v_max_f32", T[1], T[2])
        a("v_add_f32 v%d, v%d, v%d\nv_sub_f32 v%d, v%d, v%d" % (MC, MC, T[1], T[0], T[0], T[1]))
        a("v_sub_f32 v%d, 0, v%d\nv_exp_f32 v%d, v%d" % (T[1], T[1], T[1], T[1]))
        for k in range(8): a("v_mul_f32 v%d, v%d, v%d" % (X + k, X + k, T[1]))
        a("v_mul_f32 v%d, v%d, v%d" % (ACL, ACL, T[1]))
        a("s_branch L_rb%d" % b)
    for lab in retries:
        a.flush()
        a("L_tr%s:" % lab)
        a("v_mov_b32 v%d, -1\ns_sub_u32 s83, s83, 1\ns_cbranch_scc1 L_tg%s" % (TK[0], lab))
        a("s_sleep 8")
        a("global_atomic_add_x2 v[%d:%d], v%d, v[%d:%d], s[30:31] sc0 sc1" % (TK[0], TK[0] + 1, AV, AD, AD + 1))
        a("s_waitcnt vmcnt(0)\ns_branch L_tk%s" % lab)
        a("L_sp%s:" % lab)
        a("s_sub_u32 s83, s83, 1\ns_cbranch_scc1 L_sg%s" % lab)
        a("s_sleep %d\ns_branch L_rd%s" % (SPS, lab))

    a.flush()
    a("L_helper:")
    a("s_setprio %d" % HP)
    W = 104
    W2 = 64
    XV = 16; AC = 20
    a("v_mov_b32 v4, 0\nv_mov_b32 v5, 0\nv_mov_b32 v6, 0\nv_mov_b32 v7, 0")
    a("v_lshlrev_b32 v1, 4, v0")
    a("v_and_b32 v3, 48, v1\nds_write_b128 v3, v[4:7] offset:%d" % L_CNT)
    a("v_lshlrev_b32 v10, 3, v0\nds_write_b64 v10, v[4:5] offset:%d" % L_LIST)
    if wqm:
        XV = 16; AC = 24; PT = 32
        a("v_lshrrev_b32 v8, 3, v0\nv_mul_u32_u24 v8, 14, v8\ns_mul_i32 s76, s3, 112\nv_add_u32 v8, s76, v8")
        a("v_lshlrev_b32 v9, 1, v8\nv_and_b32 v11, 0x70, v1\nv_lshl_or_b32 v8, v8, 13, v11")
        a("s_lshr_b32 s76, s2, 4\ns_lshl_b32 s76, s76, 9")
        a("s_and_b32 s77, s2, 3\ns_lshl_b32 s77, s77, 7\ns_add_u32 s76, s76, s77")
        for i in range(1, 14): a("s_mov_b32 s%d, %d" % (52 + i, i * 8192))
        a("s_sub_u32 s34, 3670016, s76\ns_bitcmp1_b32 s2, 3\ns_cselect_b32 s34, 0, s34\ns_mov_b32 s35, 0x20000\ns_mov_b32 s38, 896\ns_mov_b32 s39, 0x20000")
    else:
        a("v_lshrrev_b32 v8, 2, v0\ns_lshl_b32 s76, s3, 4\nv_add_u32 v8, s76, v8")
        a("v_lshlrev_b32 v9, 4, v8")
        a("v_lshl_or_b32 v8, v8, 16, v3")
        a("s_lshr_b32 s76, s2, 4\ns_lshl_b32 s76, s76, 9")
        a("s_and_b32 s77, s2, 3\ns_lshl_b32 s77, s77, 7\ns_add_u32 s76, s76, s77")
        a("s_bfe_u32 s77, s2, 0x10003\ns_lshl_b32 s77, s77, 6\ns_add_u32 s76, s76, s77")
        for i in range(1, 8): a("s_mov_b32 s%d, %d" % (52 + i, i * 8192))
        a("s_sub_u32 s34, 3670016, s76\ns_mov_b32 s35, 0x20000\ns_mov_b32 s38, 896\ns_mov_b32 s39, 0x20000")
    a("s_mov_b32 s50, 0x%x\ns_mov_b32 s51, 0x20000" % WS_END)
    if wqx:
        a("v_lshrrev_b32 v8, 4, v0\ns_mul_i32 s77, s3, 28\nv_add_u32 v8, s77, v8\nv_and_b32 v11, 15, v0\nv_lshlrev_b32 v11, 4, v11\nv_lshl_or_b32 v8, v8, 13, v11")
        a("s_lshr_b32 s76, s2, 5\ns_lshl_b32 s76, s76, 10\ns_and_b32 s77, s2, 3\ns_lshl_b32 s77, s77, 8\ns_add_u32 s76, s76, s77")
        a("s_bfe_u32 s77, s2, 0x20003\ns_mul_i32 s77, s77, %d\ns_add_u32 s92, s76, s77" % (112 * 8192))
        for i in range(1, 7): a("s_mov_b32 s%d, %d" % (52 + i, i * 32768))
        a("s_mov_b32 s59, 0\ns_sub_u32 s34, 3670016, s92")
        a("s_lshr_b32 s76, s2, 4\ns_lshl_b32 s76, s76, 9")
        a("s_and_b32 s77, s2, 3\ns_lshl_b32 s77, s77, 7\ns_add_u32 s76, s76, s77")
        a("s_bfe_u32 s77, s2, 0x10003\ns_lshl_b32 s77, s77, 6\ns_add_u32 s76, s76, s77")
    a("s_bitcmp1_b32 s2, 2")
    a("s_waitcnt lgkmcnt(0)")
    if not LB or "helper" in dis: a("s_barrier")
    if "helper" in dis:
        a("v_mov_b32 v6, 0\nv_mov_b32 v7, 2\nds_write_b32 v6, v7 offset:%d\nds_write_b32 v6, v7 offset:%d" % (L_CNT + C_QRDY, L_CNT + C_CLR))
        a("s_lshl_b32 s84, s2, 7\ns_add_u32 s84, s84, %d\ns_add_u32 s84, s84, s30\ns_addc_u32 s85, s31, 0\ns_mov_b32 s86, 128\ns_mov_b32 s87, 0x20000" % STAMP_OFF)
        a("v_mov_b32 v16, s90\nv_mov_b32 v17, 0\nbuffer_store_dwordx2 v[16:17], v6, s[84:87], 0 offen\ns_endpgm")
    a("s_cselect_b32 s32, s20, s10\ns_cselect_b32 s33, s21, s11\ns_cselect_b32 s77, 0x2000, 0")
    a("s_add_u32 s32, s32, s%d\ns_addc_u32 s33, s33, 0\ns_mov_b32 s36, s4\ns_mov_b32 s37, s5" % (92 if wqx else 76))
    a("buffer_load_dwordx4 v[%d:%d], v9, s[36:39], 0 offen" % (XV, XV + 3))
    def wql(i): a("buffer_load_dwordx4 v[%d:%d], v8, s[32:35], %s offen%s" % (W + 4 * i, W + 4 * i + 3, "0" if i == 0 else "s%d" % (52 + i), NTW))
    if wqm: a("buffer_load_dwordx3 v[%d:%d], v9, s[36:39], 0 offen offset:16" % (XV + 4, XV + 6))
    for i in range(14 if wqm else WQW):
        if wqx == 2 or (wqx and i == 7): continue
        wql(i)
    a("s_load_dword s70, s[30:31], 0x%x" % WS_EPOCH)
    if LB: a("s_barrier")
    a("s_add_u32 s75, s76, s77\ns_lshl_b32 s75, s75, 1")
    a("s_mov_b32 s48, s30\ns_mov_b32 s49, s31")
    a("s_lshl_b32 s74, s2, 12")
    a("s_mov_b32 s76, 0x05040100\ns_mov_b32 s77, 0x07060302")
    if wqm:
        a("v_lshrrev_b32 v4, 4, v0\nv_lshlrev_b32 v4, 3, v4\nv_lshl_or_b32 v4, v11, 1, v4\ns_lshl_b32 s78, s3, 8\nv_add_u32 v4, s78, v4")
        a("v_and_b32 v5, 31, v0\nv_lshlrev_b32 v5, 3, v5\nv_add_u32 v5, %d, v5" % L_QP)
    else:
        a("v_lshrrev_b32 v4, 4, v0\ns_lshl_b32 s78, s3, 2\nv_add_u32 v4, s78, v4\nv_lshlrev_b32 v4, 7, v4\nv_lshl_or_b32 v4, v3, 1, v4")
        a("v_and_b32 v5, 31, v0\nv_lshlrev_b32 v5, 2, v5\nv_lshrrev_b32 v6, 5, v0\nv_lshl_or_b32 v5, v6, 10, v5")
        a("v_add_u32 v5, %d, v5" % L_QP)
    a("v_mov_b32 v6, 0\nv_mov_b32 v7, 1\nv_lshlrev_b32 v2, 2, v0")
    if dbgt: a("v_mov_b32 v63, 0\nv_writelane_b32 v63, s90, 0")
    a("s_lshr_b32 s72, s%d, 5\ns_lshl_b32 s72, s72, 11\ns_add_u32 s72, s72, 0x4000" % (2 if wqx else 92))
    a("s_lshr_b32 s73, s93, 4\ns_lshl_b32 s73, s73, 10")
    a("v_lshlrev_b32 v10, 3, v0")
    for i in range(WQW, 8):
        a("s_waitcnt vmcnt(%d)" % (WQW - 1)); wql(i)
    a("s_setprio 3")
    if wqm:
        for k in range(7):
            a("s_waitcnt vmcnt(%d)" % (12 - 2 * k))
            w0 = W + 8 * k; w1 = w0 + 4
            for d in range(4):
                a("v_perm_b32 v%d, v%d, v%d, s76" % (PT + 2 * d, w1 + d, w0 + d))
                a("v_perm_b32 v%d, v%d, v%d, s77" % (PT + 1 + 2 * d, w1 + d, w0 + d))
            for e in range(8):
                a("v_dot2_f32_bf16 v%d, v%d, v%d, %s" % (AC + e, PT + e, XV + k, "0" if k == 0 else "v%d" % (AC + e)))
        stamp(1)
        for j in range(4): a("v_permlane32_swap_b32 v%d, v%d" % (AC + j, AC + j + 4))
        for j in range(4): a("v_add_f32 v%d, v%d, v%d" % (AC + j, AC + j, AC + j + 4))
        for j in range(2): a("v_permlane16_swap_b32 v%d, v%d" % (AC + j, AC + j + 2))
        for j in range(2): a("v_add_f32 v%d, v%d, v%d" % (AC + j, AC + j, AC + j + 2))
        for j in range(2): a(dpp("v_add_f32", AC + j, AC + j, AC + j, "row_ror:8"))
        a("ds_write_b64 v4, v[%d:%d] offset:%d" % (AC, AC + 1, L_QP))
        a("s_mov_b64 exec, 1")
        a("ds_add_rtn_u32 v9, v6, v7 offset:%d" % (L_CNT + C_QARR))
        a("s_mov_b64 exec, -1")
        a("ds_read2_b64 v[28:31], v5 offset0:0 offset1:32\nds_read2_b64 v[32:35], v5 offset0:64 offset1:96")
        a("s_waitcnt lgkmcnt(0)\nv_readfirstlane_b32 s71, v9")
        a("s_mul_i32 s70, s70, 0x9e3779b1\ns_add_u32 s70, s70, 0x7f4a7c15")
        a("s_cmp_lg_u32 s71, 3\ns_cbranch_scc1 L_h_wq")
        a("v_pk_add_f32 v[28:29], v[28:29], v[30:31]\nv_pk_add_f32 v[32:33], v[32:33], v[34:35]\nv_pk_add_f32 v[28:29], v[28:29], v[32:33]")
        a("v_cvt_pk_bf16_f32 v28, v28, v29\nv_mov_b32 v29, s70")
        a("s_bitcmp1_b32 s2, 3\ns_cselect_b32 exec_lo, 0, -1\ns_mov_b32 exec_hi, 0")
        a("buffer_store_dwordx2 v[28:29], v10, s[48:51], s75 offen sc1")
    else:
        a("s_waitcnt vmcnt(0) lgkmcnt(0)")
        stamp(1)
    if not wqm:
        for k in range(4):
            w0 = W + 8 * k; w1 = w0 + 4
            for d in range(4):
                a("v_perm_b32 v%d, v%d, v%d, s76" % (28 + 2 * d, w1 + d, w0 + d))
                a("v_perm_b32 v%d, v%d, v%d, s77" % (29 + 2 * d, w1 + d, w0 + d))
            for e in range(8):
                a("v_dot2_f32_bf16 v%d, v%d, v%d, %s" % (AC + e, 28 + e, XV + k, "0" if k == 0 else "v%d" % (AC + e)))
        for e in range(8): a(dpp("v_add_f32", AC + e, AC + e, AC + e, "row_ror:4"))
        for e in range(8): a(dpp("v_add_f32", AC + e, AC + e, AC + e, "row_ror:8"))
        a("s_mov_b32 exec_lo, 0x000f000f\ns_mov_b32 exec_hi, 0x000f000f")
        a("ds_write_b128 v4, v[%d:%d] offset:%d" % (AC, AC + 3, L_QP))
        a("ds_write_b128 v4, v[%d:%d] offset:%d" % (AC + 4, AC + 7, L_QP + 16))
        a("s_mov_b64 exec, 1")
        a("ds_add_rtn_u32 v9, v6, v7 offset:%d" % (L_CNT + C_QARR))
        a("s_mov_b64 exec, -1")
        for i in range(4):
            a("ds_read2_b32 v[%d:%d], v5 offset0:%d offset1:%d" % (28 + 2 * i, 29 + 2 * i, 64 * i, 64 * i + 32))
        a("s_waitcnt lgkmcnt(0)\nv_readfirstlane_b32 s71, v9")
        a("s_mul_i32 s70, s70, 0x9e3779b1\ns_add_u32 s70, s70, 0x7f4a7c15")
        a("s_cmp_lg_u32 s71, 3\ns_cbranch_scc1 L_h_wq")
        a("v_add_f32 v28, v28, v29\nv_add_f32 v30, v30, v31\nv_add_f32 v32, v32, v33\nv_add_f32 v34, v34, v35")
        a("v_add_f32 v28, v28, v30\nv_add_f32 v32, v32, v34\nv_add_f32 v28, v28, v32")
        a("v_mov_b32 v29, v28\nv_permlane32_swap_b32 v29, v28\nv_add_f32 v28, v28, v29")
        a("v_mov_b32_dpp v29, v28 quad_perm:[1,0,3,2] row_mask:0xf bank_mask:0xf")
        a("v_cvt_pk_bf16_f32 v28, v28, v29\nv_mov_b32 v29, s70")
        a("s_mov_b32 exec_lo, 0x55555555\ns_mov_b32 exec_hi, 0")
        a("buffer_store_dwordx2 v[28:29], v2, s[48:51], s75 offen sc1")
    a("s_mov_b64 exec, 0xffff")
    a("v_mov_b32 v30, 0\nv_mov_b32 v31, s70\nds_write_b32 v6, v31 offset:%d" % (L_CNT + C_TAG))
    a("s_cmp_ge_u32 s2, 16\ns_cbranch_scc1 L_h_noci")
    a("s_mul_i32 s76, s2, %d\ns_add_u32 s76, s76, %d" % (CSTR, WS_CNT))
    a("buffer_store_dwordx2 v[30:31], v10, s[48:51], s76 offen sc1")
    a("L_h_noci:")
    a("s_mov_b64 exec, -1")
    stamp(2)
    ldswait("prg", 6, 4, L_CNT + C_PRG, "ge", 4, slp=2)
    a("s_mov_b32 s83, %d" % spin)
    a("L_h_fw:")
    a("buffer_load_dwordx4 v[16:19], v1, s[48:51], s72 offen sc1")
    a("buffer_load_dwordx4 v[20:23], v1, s[48:51], s72 offen offset:1024 sc1")
    a("buffer_load_dwordx4 v[24:27], v1, s[48:51], s73 offen sc1")
    a("s_waitcnt vmcnt(0)")
    a("v_xor_b32 v4, s70, v17\nv_xor_b32 v5, s70, v19\nv_xor_b32 v8, s70, v21\nv_xor_b32 v9, s70, v23\nv_xor_b32 v11, s70, v25\nv_xor_b32 v12, s70, v27")
    a("v_or3_b32 v4, v4, v5, v8\nv_or3_b32 v9, v9, v11, v12\nv_or_b32 v4, v4, v9\nv_cmp_ne_u32 vcc, 0, v4")
    a("s_sub_u32 s83, s83, 1\ns_cbranch_scc1 L_h_fg")
    a("s_cbranch_vccnz L_h_fw")
    a("L_h_fg:")
    a("ds_write2_b32 v10, v16, v18 offset0:0 offset1:1")
    a("ds_write2_b32 v10, v20, v22 offset0:128 offset1:129")
    a("v_add_u32 v10, 1024, v10")
    a("ds_write2_b32 v10, v24, v26 offset0:0 offset1:1")
    a("s_mov_b64 exec, 1")
    a("ds_write_b32 v6, v7 offset:%d" % (L_CNT + C_QRDY))
    a("s_mov_b64 exec, -1")
    stamp(3)
    a("L_h_wq:")
    ldswait("bq", 6, 4, L_CNT + C_QRDY, "lg", 0, slp=4)
    WB = 104; WA_ = 120; WC = 136
    G_ = 60; GA = 61; OV = 62; YV = 64; PV = 68; MLV = 69; PVA = 70; MLA = 71; EE = 32; ACC = 72
    a("v_lshrrev_b32 v12, 4, v0\nv_mul_u32_u24 v12, 896, v12\nv_and_b32 v13, 15, v0\nv_lshl_add_u32 v12, v13, 4, v12")
    a("s_and_b32 s78, s2, 3\ns_cmp_eq_u32 s78, 3\ns_cselect_b32 s77, 8, 0\nv_and_b32 v13, s77, v0\nv_lshl_or_b32 v12, v13, 24, v12")
    for rg in range(1, 4): a("v_add_u32 v%d, %d, v12" % (12 + rg, rg * 3584))
    a("s_lshr_b32 s76, s2, 2\ns_lshl2_add_u32 s69, s76, s71\ns_mul_i32 s76, s69, 14336\ns_lshl_b32 s78, s78, 8\ns_add_u32 s76, s76, s78")
    a("s_sub_u32 s34, 14336, s78\ns_mov_b32 s46, s34\ns_mov_b32 s47, 0x20000")
    a("s_add_u32 s32, s22, s76\ns_addc_u32 s33, s23, 0\ns_add_u32 s44, s12, s76\ns_addc_u32 s45, s13, 0")
    if "wo" not in dis:
        if WBL is None:
            for rg in range(4): a("buffer_load_dwordx4 v[%d:%d], v%d, s[32:35], 0 offen%s" % (WC + 4 * rg, WC + 4 * rg + 3, 12 + rg, NTW))
        if WOL is None:
            for rg in range(4): a("buffer_load_dwordx4 v[%d:%d], v%d, s[44:47], 0 offen%s" % (WA_ + 4 * rg, WA_ + 4 * rg + 3, 12 + rg, NTW))
    masks(8, 4, 5)
    for r in range(4): a("v_mov_b32 v%d, 0" % (ACC + r))
    a("v_lshrrev_b32 v4, 2, v0\nv_mul_u32_u24 v%d, %d, v4\nv_add_u32 v%d, v%d, v3" % (PVA, PAS, PVA, PVA))
    a("s_mov_b32 s63, 0x0c04000c")
    a("v_mul_u32_u24 v%d, %d, v0" % (YV, 4 * YS))
    a("v_and_b32 v4, 15, v0\nv_lshrrev_b32 v5, 4, v0\nv_lshlrev_b32 v5, 1, v5\nv_lshl_or_b32 v%d, v4, 20, v5" % OV)
    a("s_lshl_b32 s76, s71, 9\nv_add_u32 v%d, s76, v1" % (YV + 1))
    a("s_and_b32 s76, s2, 0xf0\ns_mul_i32 s76, s76, %d\ns_add_u32 s76, s76, %d" % (PAS, WS_PA))
    a("s_and_b32 s77, s69, 15\ns_lshl_b32 s77, s77, 6\ns_add_u32 s62, s76, s77")
    a("s_mul_i32 s68, s2, %d\ns_add_u32 s68, s68, %d" % (YS, WS_Y))
    a("s_add_u32 s56, s30, s68\ns_addc_u32 s57, s31, 0\ns_mov_b32 s58, 0\ns_mov_b32 s59, 0x20000")
    a("s_and_b32 s78, s2, 3\ns_cmp_eq_u32 s78, 3\ns_cselect_b32 s72, 0x00ff00ff, -1")
    a("s_lshr_b32 s73, s2, 1\ns_add_u32 s77, s73, 8\ns_cmp_ge_u32 s73, 104\ns_cselect_b32 s76, s77, s73")
    a("s_lshr_b32 s77, s76, 5\ns_mul_i32 s60, s77, %d\ns_and_b32 s78, s76, 31\ns_lshl4_add_u32 s60, s78, s60\ns_add_u32 s60, s60, %d" % (YS, WS_Y))
    a("s_lshl_b32 s77, s77, 8\ns_and_b32 s78, s76, 15\ns_lshl4_add_u32 s77, s78, s77\ns_bfe_u32 s78, s76, 0x10004\ns_lshl3_add_u32 s77, s78, s77")
    a("s_add_u32 s64, s26, s77\ns_addc_u32 s65, s27, 0\ns_mov_b32 s66, 0\ns_mov_b32 s67, 0x20000")
    a("s_and_b32 s76, s2, 1\ns_lshl_b32 s76, s76, 8\ns_or_b32 s73, s73, s76")
    a("s_mov_b32 s80, 0x03020105\ns_mov_b32 s81, 0x03020106\ns_mov_b32 s82, 0x03020107")
    if CK:
        if "bchain" in dis: a("s_branch L_t_a")
        a("s_cmp_lg_u32 s71, 2\ns_cbranch_scc1 L_b_rd")
    else:
        a("s_mov_b32 s40, s28\ns_mov_b32 s41, s29\ns_mov_b32 s42, 256\ns_mov_b32 s43, 0x20000")
        if "clear" in dis: a("v_mov_b32 v4, 2\nds_write_b32 v6, v4 offset:%d" % (L_CNT + C_CLR))
        if "bchain" in dis and "clear" in dis: a("s_branch L_t_a")
        if "clear" not in dis: a("s_cmp_lt_u32 s71, 2\ns_cbranch_scc1 L_h_clr")
        if "clear" in dis: a("s_cmp_lt_u32 s71, 2\ns_cbranch_scc1 L_b_rd")
        if "bchain" in dis: a("s_branch L_t_a")
        a("s_cmp_eq_u32 s71, 3\ns_cbranch_scc1 L_b_rd")
    a("s_mov_b32 s52, s24\ns_mov_b32 s53, s25\ns_mov_b32 s54, 896\ns_mov_b32 s55, 0x20000")
    a("buffer_load_dwordx4 v[16:19], v1, s[36:39], 0 offen")
    a("buffer_load_dwordx4 v[20:23], v1, s[52:55], 0 offen")
    a("s_waitcnt vmcnt(0)")
    for d in range(4):
        a("v_lshlrev_b32 v24, 16, v%d\nv_and_b32 v25, 0xffff0000, v%d\nv_lshlrev_b32 v26, 16, v%d\nv_and_b32 v27, 0xffff0000, v%d" % (16 + d, 16 + d, 20 + d, 20 + d))
        a("v_mul_f32 v24, v24, v26\nv_mul_f32 v25, v25, v27\nv_cvt_pk_bf16_f32 v24, v24, v25")
        a("v_lshlrev_b32 v25, 16, v24\nv_and_b32 v24, 0xffff0000, v24")
        if d == 0: a("v_add_f32 v28, v24, v25")
        else: a("v_add_f32 v28, v28, v24\nv_add_f32 v28, v28, v25")
    for ctl in ("quad_perm:[1,0,3,2]", "quad_perm:[2,3,0,1]", "row_half_mirror", "row_mirror"):
        a(dpp("v_add_f32", 28, 28, 28, ctl))
    allrows("v_add_f32", 28, 29)
    a("v_cvt_pk_bf16_f32 v28, v28, v28\nv_and_b32 v28, 0xffff0000, v28")
    a("v_mul_f32 v28, %s, v28\nv_exp_f32 v28, v28\nv_add_f32 v28, 1.0, v28\nv_rcp_f32 v28, v28" % f32(-math.log2(math.e)))
    a("v_cvt_pk_bf16_f32 v28, v28, v28\nv_and_b32 v%d, 0xffff0000, v28" % GA)
    a("v_sub_f32 v28, 1.0, v%d\nv_cvt_pk_bf16_f32 v28, v28, v28\nv_and_b32 v%d, 0xffff0000, v28" % (GA, G_))
    a("ds_write_b32 v6, v%d offset:%d" % (GA, L_CNT + C_G))
    ldswait("vb", 6, 4, L_CNT + C_VDB, "eq", 8, slp=4)
    stamp(4)
    a("s_mul_i32 s76, s%d, %d\ns_add_u32 s76, s76, %d" % (2 if wqx else 92, PBS, WS_PB))
    for h in range(2):
        a("ds_read_b128 v[16:19], v6 offset:%d\nds_read_b128 v[20:23], v6 offset:%d" % (L_MW + 32 * h, L_MW + 32 * h + 16))
        a("ds_read_b128 v[24:27], v6 offset:%d\nds_read_b128 v[28:31], v6 offset:%d" % (L_LW + 32 * h, L_LW + 32 * h + 16))
        a("s_waitcnt lgkmcnt(0)")
        mx = 88 + 4 * h
        a("v_max3_f32 v%d, v16, v17, v18\nv_max3_f32 v%d, v%d, v19, v20\nv_max3_f32 v%d, v%d, v21, v22\nv_max_f32 v%d, v%d, v23" % (mx, mx, mx, mx, mx, mx, mx))
        for w in range(8): a("v_sub_f32 v%d, v%d, v%d" % (16 + w, 16 + w, mx))
        for w in range(8): a("v_exp_f32 v%d, v%d" % (16 + w, 16 + w))
        a("v_mul_f32 v%d, v16, v24" % (mx + 2))
        for w in range(1, 8): a("v_fmac_f32 v%d, v%d, v%d" % (mx + 2, 16 + w, 24 + w))
        o = 96 + 4 * h
        for half in range(2):
            for w in range(4):
                a("ds_read_b128 v[%d:%d], v1 offset:%d" % (32 + 4 * w, 35 + 4 * w, L_ACCB + h * 8192 + (half * 4 + w) * 1024))
            a("s_waitcnt lgkmcnt(0)")
            for w in range(4):
                for k in range(4):
                    if half == 0 and w == 0: a("v_mul_f32 v%d, v%d, v16" % (o + k, 32 + k))
                    else: a("v_fmac_f32 v%d, v%d, v%d" % (o + k, 32 + 4 * w + k, 16 + half * 4 + w))
        if BH:
            a("v_cvt_pk_bf16_f32 v%d, v%d, v%d\nv_cvt_pk_bf16_f32 v%d, v%d, v%d\nv_lshlrev_b32 v5, 3, v0" % (o, o, o + 1, o + 1, o + 2, o + 3))
            a("buffer_store_dwordx2 v[%d:%d], v5, s[48:51], s76 offen offset:%d sc1" % (o, o + 1, 512 * h))
        else:
            a("buffer_store_dwordx4 v[%d:%d], v1, s[48:51], s76 offen offset:%d sc1" % (o, o + 3, 1024 * h))
    a("v_and_b32 v4, 1, v0\nv_cmp_eq_u32 vcc, 1, v4")
    a("v_cndmask_b32 v88, v88, v92, vcc\nv_cndmask_b32 v90, v90, v94, vcc\nv_mov_b32 v89, s70\nv_mov_b32 v91, s70")
    a("s_waitcnt vmcnt(0)")
    a("s_mov_b64 exec, 0xff")
    a("buffer_store_dwordx4 v[88:91], v1, s[48:51], s76 offen offset:%d sc1" % MLO)
    a("s_mov_b64 exec, -1")
    stamp(5)
    a("s_mov_b32 s79, 0x01010101")
    a("v_and_b32 v4, 31, v0\nv_mul_u32_u24 v%d, %d, v4" % (MLV, PBS))
    if BH:
        a("v_lshrrev_b32 v5, 3, v0\nv_mul_u32_u24 v%d, %d, v5\nv_and_b32 v16, 7, v0\nv_lshl_add_u32 v%d, v16, 4, v%d" % (PV, PBS, PV, PV))
        a("v_lshlrev_b32 v66, 4, v5")
        a("v_lshrrev_b32 v4, 3, v4\nv_lshl_or_b32 v67, v16, 2, v4\nv_lshlrev_b32 v67, 2, v67")
        a("v_lshrrev_b32 v5, 4, v0\nv_lshlrev_b32 v5, 3, v5\nv_lshl_or_b32 v71, v16, 5, v5")
    else:
        a("v_lshrrev_b32 v5, 4, v0\nv_mul_u32_u24 v%d, %d, v5\nv_and_b32 v16, 15, v0\nv_lshl_add_u32 v%d, v16, 4, v%d" % (PV, PBS, PV, PV))
        a("v_lshlrev_b32 v66, 5, v5")
        a("v_and_b32 v16, 3, v0\nv_lshrrev_b32 v4, 2, v4\nv_lshl_or_b32 v67, v16, 3, v4\nv_lshlrev_b32 v67, 2, v67")
    a("s_and_b32 s76, s2, 0xe0\ns_mul_i32 s76, s76, %d\ns_add_u32 s76, s76, %d" % (PBS, WS_PB))
    a("s_bfe_u32 s77, s2, 0x10004\ns_lshl4_add_u32 s54, s77, s76\ns_add_u32 s54, s54, %d" % MLO)
    a("s_and_b32 s77, s2, 28\ns_lshl_b32 s77, s77, %d\ns_add_u32 s52, s76, s77" % (5 if BH else 6))
    ldswait("kb", 6, 4, L_CNT + C_KD, "ge", BTRIG, slp=8)
    a("s_mov_b32 s83, %d" % spin)
    a("L_b_w:")
    if "clear" in dis or CK: a("v_mov_b32 v4, s79")
    else: a("buffer_load_dword v4, v2, s[40:43], 0 offen sc1")
    a("buffer_load_dwordx4 v[24:27], v%d, s[48:51], s54 offen sc1" % MLV)
    a("s_waitcnt vmcnt(0)")
    a("v_xor_b32 v4, s79, v4\nv_xor_b32 v5, s70, v25\nv_xor_b32 v16, s70, v27")
    a("v_or3_b32 v4, v4, v5, v16\nv_cmp_ne_u32 vcc, 0, v4")
    a("s_sub_u32 s83, s83, 1\ns_cbranch_scc1 L_b_g")
    a("s_cbranch_vccz L_b_g\ns_sleep 32\ns_branch L_b_w")
    a("L_b_g:")
    for i in range(4 if BH else 8):
        a("buffer_load_dwordx4 v[%d:%d], v%d, s[48:51], s52 offen sc1" % (28 + 4 * i, 31 + 4 * i, PV))
        if i < 7: a("s_add_u32 s52, s52, %d" % ((8 if BH else 4) * PBS))
    a("v_mov_b32 v4, v24")
    for ctl in ("quad_perm:[1,0,3,2]", "quad_perm:[2,3,0,1]", "row_half_mirror", "row_mirror"):
        a(dpp("v_max_f32", 4, 4, 4, ctl))
    allrows("v_max_f32", 4, 5)
    a("v_sub_f32 v24, v24, v4\nv_exp_f32 v24, v24\nv_mul_f32 v26, v26, v24")
    for ctl in ("quad_perm:[1,0,3,2]", "quad_perm:[2,3,0,1]", "row_half_mirror", "row_mirror"):
        a(dpp("v_add_f32", 26, 26, 26, ctl))
    a("v_mov_b32 v5, v26\nv_permlane16_swap_b32 v5, v26\nv_add_f32 v26, v26, v5")
    a("v_rcp_f32 v26, v26\nv_mul_f32 v24, v24, v%d\nv_mul_f32 v24, v24, v26" % G_)
    a("ds_write_b32 v67, v24 offset:%d" % L_ACCB)
    if BH:
        a("ds_read_b128 v[16:19], v66 offset:%d" % L_ACCB)
        a("s_waitcnt vmcnt(0) lgkmcnt(0)")
        AC2 = 44
        for i in range(4):
            for d in range(4):
                a("v_lshlrev_b32 v20, 16, v%d\nv_and_b32 v21, 0xffff0000, v%d" % (28 + 4 * i + d, 28 + 4 * i + d))
                for e in range(2):
                    if i == 0: a("v_mul_f32 v%d, v%d, v16" % (AC2 + 2 * d + e, 20 + e))
                    else: a("v_fmac_f32 v%d, v%d, v%d" % (AC2 + 2 * d + e, 20 + e, 16 + i))
        for j in range(4): a("v_permlane32_swap_b32 v%d, v%d" % (AC2 + j, AC2 + j + 4))
        for j in range(4): a("v_add_f32 v%d, v%d, v%d" % (AC2 + j, AC2 + j, AC2 + j + 4))
        for j in range(2): a("v_permlane16_swap_b32 v%d, v%d" % (AC2 + j, AC2 + j + 2))
        for j in range(2): a("v_add_f32 v%d, v%d, v%d" % (AC2 + j, AC2 + j, AC2 + j + 2))
        for j in range(2): a(dpp("v_add_f32", AC2 + j, AC2 + j, AC2 + j, "row_ror:8"))
        a("ds_write_b64 v71, v[%d:%d] offset:%d" % (AC2, AC2 + 1, L_ACCB + 1024))
    else:
        a("ds_read_b128 v[16:19], v66 offset:%d\nds_read_b128 v[20:23], v66 offset:%d" % (L_ACCB, L_ACCB + 16))
        a("s_waitcnt vmcnt(0) lgkmcnt(0)")
        for i in range(8):
            for r in range(4):
                if i == 0: a("v_mul_f32 v%d, v%d, v16" % (24 + r, 28 + r))
                else: a("v_fmac_f32 v%d, v%d, v%d" % (24 + r, 28 + 4 * i + r, 16 + i))
        for r in range(4): allrows("v_add_f32", 24 + r, 5)
        a("ds_write_b128 v1, v[24:27] offset:%d" % (L_ACCB + 1024))
    a("s_mov_b64 exec, 1")
    a("ds_write_b32 v6, v7 offset:%d" % (L_CNT + C_YB))
    a("s_mov_b64 exec, -1")
    a("L_b_rd:")
    ldswait("yb", 6, 4, L_CNT + C_YB, "lg", 0, slp=8)
    PR = 76; LM = 88
    a("v_mov_b32 v%d, 0\nv_mov_b32 v%d, 0\nv_mov_b32 v%d, 0\nv_mov_b32 v%d, %s\nv_mov_b32 v%d, 1.0" % (PR, PR + 1, PR + 2, LM, f32(-1e30), G_))
    a("ds_read_b32 v%d, v6 offset:%d" % (GA, L_CNT + C_G))
    a("s_lshl_b32 s76, s71, 6\nv_add_u32 v4, s76, v1\ns_mov_b64 exec, 0xf")
    a("ds_read_b128 v[%d:%d], v4 offset:%d\nv_mov_b32 v%d, 0" % (PR, PR + 3, L_ACCB + 1024, LM))
    a("s_mov_b32 s61, 0\ns_mov_b32 s74, 1")
    a("s_waitcnt vmcnt(0) lgkmcnt(0)")
    for k in range(3): a("v_perm_b32 v%d, v%d, v%d, s%d" % (PR + k, PR + 3, PR + k, 80 + k))
    a("s_mov_b64 exec, -1")
    stamp(6)
    a("s_branch L_t_pg")
    a("L_t_a:")
    a("s_mov_b32 s61, 4\ns_mov_b32 s74, %d\ns_movk_i32 s58, 512\ns_mov_b32 s66, 8" % spin)
    a("v_mov_b32 v%d, v%d" % (G_, GA))
    if WOL is None:
        for r in range(16): a("v_mov_b32 v%d, v%d" % (WC + r, WA_ + r))
    elif WBL is not None:
        th = WST or [WBL] * 4 + [-WOL] * 4
        for i in range(8):
            if i == 0 or th[i] != th[i - 1]: ldswait("eb%d" % i, 6, 4, L_CNT + C_VDA, "ge", th[i], slp=EXS)
            rg = i & 3
            if i < 4: a("buffer_load_dwordx4 v[%d:%d], v%d, s[32:35], 0 offen%s" % (WB + 4 * rg, WB + 4 * rg + 3, 12 + rg, NTW))
            else: a("buffer_load_dwordx4 v[%d:%d], v%d, s[44:47], 0 offen%s" % (WC + 4 * rg, WC + 4 * rg + 3, 12 + rg, NTW))
        for rg in range(4):
            a("s_waitcnt vmcnt(%d)" % (7 - rg))
            a("v_mfma_f32_16x16x32_bf16 v[%d:%d], v[%d:%d], v[%d:%d], %s" % (ACC, ACC + 3, EE + rg * 4, EE + rg * 4 + 3, WB + 4 * rg, WB + 4 * rg + 3, "0" if rg == 0 else "v[%d:%d]" % (ACC, ACC + 3)))
    else:
        if WOL >= 0: ldswait("ex", 6, 4, L_CNT + C_LS, "gt", NT_ - WOL, slp=EXS)
        else: ldswait("ex", 6, 4, L_CNT + C_VDA, "ge", -WOL, slp=EXS)
        for rg in range(4): a("buffer_load_dwordx4 v[%d:%d], v%d, s[44:47], 0 offen%s" % (WC + 4 * rg, WC + 4 * rg + 3, 12 + rg, NTW))
    stamp(8)
    if dumat:
        a("s_lshr_b32 s76, s93, 4\ns_lshl_b32 s76, s76, 10\ns_lshl_b32 s77, s71, 8\ns_add_u32 s76, s76, s77\ns_add_u32 s76, s76, %d" % (WS_CNT + 0x10000))
        a("v_lshlrev_b32 v20, 7, v0\nv_add_u32 v20, s76, v20\nv_mov_b32 v22, 1\nv_mov_b32 v23, 0\ns_mov_b32 s83, 4000")
        a("L_du_w:")
        a("s_mov_b64 exec, %d" % (2 ** dumat - 1))
        a("global_atomic_add_x2 v[24:25], v20, v[22:23], s[30:31] sc0 sc1")
        a("s_mov_b64 exec, -1")
        a("ds_read_b32 v4, v6 offset:%d\ns_waitcnt vmcnt(0) lgkmcnt(0)\nv_readfirstlane_b32 s76, v4" % (L_CNT + C_VDA))
        a("s_sub_u32 s83, s83, 1\ns_cbranch_scc1 L_du_g")
        a("s_cmp_eq_u32 s76, 0\ns_cbranch_scc1 L_du_w")
        a("L_du_g:")
    ldswait("va", 6, 4, L_CNT + C_VDA, "ge", VAT, slp=LSL)
    if "apass" in dis: a("s_mov_b32 s76, 3\ns_branch L_fin")
    stamp(9)
    a("s_mov_b32 s83, %d" % spin)
    PL = 84 if PP > 1 else PR
    pl = "buffer_load_dwordx4 v[%d:%d], v%d, s[48:51], s62 offen sc1" % (PL, PL + 3, PVA)
    for i in range(PP - 1): a(pl + "\ns_sleep %d" % PD)
    a("L_t_pw:")
    a(pl)
    a("s_waitcnt vmcnt(%d)" % (PP - 1))
    if PP > 1: a("v_mov_b64 v[%d:%d], v[%d:%d]\nv_mov_b64 v[%d:%d], v[%d:%d]" % (PR, PR + 1, PL, PL + 1, PR + 2, PR + 3, PL + 2, PL + 3))
    if CK:
        a("v_bitop3_b32 v4, v%d, v%d, v%d %s\nv_xor_b32 v4, v4, v%d" % (PR, PR + 1, PR + 2, X3, PR + 3))
        a("v_mov_b32_dpp v%d, v%d quad_perm:[0,0,2,2] row_mask:0xf bank_mask:0xf" % (LM, PR + 3))
        a(dpp("v_xor_b32", 4, 4, 4, "quad_perm:[1,0,3,2]"))
        a("v_cmp_ne_u32 vcc, s70, v4")
    else:
        a("v_max3_u32 v4, v%d, v%d, v%d\nv_max_u32 v4, v4, v%d\nv_cmp_eq_u32 vcc, -1, v4\nv_mov_b32 v%d, v%d" % (PR, PR + 1, PR + 2, PR + 3, LM, PR + 3))
    a("s_cbranch_vccz L_t_pg0")
    if PMASK: a("s_mov_b64 exec, vcc")
    if PSLP: a("s_sleep %d" % PSLP)
    a("s_sub_u32 s83, s83, 1\ns_cbranch_scc0 L_t_pw")
    a("L_t_pg0:")
    if PMASK: a("s_mov_b64 exec, -1")
    stamp(10)
    a("L_t_pg:")
    a(dpp("v_max_f32", 4, LM, LM, "row_ror:4"))
    a("v_perm_b32 v19, v%d, v%d, s63" % (PR + 1, PR))
    a("v_lshl_or_b32 v19, v%d, 24, v19" % (PR + 2))
    a(dpp("v_max_f32", 4, 4, 4, "row_ror:8"))
    allrows("v_max_f32", 4, 5)
    a("v_sub_f32 v24, v%d, v4\nv_exp_f32 v24, v24" % LM)
    for r in range(3): a("v_mul_f32 v%d, v%d, v24" % (16 + r, PR + r))
    a("v_mul_f32 v19, v19, v24")
    a(dpp("v_add_f32", 25, 24, 24, "row_ror:4"))
    a("v_permlane16_swap_b32 v16, v17\nv_permlane16_swap_b32 v18, v19")
    a(dpp("v_add_f32", 25, 25, 25, "row_ror:8"))
    a("v_add_f32 v16, v16, v17\nv_add_f32 v18, v18, v19")
    a("v_mov_b32 v5, v25\nv_permlane32_swap_b32 v16, v18\nv_permlane16_swap_b32 v5, v25")
    a("v_add_f32 v16, v16, v18\nv_add_f32 v25, v25, v5\nv_mov_b32 v5, v25")
    a(dpp("v_add_f32", 16, 16, 16, "row_ror:4"))
    a("v_permlane32_swap_b32 v5, v25\nv_add_f32 v25, v25, v5")
    a(dpp("v_add_f32", 16, 16, 16, "row_ror:8"))
    a("v_rcp_f32 v25, v25\nv_mul_f32 v16, v16, v%d\nv_mul_f32 v16, v16, v25\nv_cvt_pk_bf16_f32 v16, v16, v16" % G_)
    for rg in range(4):
        for k in range(4):
            a(dpp("v_and_b32", EE + rg * 4 + k, 16, 8 + k, "quad_perm:[%d,%d,%d,%d]" % (rg, rg, rg, rg)))
        if rg: a("v_mfma_f32_16x16x32_bf16 v[%d:%d], v[%d:%d], v[%d:%d], v[%d:%d]" % (ACC, ACC + 3, EE + rg * 4 - 4, EE + rg * 4 - 1, WC + 4 * rg - 4, WC + 4 * rg - 1, ACC, ACC + 3))
    a("v_mfma_f32_16x16x32_bf16 v[%d:%d], v[%d:%d], v[%d:%d], v[%d:%d]" % (ACC, ACC + 3, EE + 12, EE + 15, WC + 12, WC + 15, ACC, ACC + 3))
    a("s_mov_b32 exec_hi, 0")
    a("ds_write_b128 v%d, v[%d:%d] offset:%d" % (YV + 1, ACC, ACC + 3, L_QP))
    a("s_mov_b64 exec, 1")
    a("ds_add_rtn_u32 v4, v6, v7 offset:%d" % (L_CNT + C_YARR))
    a("s_mov_b32 exec_lo, s72")
    for k in range(4): a("ds_read_b128 v[%d:%d], v1 offset:%d" % (16 + 4 * k, 19 + 4 * k, L_QP + 512 * k))
    a("s_waitcnt lgkmcnt(0)\nv_readfirstlane_b32 s76, v4")
    for r in (0, 2): a("v_pk_add_f32 v[%d:%d], v[%d:%d], v[%d:%d]" % (16 + r, 17 + r, 16 + r, 17 + r, 20 + r, 21 + r))
    for r in (0, 2): a("v_pk_add_f32 v[%d:%d], v[%d:%d], v[%d:%d]" % (24 + r, 25 + r, 24 + r, 25 + r, 28 + r, 29 + r))
    a("s_sub_u32 s76, s76, s61\ns_cmp_lg_u32 s76, 3\ns_cbranch_scc1 L_t_nst")
    for r in (0, 2): a("v_pk_add_f32 v[%d:%d], v[%d:%d], v[%d:%d]" % (16 + r, 17 + r, 16 + r, 17 + r, 24 + r, 25 + r))
    if CK:
        for k in range(3): a("v_perm_b32 v%d, v19, v%d, s%d" % (16 + k, 16 + k, 80 + k))
        a("v_xor_b32 v19, s70, v16\nv_bitop3_b32 v19, v19, v17, v18 %s" % X3)
    a("buffer_store_dwordx4 v[16:19], v1, s[56:59], 0 offen sc1")
    stamp(11)
    a("L_t_nst:")
    a("s_mov_b64 exec, -1")
    a("s_cmp_lg_u32 s76, 0\ns_cbranch_scc1 L_t_next")
    a("s_cmp_ge_u32 s73, 112\ns_cbranch_scc1 L_t_next")
    a("s_mov_b32 s83, s74")
    YL = 80 if YP > 1 else 16
    yl = "buffer_load_dwordx4 v[%d:%d], v%d, s[48:51], s60 offen sc1" % (YL, YL + 3, YV)
    if YP > 1: a("s_cmp_eq_u32 s61, 0\ns_cbranch_scc1 L_t_yw")
    for i in range(YP - 1): a(yl + "\ns_sleep %d" % YD)
    a("L_t_yw:")
    a(yl)
    a("s_waitcnt vmcnt(%d)" % (YP - 1))
    if YP > 1: a("v_mov_b64 v[16:17], v[%d:%d]\nv_mov_b64 v[18:19], v[%d:%d]" % (YL, YL + 1, YL + 2, YL + 3))
    if CK:
        a("v_bitop3_b32 v4, v16, v17, v18 %s\nv_xor_b32 v5, s70, v19\nv_perm_b32 v19, v17, v16, s63\nv_cmp_ne_u32 vcc, v4, v5\nv_lshl_or_b32 v19, v18, 24, v19" % X3)
    else:
        a("v_max3_u32 v4, v16, v17, v18\nv_max_u32 v4, v4, v19\nv_cmp_eq_u32 vcc, -1, v4")
    a("s_cbranch_vccz L_t_yg")
    if YMASK: a("s_mov_b64 exec, vcc")
    a("s_sub_u32 s83, s83, 1\ns_cmp_lg_u32 s83, 0\ns_cbranch_scc1 L_t_yw")
    a("L_t_yg:")
    if YMASK: a("s_mov_b64 exec, -1")
    stamp(12)
    a("v_permlane16_swap_b32 v16, v17\nv_permlane16_swap_b32 v18, v19")
    a("v_add_f32 v16, v16, v17\nv_add_f32 v18, v18, v19")
    a("v_permlane32_swap_b32 v16, v18\nv_add_f32 v16, v16, v18")
    for ctl in ("quad_perm:[1,0,3,2]", "quad_perm:[2,3,0,1]", "row_half_mirror", "row_mirror"):
        a(dpp("v_add_f32", 16, 16, 16, ctl))
    a("v_cvt_pk_bf16_f32 v16, v16, v16")
    a("buffer_store_short v16, v%d, s[64:67], 0 offen" % OV)
    stamp(13)
    a("s_cmp_eq_u32 s61, 0\ns_cbranch_scc1 L_t_next")
    a("s_cmp_lg_u32 s2, 0\ns_cbranch_scc1 L_t_next")
    a("v_mov_b32 v4, s70\nv_mov_b32 v5, 0x%x\ns_mov_b64 exec, 1" % WS_EPOCH)
    a("buffer_store_dword v4, v5, s[48:51], 0 offen sc1")
    a("s_mov_b64 exec, -1")
    a("L_t_next:")
    a("s_cmp_lg_u32 s61, 0\ns_cbranch_scc1 L_fin")
    ldswait("y4", 6, 4, L_CNT + C_YARR, "ge", 4, slp=2)
    a("s_branch L_t_a")
    a("L_fin:")
    if dbgt:
        a("s_lshl_b32 s84, s2, 7\ns_add_u32 s84, s84, %d\ns_add_u32 s84, s84, s30\ns_addc_u32 s85, s31, 0\ns_mov_b32 s86, 128\ns_mov_b32 s87, 0x20000" % STAMP_OFF)
        a("v_mov_b32 v16, v63\nv_mov_b32 v17, 0\nv_lshlrev_b32 v18, 3, v0")
        a("s_mov_b32 s77, 0\ns_cmp_eq_u32 s71, 3\ns_cselect_b32 s78, 0xf, 0\ns_or_b32 s77, s77, s78\ns_cmp_eq_u32 s71, 2\ns_cselect_b32 s78, 0x30, 0\ns_or_b32 s77, s77, s78")
        a("s_cmp_eq_u32 s76, 3\ns_cselect_b32 s78, 0xf40, 0\ns_or_b32 s77, s77, s78\ns_cmp_eq_u32 s76, 0\ns_cselect_b32 s78, 0x3080, 0\ns_or_b32 s77, s77, s78")
        a("s_cbranch_scc0 L_end\ns_mov_b32 exec_lo, s77\ns_mov_b32 exec_hi, 0")
        a("buffer_store_dwordx2 v[16:17], v18, s[84:87], 0 offen")
    a("s_endpgm")
    a.flush()
    if not CK:
        a("L_h_clr:")
        if touch:
            a("s_cmp_eq_u32 s71, 0\ns_cselect_b32 s52, s6, s8\ns_cselect_b32 s53, s7, s9\ns_mov_b32 s54, 0x4000000\ns_mov_b32 s55, 0x20000")
            a("s_lshr_b32 s76, s93, 4\ns_lshl_b32 s76, s76, 22\ns_and_b32 s77, s93, 15\ns_mul_i32 s77, s77, %d\ns_add_u32 s77, s77, s76\ns_add_u32 s76, s76, %d" % (NS * 16384, NS * 262144 + 0x40000))
            a("v_mul_u32_u24 v16, %d, v0\nv_add_u32 v16, s77, v16\nv_writelane_b32 v16, s76, 2" % (NS * 16384 - 64))
            a("s_mov_b64 exec, 7")
            a("buffer_load_dword v17, v16, s[52:55], 0 offen%s" % (" nt" if touch == 1 else ""))
            a("s_mov_b64 exec, 1")
            a("s_cmp_eq_u32 s71, 0\ns_cbranch_scc1 L_tch0")
            a("buffer_load_dword v18, v12, s[44:47], 0 offen\ns_branch L_tch1")
            a("L_tch0:")
            a("buffer_load_dword v18, v12, s[32:35], 0 offen")
            a("L_tch1:")
            a("s_mov_b64 exec, -1")
        if CLT: ldswait("clq", 6, 4, L_CNT + C_VDB, "ge", CLT, slp=8)
        a("v_mov_b32 v36, -1\nv_mov_b32 v37, -1\nv_mov_b32 v38, -1\nv_mov_b32 v39, -1")
        a("s_cmp_eq_u32 s71, 0\ns_cbranch_scc1 L_h_cl0")
        a("s_mov_b32 exec_lo, s72\ns_mov_b32 exec_hi, 0")
        a("buffer_store_dwordx4 v[36:39], v1, s[48:51], s68 offen sc1")
        a("s_branch L_h_cl1")
        a("L_h_cl0:")
        a("s_mul_i32 s76, s93, %d\ns_add_u32 s76, s76, %d" % (PAS, WS_PA))
        a("buffer_store_dwordx4 v[36:39], v1, s[48:51], s76 offen sc1")
        a("L_h_cl1:")
        a("s_mov_b64 exec, 1")
        a("v_mov_b32 v5, s2")
        a("s_waitcnt vmcnt(0)")
        a("ds_add_rtn_u32 v4, v6, v7 offset:%d" % (L_CNT + C_CLR))
        a("s_waitcnt lgkmcnt(0)\nv_readfirstlane_b32 s76, v4")
        a("s_nop 0\ns_cmp_lg_u32 s76, 1\ns_cbranch_scc1 L_h_cl2")
        a("buffer_store_byte v7, v5, s[40:43], 0 offen sc1")
        a("L_h_cl2:")
        a("s_mov_b64 exec, -1\ns_branch %s" % ("L_t_a" if "bchain" in dis else "L_b_rd"))
    a("L_end:")
    a("s_endpgm")
    a.raw('.section .rodata,"a"\n.p2align 6\n.amdhsa_kernel %s' % NAME)
    a.raw("  .amdhsa_next_free_vgpr 168\n  .amdhsa_next_free_sgpr 102\n  .amdhsa_accum_offset 168")
    a.raw("  .amdhsa_group_segment_fixed_size 0\n  .amdhsa_kernarg_size 112\n  .amdhsa_user_sgpr_count 2\n  .amdhsa_user_sgpr_kernarg_segment_ptr 1\n  .amdhsa_system_sgpr_workgroup_id_x 1\n.end_amdhsa_kernel")
    open(fname, "w").write(a.text())
    return a

if __name__ == "__main__":
    kw = dict(dbgt=2, G=1, W0=6, WS_=[(6, 3)])
    gen("g_a.s", NS=16, **kw)
    gen("g_b.s", NS=14, **kw)
    gen("g_c.s", NS=16, wqx=2, dis=("wo",), **kw)
    gen("g_d.s", NS=16, wqx=2, dis=("wo", "apass", "bchain"), **kw)
```

```python
import sys, math, struct
from asmlib import Asm
NAME = "gated_mix__mha_block_cached__gqa_block_cached__decode_kernel"
HEADER = open("gated_mix__mha_block_cached__gqa_block_cached__decode.s.ref").read().split("; Override launch")[0]

WS_Q = 0x0
WS_EPOCH = 0x8000
WS_CNT = 0x10000
WS_Y = 0x100000
WS_PB = 0x200000
WS_PA = 0x300000
WS_END = 0x400000
YS = 640; PAS = 1152
STAMP_OFF = 200 * 1024 * 1024
L_Q = 0; L_QP = 1536; L_MW = 3584; L_LW = 3712; L_CNT = 3840; L_ACCB = 4096; L_ACCA = 20480; L_LIST = 28672; LDS_BYTES = 29184
C_QARR, C_QRDY, C_QARDY, C_KD, C_VDB, C_VDA, C_LS, C_CLR, C_YB, C_PRG, C_TAG, C_YARR, C_G, C_PC, C_FST = 0, 4, 8, 12, 16, 20, 24, 32, 36, 40, 44, 48, 52, 56, 60
L_YB = L_ACCB
SC = math.log2(math.e) / 16.0
def f32(x): return "0x%08x" % struct.unpack("<I", struct.pack("<f", x))[0]

def gen(fname, W0=4, G=2, BUD=60, RAMP=4, nt=True, round_s=True, spin=400000, ntw=True, dbgt=0, dis=(), NPOLL=3, PSL=6, BTRIG=1, xl=1, prio=None, touch=0, WS_=None, wperm=0, QT=16, CLT=1, YINC=1, WQW=8, SP=0, HP=3, wqx=0, amap=1, NS=14, ATL=4, VAT=8, PSLP=0, PMASK=0, LSL=1, bmap=0, wqm=0, FIN=0, dumat=0, LB=1, PP=1, YP=1, PD=2, YD=2, YMASK=0, CSTR=4352, SPS=1, TH=0, FK=0, DW=4, WOL=None, EXS=2, WBL=None, WST=None, CK=1, BH=1, PBS=1152, OVL=1, WPAT=None, LAY=0):
    a = Asm()
    if not BH: PBS = 2176
    MLO = 1024 if BH else 2048
    X3 = "bitop3:0x96"
    NT = (" " + nt if isinstance(nt, str) else " nt") if nt else ""
    NTW = (" " + ntw if isinstance(ntw, str) else " nt") if ntw else ""
    a.raw(HEADER.rstrip("\n"))
    a.raw("; @launch grid=(256,1,1) block=(768,1,1) lds=%d" % LDS_BYTES)
    a.raw('.amdgcn_target "amdgcn-amd-amdhsa--gfx950"\n.text\n.globl %s\n.p2align 8\n.type %s,@function\n%s:' % (NAME, NAME, NAME))
    SB = 4
    def stamp(idx):
        if not dbgt: return
        a("s_memrealtime s[88:89]\ns_waitcnt lgkmcnt(0)\nv_writelane_b32 v63, s88, %d" % idx)

    def allrows(op, x, t):
        a("v_mov_b32 v%d, v%d" % (t, x))
        a("v_permlane16_swap_b32 v%d, v%d" % (t, x))
        a("%s v%d, v%d, v%d" % (op, x, t, x))
        a("v_mov_b32 v%d, v%d" % (t, x))
        a("v_permlane32_swap_b32 v%d, v%d" % (t, x))
        a("%s v%d, v%d, v%d" % (op, x, t, x))
    def dpp(op, d, s0, s1, ctrl, bank=0xf):
        return "%s_dpp v%d, v%d, v%d %s row_mask:0xf bank_mask:0x%x" % (op, d, s0, s1, ctrl, bank)
    def masks(M, t0, t1):
        a("v_and_b32 v%d, 1, v0\nv_lshlrev_b32 v%d, 4, v%d" % (t0, t0, t0))
        a("v_mov_b32 v%d, 0xffff\nv_lshlrev_b32 v%d, v%d, v%d" % (t1, t0, t0, t1))
        a("v_bfe_u32 v%d, v0, 1, 2" % t1)
        for k in range(4):
            a("v_cmp_eq_u32 vcc, %d, v%d" % (k, t1))
            a("v_cndmask_b32 v%d, 0, v%d, vcc" % (M + k, t0))
    def ldswait(lab, vz, vt, off, cmp, val, slp=1, sreg=76, cnt=83):
        a("s_mov_b32 s%d, %d" % (cnt, spin * 8))
        a("L_%s_w:" % lab)
        a("ds_read_b32 v%d, v%d offset:%d\ns_waitcnt lgkmcnt(0)\nv_readfirstlane_b32 s%d, v%d" % (vt, vz, off, sreg, vt))
        a("s_sub_u32 s%d, s%d, 1\ns_cbranch_scc1 L_%s_g" % (cnt, cnt, lab))
        a("s_cmp_%s_u32 s%d, %d\ns_cbranch_scc1 L_%s_g\ns_sleep %d\ns_branch L_%s_w" % (cmp, sreg, val, lab, slp, lab))
        a("L_%s_g:" % lab)

    a("s_cmp_ge_u32 s2, 256\ns_cbranch_scc1 L_end")
    a("s_load_dwordx16 s[4:19], s[0:1], 0")
    if bmap == 1: a("s_mov_b32 s92, s2")
    if xl == 2: a("s_add_u32 s3, s2, 2\ns_and_b32 s3, s3, 7\ns_and_b32 s2, s2, 0xf8\ns_or_b32 s2, s2, s3")
    if xl == 3: a("s_lshr_b32 s3, s2, 3\ns_add_u32 s3, s3, s2\ns_and_b32 s3, s3, 7\ns_and_b32 s2, s2, 0xf8\ns_or_b32 s2, s2, s3")
    if xl == 1: a("s_and_b32 s3, s2, 7\ns_lshr_b32 s2, s2, 3\ns_lshl_b32 s3, s3, 5\ns_add_u32 s2, s2, s3")
    a("s_load_dwordx8 s[20:27], s[0:1], 64")
    a("s_load_dwordx4 s[28:31], s[0:1], 96")
    if dbgt: a("s_memrealtime s[90:91]")
    if amap:
        a("s_bfe_u32 s93, s2, 0x40001\ns_lshl_b32 s93, s93, 4\ns_lshr_b32 s3, s2, 5\ns_lshl1_add_u32 s93, s3, s93\ns_and_b32 s3, s2, 1\ns_add_u32 s93, s93, s3")
    else:
        a("s_mov_b32 s93, s2")
    if bmap == 0: a("s_mov_b32 s92, s2")
    if bmap == 2: a("s_mov_b32 s92, s93")
    assert not (bmap and wqx)
    a("v_lshrrev_b32 v1, 6, v0\nv_and_b32 v0, 63, v0\nv_readfirstlane_b32 s3, v1")
    a("s_nop 0\ns_cmp_lt_u32 s3, 4\ns_cbranch_scc1 L_helper")

    OFF = 1; T = [2, 3, 4, 5]; MC = 6; LS = 7; M = 8; E = 12; X = 16; S = 32; RING = 40
    QA = 104; TB = [112, 128]; ONES = 144; ACL = 148; TK = [152, 154]; AD = 156; AV = 158; TV = 159; SD = 160; WA = 161; RA = 162; R8 = 163
    SO = 52
    NP = 16 + 2 * NS
    NL = 2 * NP
    NT_ = (16 - NS) * 16
    PO = NS // 2 * 32768 + (NS & 1) * 2048
    assert NS % 2 == 0 or (NS == 15 and LAY)
    a("s_sub_u32 s3, s3, 4")
    if SP: a("s_setprio %d" % SP)
    a("v_lshrrev_b32 v2, 4, v0\nv_and_b32 v3, 15, v0\nv_lshlrev_b32 v2, 9, v2\nv_lshl_or_b32 v%d, v3, 4, v2" % OFF)
    a("s_add_u32 s80, s3, s93\ns_and_b32 s80, s80, 7\ns_lshl_b32 s79, s80, 12")
    a("s_lshl_b32 s77, s92, 17\ns_add_u32 s77, s77, s79")
    for j in range(1, 8): a("s_mov_b32 s%d, 0x%x" % (SO + j, j * 32768))
    a("s_mov_b32 s34, 0x19000\ns_mov_b32 s35, 0x20000\ns_mov_b32 s38, 0x19000\ns_mov_b32 s39, 0x20000")
    a("s_waitcnt lgkmcnt(0)")
    if not LB: a("s_barrier")
    if dbgt == 3: a("s_memrealtime s[84:85]")
    a("s_add_u32 s32, s16, s77\ns_addc_u32 s33, s17, 0")
    a("s_add_u32 s36, s18, s77\ns_addc_u32 s37, s19, 0")
    pairs = [(32, j) for j in range(8)] + [(36, j) for j in range(8)] + [(40, j) for j in range(NS)] + [(44, j) for j in range(NS)]
    def slot(n): return RING + (n % 16 if n < 24 else n % 8) * 8
    def prev_in_slot(n): return n - 16 if n < 24 else n - 8
    def atomic(k):
        a("s_mov_b64 exec, 1")
        a("global_atomic_add_x2 v[%d:%d], v%d, v[%d:%d], s[30:31] sc0 sc1" % (TK[k], TK[k] + 1, AV, AD, AD + 1))
        a("s_mov_b64 exec, -1")
    VP = 164; DU = 165; DV = 166
    nreq = [0]
    def request():
        nreq[0] += 1; u = nreq[0]
        a("s_cbranch_scc0 L_rql%d" % u)
        a("global_atomic_add_x2 v[%d:%d], v%d, v[%d:%d], s[30:31] sc0 sc1" % (TK[0], TK[0] + 1, AV, AD, AD + 1))
        a("s_branch L_rqe%d" % u)
        a("L_rql%d:" % u)
        a("buffer_load_dword v%d, v%d, s[60:63], 0 offen" % (DU, DV))
        a("L_rqe%d:" % u)
        a("s_mov_b64 exec, -1")
    def claim(off):
        a("s_mov_b64 exec, 1\nds_add_rtn_u32 v%d, v%d, v%d offset:%d\ns_mov_b64 exec, -1" % (VP, AD + 1, AD, L_CNT + off))
    st = {"issued": 0, "landed": 0, "at": None}
    def issue_load(i):
        n = i >> 1; c = i & 1
        srd, j = pairs[n]; r = slot(n) + 4 * c
        if dbgt == 2 and c == 0 and n % 6 == 0 and n > 0: a("s_memrealtime s[%d:%d]" % (84 + 2 * (n // 6 - 1) + (4 if n // 6 > 3 else 0), 85 + 2 * (n // 6 - 1) + (4 if n // 6 > 3 else 0)))
        if i == NL - ATL - 1 and NT_:
            claim(C_FST)
            a("v_mov_b32 v%d, 0x%x" % (DV, 0x400000))
        if i == NL - ATL and NT_:
            a("s_waitcnt lgkmcnt(0)\nv_readfirstlane_b32 s76, v%d\ns_mov_b64 exec, 1\ns_cmp_eq_u32 s76, %d\ns_cselect_b32 s80, %d, 0" % (VP, FK, L_LIST))
            request(); st["at"] = i
        so = "0" if j < 2 else "s%d" % (SO + (j >> 1))
        a("buffer_load_dwordx4 v[%d:%d], v%d, s[%d:%d], %s offen offset:%d%s" % (r, r + 3, OFF, srd, srd + 3, so, (j & 1) * 2048 + c * 256, NT))
    def Wn(i):
        w = W0
        for (frm, ww) in (WS_ or []):
            if i >= frm: w = ww
        if WPAT and 3 <= i < NL - 6: w = WPAT[i % len(WPAT)]
        return w
    extra = {"n": 0}
    def wait_landed(k):
        if k > st["landed"]:
            cnt = st["issued"] - k + extra["n"]
            if st["at"] is not None and k <= st["at"]: cnt += 1
            a("s_waitcnt vmcnt(%d)" % cnt); st["landed"] = k
    def issue_event():
        i = st["issued"]
        wait_landed(i + G - Wn(i))
        for t in range(G): issue_load(i + t)
        st["issued"] = i + G
    while st["issued"] + G <= Wn(0): issue_event()
    if dbgt == 3: a("s_memrealtime s[86:87]")
    if LB: a("s_barrier")
    if dbgt == 3: a("s_memrealtime s[88:89]\ns_waitcnt vmcnt(%d)\ns_memrealtime s[94:95]\ns_memrealtime s[96:97]\ns_memrealtime s[98:99]" % (W0 - 1))
    a("s_lshr_b32 s81, s93, 4\ns_lshl_b32 s78, s81, 22\ns_and_b32 s76, s93, 15\ns_mul_i32 s76, s76, %d\ns_add_u32 s76, s76, s78\ns_add_u32 s76, s76, s79\ns_add_u32 s78, s78, %d" % ((262144, PO) if LAY else (NS * 16384, NS * 262144)))
    nrec = ((NS + 1) // 2 - 1) * 32768 + 4096
    a("s_add_u32 s40, s6, s76\ns_addc_u32 s41, s7, 0\ns_mov_b32 s42, 0x%x\ns_mov_b32 s43, 0x20000" % nrec)
    a("s_add_u32 s44, s8, s76\ns_addc_u32 s45, s9, 0\ns_mov_b32 s46, 0x%x\ns_mov_b32 s47, 0x20000" % nrec)
    prec = 0x400000 - PO if LAY else NT_ // 2 * 32768
    a("s_add_u32 s60, s6, s78\ns_addc_u32 s61, s7, 0\ns_mov_b32 s62, 0x%x\ns_mov_b32 s63, 0x20000" % prec)
    a("s_add_u32 s64, s8, s78\ns_addc_u32 s65, s9, 0\ns_mov_b32 s66, 0x%x\ns_mov_b32 s67, 0x20000" % prec)
    a("s_mul_i32 s81, s81, %d\ns_add_u32 s81, s81, %d" % (CSTR, WS_CNT))
    a("s_mov_b32 s48, s30\ns_mov_b32 s49, s31\ns_mov_b32 s50, 0x%x\ns_mov_b32 s51, 0x20000" % WS_END)
    a("s_mul_i32 s75, s93, %d\ns_add_u32 s75, s75, %d" % (PAS, WS_PA))
    masks(M, T[0], T[1])
    a("s_mov_b32 s82, %s" % f32(SC))
    a("v_mov_b32 v%d, 0" % T[0])
    a("v_mov_b32 v%d, 1" % T[1])
    while st["issued"] < 32:
        if QT and st["issued"] <= QT < st["issued"] + G:
            a("s_mov_b64 exec, 1\nds_add_u32 v%d, v%d offset:%d\ns_mov_b64 exec, -1" % (T[0], T[1], L_CNT + C_PRG))
        issue_event()
    ldswait("sq", T[0], T[1], L_CNT + C_QRDY, "lg", 0)

    chunks = []
    class Rec:
        def __init__(self): self.l = []
        def __call__(self, t): self.l += [x for x in t.split("\n") if x.strip()]
    def phase(ph, n0, ng):
        nonlocal a
        real = a
        def begin():
            nonlocal a
            a = Rec(); return a
        def done(need=None, pre=None):
            chunks.append((need, pre or [], a.l))
        nh = 2 if ph == 0 else 1
        Q = X if ph == 0 else QA
        sc = [S + j for j in range(8)] if ph == 0 else ([X + 8 + j for j in range(8)] + [S + j for j in range(8)])[:ng]
        begin()
        a("v_and_b32 v%d, 15, v0\nv_lshlrev_b32 v%d, 4, v%d" % (T[0], T[0], T[0]))
        for h in range(nh):
            for c in range(2):
                a("ds_read_b128 v[%d:%d], v%d offset:%d" % (Q + h * 8 + c * 4, Q + h * 8 + c * 4 + 3, T[0], L_Q + ph * 1024 + h * 512 + c * 256))
        if ph == 1:
            a("v_mov_b32 v%d, 0\nds_read_b32 v%d, v%d offset:%d" % (AD + 1, T[1], AD + 1, L_CNT + C_TAG))
            a("v_mov_b32 v%d, 1\nv_mov_b32 v%d, s81" % (AD, AV))
            for k in range(4): a("v_mov_b32 v%d, 0x3f803f80" % (ONES + k))
            a("v_and_b32 v%d, 15, v0\nv_and_b32 v%d, 16, v0\nv_lshlrev_b32 v%d, 3, v0\nv_lshl_or_b32 v%d, v%d, 5, v%d" % (WA, RA, R8, WA, WA, RA))
            a("s_lshl_b32 s76, s3, 10\nv_add_u32 v%d, s76, v%d\nv_lshlrev_b32 v%d, 4, v0" % (WA, WA, RA))
        a("s_waitcnt lgkmcnt(0)")
        if ph == 1: a("v_readfirstlane_b32 s74, v%d\ns_mov_b32 s83, %d" % (T[1], spin))
        done()
        pend = []
        for j in range(ng):
            begin()
            n = n0 + j; r = slot(n)
            ta, tb = (T[0], T[1]) if j % 2 == 0 else (T[2], T[3])
            dots = []
            for k in range(8):
                dots.append("v_dot2_f32_bf16 v%d, v%d, v%d, %s" % (ta, r + k, Q + k, "0" if k == 0 else "v%d" % ta))
                if nh == 2:
                    dots.append("v_dot2_f32_bf16 v%d, v%d, v%d, %s" % (tb, r + k, Q + 8 + k, "0" if k == 0 else "v%d" % tb))
            step = 3 if nh == 2 else 2
            for i, dline in enumerate(dots):
                a(dline)
                if i % step == step - 1 and pend: a(pend.pop(0))
            while pend: a(pend.pop(0))
            done(n)
            s_ = sc[j]
            pend = [dpp("v_add_f32", s_, ta, ta, "row_ror:8")]
            if nh == 2: pend.append(dpp("v_add_f32", s_, tb, tb, "row_ror:8", 0xc))
            pend += [dpp("v_add_f32", s_, s_, s_, "quad_perm:[1,0,3,2]"), dpp("v_add_f32", s_, s_, s_, "quad_perm:[2,3,0,1]"), dpp("v_add_f32", s_, s_, s_, "row_half_mirror")]
        begin()
        while pend: a(pend.pop(0))
        if round_s:
            for s_ in sc: a("v_cvt_pk_bf16_f32 v%d, v%d, v%d" % (s_, s_, s_))
            for s_ in sc: a("v_and_b32 v%d, 0xffff0000, v%d" % (s_, s_))
        done(); begin()
        a("v_max3_f32 v%d, v%d, v%d, v%d" % (MC, sc[0], sc[1], sc[2]))
        i = 3
        while i + 1 < ng:
            a("v_max3_f32 v%d, v%d, v%d, v%d" % (MC, MC, sc[i], sc[i + 1])); i += 2
        if i < ng: a("v_max_f32 v%d, v%d, v%d" % (MC, MC, sc[i]))
        allrows("v_max_f32", MC, T[0])
        a("v_mul_f32 v%d, s82, v%d" % (MC, MC))
        a("v_and_b32 v%d, 8, v0\nv_lshlrev_b32 v%d, 2, v%d\ns_lshl_b32 s76, s3, 2\nv_add_u32 v%d, s76, v%d" % (T[3], T[3], T[3], T[3], T[3]))
        a("v_mov_b32 v%d, 0\nv_mov_b32 v%d, 1" % (T[1], T[2]))
        if ph == 1:
            a("s_mov_b64 exec, 1")
            a("ds_add_u32 v%d, v%d offset:%d" % (T[1], T[2], L_CNT + C_KD))
            a("s_mov_b64 exec, -1")
        done(); begin()
        for s_ in sc: a("v_fma_f32 v%d, v%d, s82, -v%d" % (s_, s_, MC))
        for s_ in sc: a("v_exp_f32 v%d, v%d" % (s_, s_))
        done(); begin()
        L_ = LS if ph == 0 else ACL
        a("v_add_f32 v%d, v%d, v%d" % (L_, sc[0], sc[1]))
        for s_ in sc[2:]: a("v_add_f32 v%d, v%d, v%d" % (L_, L_, s_))
        for s_ in sc: a("v_cvt_pk_bf16_f32 v%d, v%d, v%d" % (s_, s_, s_))
        allrows("v_add_f32", L_, T[0])
        if ph == 0:
            a("s_mov_b64 exec, 0x101")
            a("ds_write_b32 v%d, v%d offset:%d" % (T[3], MC, L_MW))
            a("ds_write_b32 v%d, v%d offset:%d" % (T[3], LS, L_LW))
            a("s_mov_b64 exec, -1")
            a("v_and_b32 v%d, 15, v0\nv_and_b32 v%d, 16, v0\nv_lshl_or_b32 v%d, v%d, 5, v%d" % (T[0], T[3], T[0], T[0], T[3]))
            a("v_lshrrev_b32 v%d, 5, v0\nv_lshl_or_b32 v%d, v%d, 13, v%d" % (T[3], T[0], T[3], T[0]))
            a("s_lshl_b32 s76, s3, 10\nv_add_u32 v%d, s76, v%d" % (T[0], T[0]))
        else:
            for k in range(1, 4): a("v_mov_b32 v%d, 0" % (ACL + k))
        done()
        for j in range(ng):
            n = n0 + ng + j; r = slot(n)
            begin()
            pre = ["v_and_b32 v%d, v%d, v%d" % (E + k, sc[j], M + k) for k in range(4)]
            a("v_mfma_f32_16x16x32_bf16 v[%d:%d], v[%d:%d], v[%d:%d], %s" % (X, X + 3, E, E + 3, r, r + 3, "0" if j == 0 else "v[%d:%d]" % (X, X + 3)))
            a("v_mfma_f32_16x16x32_bf16 v[%d:%d], v[%d:%d], v[%d:%d], %s" % (X + 4, X + 7, E, E + 3, r + 4, r + 7, "0" if j == 0 else "v[%d:%d]" % (X + 4, X + 7)))
            if ph == 0 and j == ng - 1:
                for c in range(2):
                    a("ds_write_b128 v%d, v[%d:%d] offset:%d" % (T[0], X + c * 4, X + c * 4 + 3, L_ACCB + c * 512))
                a("s_mov_b64 exec, 1")
                a("ds_add_u32 v%d, v%d offset:%d" % (T[1], T[2], L_CNT + C_VDB))
                a("s_mov_b64 exec, -1")
            done(n, pre)
        a = real

    phase(0, 0, 8)
    phase(1, 16, NS)

    def acquire(lab, mid=None):
        a("s_mov_b64 exec, 1")
        a("v_lshrrev_b32 v%d, 3, v%d\nv_lshlrev_b32 v%d, 2, v%d" % (T[1], VP, T[1], T[1]))
        a("s_cmp_eq_u32 s80, 0\ns_cbranch_scc1 L_rd%s" % lab)
        a("L_tk%s:" % lab)
        a("v_readfirstlane_b32 s69, v%d\nv_add_u32 v%d, 1, v%d\nv_mov_b32 v%d, s80" % (TK[0] + 1, TK[0], TK[0], T[2]))
        a("s_cmp_lg_u32 s69, s74\ns_cbranch_scc1 L_tr%s" % lab)
        a("L_tg%s:" % lab)
        a("ds_write_b32 v%d, v%d" % (T[2], TK[0]))
        a("L_rd%s:" % lab)
        a("ds_read_b32 v%d, v%d offset:%d" % (T[2], T[1], L_LIST))
        a("v_readfirstlane_b32 s77, v%d\nv_readfirstlane_b32 s80, v%d" % (VP, T[1]))
        if mid:
            a("s_mov_b64 exec, -1"); mid(); a("s_mov_b64 exec, 1")
        a("s_and_b32 s77, s77, 7\ns_add_u32 s80, s80, %d" % (L_LIST + 4))
        a("L_sw%s:" % lab)
        a("s_waitcnt lgkmcnt(0)\nv_readfirstlane_b32 s68, v%d" % T[2])
        a("s_nop 0\ns_sub_u32 s68, s68, 1\ns_cbranch_scc1 L_sp%s" % lab)
        a("L_sg%s:" % lab)
        if WOL is not None and WOL >= 0: a("ds_max_u32 v%d, v%d offset:%d" % (AD + 1, T[2], L_CNT + C_LS))
        if NS == 15:
            a("s_min_u32 s76, s68, %d\ns_lshl_b32 s76, s76, 6\ns_add_u32 s76, s76, s77\ns_lshl_b32 s76, s76, 12" % NT_)
        elif LAY and NS == 14:
            a("s_min_u32 s76, s68, %d\ns_lshr_b32 s69, s76, 1\ns_lshl_b32 s69, s69, 6\ns_add_u32 s69, s69, s77\ns_and_b32 s76, s76, 1\ns_lshl1_add_u32 s76, s69, s76\ns_lshl_b32 s76, s76, 11" % NT_)
        elif LAY:
            a("s_bfe_u32 s69, s68, 0x40001\ns_lshr_b32 s76, s68, 5\ns_lshl3_add_u32 s69, s69, s76\ns_lshl3_add_u32 s69, s69, s77\ns_and_b32 s76, s68, 1\ns_lshl1_add_u32 s76, s69, s76\ns_lshl_b32 s76, s76, 11")
            a("s_cmp_ge_u32 s68, %d\ns_cselect_b32 s76, 0x400000, s76" % NT_)
        else:
            a("s_min_u32 s76, s68, %d\ns_lshr_b32 s69, s76, 1\ns_lshl3_add_u32 s69, s69, s77\ns_and_b32 s76, s76, 1\ns_lshl1_add_u32 s76, s69, s76\ns_lshl_b32 s76, s76, 11" % NT_)
        a("s_cmp_ge_u32 s68, %d\ns_cselect_b32 s69, 9, s77\ns_cmp_eq_u32 s69, %d\ns_cselect_b32 s80, s80, 0" % (NT_, TH))
        request()
        a("v_add_u32 v%d, s76, v%d" % (TV, OFF))
    retries = []
    def tload(b, kv, tv=TV, which=(0, 1)):
        r = TB[b] + 8 * kv; srd = 60 + 4 * kv
        if 0 in which: a("buffer_load_dwordx4 v[%d:%d], v%d, s[%d:%d], 0 offen%s" % (r, r + 3, tv, srd, srd + 3, NT))
        if 1 in which: a("buffer_load_dwordx4 v[%d:%d], v%d, s[%d:%d], 0 offen offset:256%s" % (r + 4, r + 7, tv, srd, srd + 3, NT))

    assert DW == 3
    TF = max(NT_ - FIN, 0)
    def early(b, lab):
        if not FIN: return
        a("s_cmp_lt_u32 s68, %d\ns_cbranch_scc1 L_fa%s" % (TF, lab))
        tload(b, 0, which=(1,)); tload(b, 1)
        a("L_fa%s:" % lab)
    consumed = 0; budget = 0; dyn_stage = 0
    for (need, pre, lines) in chunks:
        def can_issue(): return st["issued"] < NL and prev_in_slot((st["issued"] + G - 1) // 2) < consumed
        for l in pre: a(l)
        while can_issue() and ((need is not None and 2 * need + 2 > st["landed"] and st["issued"] + G - Wn(st["issued"]) <= 2 * need + 2) or (budget > 0 and budget + len(lines) > BUD) or st["issued"] - 32 < RAMP):
            issue_event(); budget = 0
        if need == NP - 2 and NT_: claim(C_PC)
        if need == NP - 1 and NT_:
            assert st["landed"] == NL - 2
            if FIN: a("s_waitcnt vmcnt(5)\ns_cmp_ge_u32 s68, %d\ns_cbranch_scc1 L_fbp" % TF)
            wait_landed(2 * need + 1); tload(0, 0, which=(1,)); extra["n"] += 1
        if need is not None: wait_landed(2 * need + 2)
        if need == NP - 2 and dbgt == 2: a("s_memrealtime s[70:71]")
        if need == NP - 2 and NT_:
            assert st["issued"] == NL and st["landed"] > st["at"]
            a("s_waitcnt lgkmcnt(0)")
            acquire("p"); retries.append("p")
            tload(0, 0, which=(0,)); extra["n"] += 2
            early(0, "p")
        if need == NP - 1 and NT_:
            tload(0, 1, which=(0,))
            if FIN: a("L_fbp:")
        for l in lines: a(l)
        budget += len(lines) + len(pre)
        if need is not None: consumed = need + 1
    assert st["issued"] == NL
    if dbgt == 2: a("s_mov_b32 s72, 0")
    if NT_:
        a("s_cmp_ge_u32 s68, %d\ns_cbranch_scc1 L_dend" % NT_)
        if FIN: a("s_cmp_ge_u32 s68, %d\ns_cbranch_scc1 L_dloop" % TF)
        a("s_waitcnt vmcnt(2)"); tload(0, 1, which=(1,))
        a.flush()
        a("L_dloop:")
    for b in range(2 if NT_ else 0):
        r = TB[b]; lab = "d%d" % b
        if dbgt == 2: a("s_add_u32 s72, s72, 1")
        claim(C_PC)
        a("s_waitcnt vmcnt(2) lgkmcnt(0)")
        def dots():
            for k in range(8):
                a("v_dot2_f32_bf16 v%d, v%d, v%d, %s" % (SD, r + k, QA + k, "0" if k == 0 else "v%d" % SD))
        acquire(lab, dots if OVL else None); retries.append(lab)
        tload(1 - b, 0, which=(0,))
        early(1 - b, lab)
        if not OVL: dots()
        for ctl in ("row_ror:8", "quad_perm:[1,0,3,2]", "quad_perm:[2,3,0,1]", "row_half_mirror"):
            a(dpp("v_add_f32", SD, SD, SD, ctl))
        if round_s: a("v_cvt_pk_bf16_f32 v%d, v%d, v%d\nv_and_b32 v%d, 0xffff0000, v%d" % (SD, SD, SD, SD, SD))
        a("v_fma_f32 v%d, v%d, s82, -v%d" % (T[0], SD, MC))
        a("v_cmp_lt_f32 vcc, 0, v%d\ns_cbranch_vccnz L_rs%d" % (T[0], b))
        a("L_rb%d:" % b)
        a("v_exp_f32 v%d, v%d\nv_cvt_pk_bf16_f32 v%d, v%d, v%d" % (T[0], T[0], T[0], T[0], T[0]))
        for k in range(4): a("v_and_b32 v%d, v%d, v%d" % (E + k, T[0], M + k))
        a("v_mfma_f32_16x16x32_bf16 v[%d:%d], v[%d:%d], v[%d:%d], v[%d:%d]" % (ACL, ACL + 3, E, E + 3, ONES, ONES + 3, ACL, ACL + 3))
        if FIN: a("s_waitcnt vmcnt(5)\ns_cmp_ge_u32 s68, %d\ns_cbranch_scc1 L_fb%s" % (TF, lab))
        a("s_waitcnt vmcnt(3)"); tload(1 - b, 0, which=(1,))
        a("s_waitcnt vmcnt(3)"); tload(1 - b, 1, which=(0,))
        if FIN: a("L_fb%s:" % lab)
        a("v_mfma_f32_16x16x32_bf16 v[%d:%d], v[%d:%d], v[%d:%d], v[%d:%d]" % (X, X + 3, E, E + 3, r + 8, r + 11, X, X + 3))
        a("v_mfma_f32_16x16x32_bf16 v[%d:%d], v[%d:%d], v[%d:%d], v[%d:%d]" % (X + 4, X + 7, E, E + 3, r + 12, r + 15, X + 4, X + 7))
        a("s_cmp_ge_u32 s68, %d\ns_cbranch_scc1 L_dend" % NT_)
        if FIN: a("s_cmp_ge_u32 s68, %d\ns_cbranch_scc1 %s" % (TF, "L_dl1" if b == 0 else "L_dloop"))
        a("s_waitcnt vmcnt(2)"); tload(1 - b, 1, which=(1,))
        if FIN and b == 0: a("L_dl1:")
    if NT_:
        a("s_branch L_dloop")
        a("L_dend:")
        a("s_nop 2")
    a("s_lshl_b32 s76, s3, 3\nv_mov_b32 v%d, s76\nv_mov_b32 v%d, v%d" % (T[0], LS, ACL))
    a("s_mov_b32 s53, 0x03020105\ns_mov_b32 s54, 0x03020106\ns_mov_b32 s55, 0x03020107")
    if CK: a("s_mov_b32 s56, 0xaaaaaaaa\ns_mov_b32 s57, 0xaaaaaaaa")
    a("s_mov_b32 exec_hi, 0")
    for c in range(2):
        a("ds_write_b128 v%d, v[%d:%d] offset:%d" % (WA, X + c * 4, X + c * 4 + 3, L_ACCA + c * 512))
    a("s_mov_b64 exec, 1")
    a("ds_write_b64 v%d, v[%d:%d] offset:%d" % (T[0], MC, LS, L_MW + 64))
    a("ds_add_rtn_u32 v%d, v%d, v%d offset:%d" % (T[3], AD + 1, AD, L_CNT + C_VDA))
    a("s_mov_b64 exec, -1")
    G0 = RING; ML = RING + 32
    a("L_mrg:")
    for k in range(4):
        a("ds_read_b128 v[%d:%d], v%d offset:%d" % (ML + 4 * k, ML + 4 * k + 3, AD + 1, L_MW + 64 + 16 * k))
    if not CK: a("ds_read_b32 v%d, v%d offset:%d" % (T[2], AD + 1, L_CNT + C_CLR))
    for w in range(8):
        a("ds_read_b128 v[%d:%d], v%d offset:%d" % (G0 + 4 * w, G0 + 4 * w + 3, RA, L_ACCA + w * 1024))
    a("s_waitcnt lgkmcnt(8)")
    mw = [ML + 2 * w for w in range(8)]
    a("v_max3_f32 v%d, v%d, v%d, v%d\nv_max3_f32 v%d, v%d, v%d, v%d" % (MC, mw[0], mw[1], mw[2], T[0], mw[3], mw[4], mw[5]))
    a("v_readfirstlane_b32 s79, v%d" % T[3])
    if not CK: a("v_readfirstlane_b32 s78, v%d" % T[2])
    a("v_max3_f32 v%d, v%d, v%d, v%d\nv_max_f32 v%d, v%d, v%d" % (MC, MC, mw[6], mw[7], MC, MC, T[0]))
    a("s_cmp_lg_u32 s79, 7\ns_cbranch_scc1 %s" % ("L_sst" if dbgt >= 2 else "L_end"))
    for w in range(8): a("v_sub_f32 v%d, v%d, v%d" % (mw[w], mw[w], MC))
    for w in range(8): a("v_exp_f32 v%d, v%d" % (mw[w], mw[w]))
    if not CK: a("s_cmp_lg_u32 s78, 2\ns_cbranch_scc1 L_mwait")
    a("v_mul_f32 v%d, v%d, v%d\nv_mul_f32 v%d, v%d, v%d" % (LS, mw[0], mw[0] + 1, T[0], mw[1], mw[1] + 1))
    for w in (2, 4, 6):
        a("v_fmac_f32 v%d, v%d, v%d\nv_fmac_f32 v%d, v%d, v%d" % (LS, mw[w], mw[w] + 1, T[0], mw[w + 1], mw[w + 1] + 1))
    a("v_add_f32 v%d, v%d, v%d" % (LS, LS, T[0]))
    a("v_rcp_f32 v%d, v%d\nv_log_f32 v%d, v%d" % (T[0], LS, LS, LS))
    if CK: a("v_add_f32 v%d, v%d, v%d\nv_xor_b32 v%d, s74, v%d" % (LS, MC, LS, MC, LS))
    a("s_waitcnt lgkmcnt(0)")
    for k in (0, 2):
        a("v_pk_mul_f32 v[%d:%d], v[%d:%d], v[%d:%d] op_sel_hi:[1,0]" % (G0 + k, G0 + k + 1, G0 + k, G0 + k + 1, mw[0], mw[0] + 1))
        a("v_pk_mul_f32 v[%d:%d], v[%d:%d], v[%d:%d] op_sel_hi:[1,0]" % (G0 + 16 + k, G0 + 17 + k, G0 + 16 + k, G0 + 17 + k, mw[4], mw[4] + 1))
    for w in (1, 2, 3):
        for base in (0, 4):
            for k in (0, 2):
                d = G0 + 4 * base + k; s0 = G0 + 4 * (base + w) + k
                a("v_pk_fma_f32 v[%d:%d], v[%d:%d], v[%d:%d], v[%d:%d] op_sel_hi:[1,0,1]" % (d, d + 1, s0, s0 + 1, mw[base + w], mw[base + w] + 1, d, d + 1))
    for k in (2, 0):
        a("v_pk_add_f32 v[%d:%d], v[%d:%d], v[%d:%d]" % (G0 + k, G0 + k + 1, G0 + k, G0 + k + 1, G0 + 16 + k, G0 + 17 + k))
    for k in (2, 0):
        a("v_pk_mul_f32 v[%d:%d], v[%d:%d], v[%d:%d] op_sel_hi:[1,0]" % (G0 + k, G0 + k + 1, G0 + k, G0 + k + 1, T[0], T[0] + 1))
    for k in (2, 0, 1):
        a("v_perm_b32 v%d, v%d, v%d, s%d" % (G0 + k, G0 + 3, G0 + k, 53 + k))
    if CK:
        a("v_bitop3_b32 v%d, v%d, v%d, v%d %s" % (T[2], G0, G0 + 1, G0 + 2, X3))
        a("v_xor_b32 v%d, v%d, v%d" % (MC, MC, T[2]))
        a(dpp("v_xor_b32", MC, T[2], MC, "quad_perm:[1,0,3,2]"))
        a("v_cndmask_b32 v%d, v%d, v%d, s[56:57]" % (G0 + 3, LS, MC))
    else:
        a("v_add_f32 v%d, v%d, v%d" % (G0 + 3, MC, LS))
    a("buffer_store_dwordx4 v[%d:%d], v%d, s[48:51], s75 offen sc1" % (G0, G0 + 3, RA))
    if dbgt >= 2:
        a("L_sst:")
        a("s_mov_b64 exec, -1\ns_memrealtime s[100:101]\ns_waitcnt lgkmcnt(0)\nv_mov_b32 v100, 0\nv_mov_b32 v101, 0")
        for i, r in enumerate([90, 84, 86, 88, 94, 96, 98, 70, 83, 100, 72]):
            a("v_writelane_b32 v100, s%d, %d" % (r, i))
        a("s_lshl3_add_u32 s76, s2, s3\ns_add_u32 s76, s76, 256\ns_lshl_b32 s76, s76, 7\ns_add_u32 s76, s76, %d\ns_add_u32 s52, s76, s30\ns_addc_u32 s53, s31, 0\ns_mov_b32 s54, 128\ns_mov_b32 s55, 0x20000" % STAMP_OFF)
        a("v_lshlrev_b32 v102, 3, v0\nbuffer_store_dwordx2 v[100:101], v102, s[52:55], 0 offen")
    a("s_endpgm")
    a.flush()
    if not CK:
        a("L_mwait:")
        a("s_waitcnt lgkmcnt(0)\ns_sleep 4\ns_sub_u32 s83, s83, 1\ns_cbranch_scc0 L_mrg\ns_endpgm")
    for b in range(2 if NT_ else 0):
        a.flush()
        a("L_rs%d:" % b)
        a("v_max_f32 v%d, 0, v%d" % (T[1], T[0]))
        allrows("v_max_f32", T[1], T[2])
        a("v_add_f32 v%d, v%d, v%d\nv_sub_f32 v%d, v%d, v%d" % (MC, MC, T[1], T[0], T[0], T[1]))
        a("v_sub_f32 v%d, 0, v%d\nv_exp_f32 v%d, v%d" % (T[1], T[1], T[1], T[1]))
        for k in range(8): a("v_mul_f32 v%d, v%d, v%d" % (X + k, X + k, T[1]))
        a("v_mul_f32 v%d, v%d, v%d" % (ACL, ACL, T[1]))
        a("s_branch L_rb%d" % b)
    for lab in retries:
        a.flush()
        a("L_tr%s:" % lab)
        a("v_mov_b32 v%d, -1\ns_sub_u32 s83, s83, 1\ns_cbranch_scc1 L_tg%s" % (TK[0], lab))
        a("s_sleep 8")
        a("global_atomic_add_x2 v[%d:%d], v%d, v[%d:%d], s[30:31] sc0 sc1" % (TK[0], TK[0] + 1, AV, AD, AD + 1))
        a("s_waitcnt vmcnt(0)\ns_branch L_tk%s" % lab)
        a("L_sp%s:" % lab)
        a("s_sub_u32 s83, s83, 1\ns_cbranch_scc1 L_sg%s" % lab)
        a("s_sleep %d\nds_read_b32 v%d, v%d offset:%d\ns_branch L_sw%s" % (SPS, T[2], T[1], L_LIST, lab))

    a.flush()
    a("L_helper:")
    a("s_setprio %d" % HP)
    W = 104
    W2 = 64
    XV = 16; AC = 20
    a("v_mov_b32 v4, 0\nv_mov_b32 v5, 0\nv_mov_b32 v6, 0\nv_mov_b32 v7, 0")
    a("v_lshlrev_b32 v1, 4, v0")
    a("v_and_b32 v3, 48, v1\nds_write_b128 v3, v[4:7] offset:%d" % L_CNT)
    a("v_lshlrev_b32 v10, 3, v0\nds_write_b64 v10, v[4:5] offset:%d" % L_LIST)
    if wqm:
        XV = 16; AC = 24; PT = 32
        a("v_lshrrev_b32 v8, 3, v0\nv_mul_u32_u24 v8, 14, v8\ns_mul_i32 s76, s3, 112\nv_add_u32 v8, s76, v8")
        a("v_lshlrev_b32 v9, 1, v8\nv_and_b32 v11, 0x70, v1\nv_lshl_or_b32 v8, v8, 13, v11")
        if wqm == 2:
            a("s_lshr_b32 s76, s2, 2\ns_lshl_b32 s76, s76, 7")
        else:
            a("s_lshr_b32 s76, s2, 4\ns_lshl_b32 s76, s76, 9")
            a("s_and_b32 s77, s2, 3\ns_lshl_b32 s77, s77, 7\ns_add_u32 s76, s76, s77")
        for i in range(1, 14): a("s_mov_b32 s%d, %d" % (52 + i, i * 8192))
        a("s_sub_u32 s34, 3670016, s76\ns_bitcmp1_b32 s2, " + ("0" if wqm == 2 else "3") + "\ns_cselect_b32 s34, 0, s34\ns_mov_b32 s35, 0x20000\ns_mov_b32 s38, 896\ns_mov_b32 s39, 0x20000")
    else:
        a("v_lshrrev_b32 v8, 2, v0\ns_lshl_b32 s76, s3, 4\nv_add_u32 v8, s76, v8")
        a("v_lshlrev_b32 v9, 4, v8")
        a("v_lshl_or_b32 v8, v8, 16, v3")
        a("s_lshr_b32 s76, s2, 4\ns_lshl_b32 s76, s76, 9")
        a("s_and_b32 s77, s2, 3\ns_lshl_b32 s77, s77, 7\ns_add_u32 s76, s76, s77")
        a("s_bfe_u32 s77, s2, 0x10003\ns_lshl_b32 s77, s77, 6\ns_add_u32 s76, s76, s77")
        for i in range(1, 8): a("s_mov_b32 s%d, %d" % (52 + i, i * 8192))
        a("s_sub_u32 s34, 3670016, s76\ns_mov_b32 s35, 0x20000\ns_mov_b32 s38, 896\ns_mov_b32 s39, 0x20000")
    a("s_mov_b32 s50, 0x%x\ns_mov_b32 s51, 0x20000" % WS_END)
    if wqx:
        a("v_lshrrev_b32 v8, 4, v0\ns_mul_i32 s77, s3, 28\nv_add_u32 v8, s77, v8\nv_and_b32 v11, 15, v0\nv_lshlrev_b32 v11, 4, v11\nv_lshl_or_b32 v8, v8, 13, v11")
        a("s_lshr_b32 s76, s2, 5\ns_lshl_b32 s76, s76, 10\ns_and_b32 s77, s2, 3\ns_lshl_b32 s77, s77, 8\ns_add_u32 s76, s76, s77")
        a("s_bfe_u32 s77, s2, 0x20003\ns_mul_i32 s77, s77, %d\ns_add_u32 s92, s76, s77" % (112 * 8192))
        for i in range(1, 7): a("s_mov_b32 s%d, %d" % (52 + i, i * 32768))
        a("s_mov_b32 s59, 0\ns_sub_u32 s34, 3670016, s92")
        a("s_lshr_b32 s76, s2, 4\ns_lshl_b32 s76, s76, 9")
        a("s_and_b32 s77, s2, 3\ns_lshl_b32 s77, s77, 7\ns_add_u32 s76, s76, s77")
        a("s_bfe_u32 s77, s2, 0x10003\ns_lshl_b32 s77, s77, 6\ns_add_u32 s76, s76, s77")
    a("s_bitcmp1_b32 s2, %d" % (1 if wqm == 2 else 2))
    a("s_waitcnt lgkmcnt(0)")
    if not LB or "helper" in dis: a("s_barrier")
    if "helper" in dis:
        a("v_mov_b32 v6, 0\nv_mov_b32 v7, 2\nds_write_b32 v6, v7 offset:%d\nds_write_b32 v6, v7 offset:%d" % (L_CNT + C_QRDY, L_CNT + C_CLR))
        a("s_lshl_b32 s84, s2, 7\ns_add_u32 s84, s84, %d\ns_add_u32 s84, s84, s30\ns_addc_u32 s85, s31, 0\ns_mov_b32 s86, 128\ns_mov_b32 s87, 0x20000" % STAMP_OFF)
        a("v_mov_b32 v16, s90\nv_mov_b32 v17, 0\nbuffer_store_dwordx2 v[16:17], v6, s[84:87], 0 offen\ns_endpgm")
    a("s_cselect_b32 s32, s20, s10\ns_cselect_b32 s33, s21, s11\ns_cselect_b32 s77, 0x2000, 0")
    a("s_add_u32 s32, s32, s%d\ns_addc_u32 s33, s33, 0\ns_mov_b32 s36, s4\ns_mov_b32 s37, s5" % (92 if wqx else 76))
    a("buffer_load_dwordx4 v[%d:%d], v9, s[36:39], 0 offen" % (XV, XV + 3))
    def wql(i): a("buffer_load_dwordx4 v[%d:%d], v8, s[32:35], %s offen%s" % (W + 4 * i, W + 4 * i + 3, "0" if i == 0 else "s%d" % (52 + i), NTW))
    if wqm: a("buffer_load_dwordx3 v[%d:%d], v9, s[36:39], 0 offen offset:16" % (XV + 4, XV + 6))
    for i in range(14 if wqm else WQW):
        if wqx == 2 or (wqx and i == 7): continue
        wql(i)
    a("s_load_dword s70, s[30:31], 0x%x" % WS_EPOCH)
    if LB: a("s_barrier")
    a("s_add_u32 s75, s76, s77\ns_lshl_b32 s75, s75, 1")
    a("s_mov_b32 s48, s30\ns_mov_b32 s49, s31")
    a("s_lshl_b32 s74, s2, 12")
    a("s_mov_b32 s76, 0x05040100\ns_mov_b32 s77, 0x07060302")
    if wqm:
        a("v_lshrrev_b32 v4, 4, v0\nv_lshlrev_b32 v4, 3, v4\nv_lshl_or_b32 v4, v11, 1, v4\ns_lshl_b32 s78, s3, 8\nv_add_u32 v4, s78, v4")
        a("v_and_b32 v5, 31, v0\nv_lshlrev_b32 v5, 3, v5\nv_add_u32 v5, %d, v5" % L_QP)
    else:
        a("v_lshrrev_b32 v4, 4, v0\ns_lshl_b32 s78, s3, 2\nv_add_u32 v4, s78, v4\nv_lshlrev_b32 v4, 7, v4\nv_lshl_or_b32 v4, v3, 1, v4")
        a("v_and_b32 v5, 31, v0\nv_lshlrev_b32 v5, 2, v5\nv_lshrrev_b32 v6, 5, v0\nv_lshl_or_b32 v5, v6, 10, v5")
        a("v_add_u32 v5, %d, v5" % L_QP)
    a("v_mov_b32 v6, 0\nv_mov_b32 v7, 1\nv_lshlrev_b32 v2, 2, v0")
    if dbgt: a("v_mov_b32 v63, 0\nv_writelane_b32 v63, s90, 0")
    a("s_lshr_b32 s72, s%d, 5\ns_lshl_b32 s72, s72, 11\ns_add_u32 s72, s72, 0x4000" % (2 if wqx else 92))
    a("s_lshr_b32 s73, s93, 4\ns_lshl_b32 s73, s73, 10")
    a("v_lshlrev_b32 v10, 3, v0")
    for i in range(WQW, 8):
        a("s_waitcnt vmcnt(%d)" % (WQW - 1)); wql(i)
    a("s_setprio 3")
    if wqm:
        for k in range(7):
            a("s_waitcnt vmcnt(%d)" % (12 - 2 * k))
            w0 = W + 8 * k; w1 = w0 + 4
            for d in range(4):
                a("v_perm_b32 v%d, v%d, v%d, s76" % (PT + 2 * d, w1 + d, w0 + d))
                a("v_perm_b32 v%d, v%d, v%d, s77" % (PT + 1 + 2 * d, w1 + d, w0 + d))
            for e in range(8):
                a("v_dot2_f32_bf16 v%d, v%d, v%d, %s" % (AC + e, PT + e, XV + k, "0" if k == 0 else "v%d" % (AC + e)))
        a("s_waitcnt lgkmcnt(0)")
        stamp(1)
        for j in range(4): a("v_permlane32_swap_b32 v%d, v%d" % (AC + j, AC + j + 4))
        for j in range(4): a("v_add_f32 v%d, v%d, v%d" % (AC + j, AC + j, AC + j + 4))
        for j in range(2): a("v_permlane16_swap_b32 v%d, v%d" % (AC + j, AC + j + 2))
        for j in range(2): a("v_add_f32 v%d, v%d, v%d" % (AC + j, AC + j, AC + j + 2))
        for j in range(2): a(dpp("v_add_f32", AC + j, AC + j, AC + j, "row_ror:8"))
        a("ds_write_b64 v4, v[%d:%d] offset:%d" % (AC, AC + 1, L_QP))
        a("s_mov_b64 exec, 1")
        a("ds_add_rtn_u32 v9, v6, v7 offset:%d" % (L_CNT + C_QARR))
        a("s_mov_b64 exec, -1")
        a("ds_read2_b64 v[28:31], v5 offset0:0 offset1:32\nds_read2_b64 v[32:35], v5 offset0:64 offset1:96")
        a("s_waitcnt lgkmcnt(0)\nv_readfirstlane_b32 s71, v9")
        a("s_mul_i32 s70, s70, 0x9e3779b1\ns_add_u32 s70, s70, 0x7f4a7c15")
        a("s_cmp_lg_u32 s71, 3\ns_cbranch_scc1 L_h_wq")
        a("v_pk_add_f32 v[28:29], v[28:29], v[30:31]\nv_pk_add_f32 v[32:33], v[32:33], v[34:35]\nv_pk_add_f32 v[28:29], v[28:29], v[32:33]")
        a("v_cvt_pk_bf16_f32 v28, v28, v29\nv_mov_b32 v29, s70")
        a("s_bitcmp1_b32 s2, %d\ns_cselect_b32 exec_lo, 0, -1\ns_mov_b32 exec_hi, 0" % (0 if wqm == 2 else 3))
        a("buffer_store_dwordx2 v[28:29], v10, s[48:51], s75 offen sc1")
    else:
        if dbgt == 3:
            a("s_waitcnt vmcnt(8)"); stamp(14)
            a("s_waitcnt vmcnt(7)"); stamp(15)
        a("s_waitcnt vmcnt(0) lgkmcnt(0)")
        stamp(1)
    if not wqm:
        for k in range(4):
            w0 = W + 8 * k; w1 = w0 + 4
            for d in range(4):
                a("v_perm_b32 v%d, v%d, v%d, s76" % (28 + 2 * d, w1 + d, w0 + d))
                a("v_perm_b32 v%d, v%d, v%d, s77" % (29 + 2 * d, w1 + d, w0 + d))
            for e in range(8):
                a("v_dot2_f32_bf16 v%d, v%d, v%d, %s" % (AC + e, 28 + e, XV + k, "0" if k == 0 else "v%d" % (AC + e)))
        for e in range(8): a(dpp("v_add_f32", AC + e, AC + e, AC + e, "row_ror:4"))
        for e in range(8): a(dpp("v_add_f32", AC + e, AC + e, AC + e, "row_ror:8"))
        a("s_mov_b32 exec_lo, 0x000f000f\ns_mov_b32 exec_hi, 0x000f000f")
        a("ds_write_b128 v4, v[%d:%d] offset:%d" % (AC, AC + 3, L_QP))
        a("ds_write_b128 v4, v[%d:%d] offset:%d" % (AC + 4, AC + 7, L_QP + 16))
        a("s_mov_b64 exec, 1")
        a("ds_add_rtn_u32 v9, v6, v7 offset:%d" % (L_CNT + C_QARR))
        a("s_mov_b64 exec, -1")
        for i in range(4):
            a("ds_read2_b32 v[%d:%d], v5 offset0:%d offset1:%d" % (28 + 2 * i, 29 + 2 * i, 64 * i, 64 * i + 32))
        a("s_waitcnt lgkmcnt(0)\nv_readfirstlane_b32 s71, v9")
        a("s_mul_i32 s70, s70, 0x9e3779b1\ns_add_u32 s70, s70, 0x7f4a7c15")
        a("s_cmp_lg_u32 s71, 3\ns_cbranch_scc1 L_h_wq")
        a("v_add_f32 v28, v28, v29\nv_add_f32 v30, v30, v31\nv_add_f32 v32, v32, v33\nv_add_f32 v34, v34, v35")
        a("v_add_f32 v28, v28, v30\nv_add_f32 v32, v32, v34\nv_add_f32 v28, v28, v32")
        a("v_mov_b32 v29, v28\nv_permlane32_swap_b32 v29, v28\nv_add_f32 v28, v28, v29")
        a("v_mov_b32_dpp v29, v28 quad_perm:[1,0,3,2] row_mask:0xf bank_mask:0xf")
        a("v_cvt_pk_bf16_f32 v28, v28, v29\nv_mov_b32 v29, s70")
        a("s_mov_b32 exec_lo, 0x55555555\ns_mov_b32 exec_hi, 0")
        a("buffer_store_dwordx2 v[28:29], v2, s[48:51], s75 offen sc1")
    a("s_mov_b64 exec, 0xffff")
    a("v_mov_b32 v30, 0\nv_mov_b32 v31, s70\nds_write_b32 v6, v31 offset:%d" % (L_CNT + C_TAG))
    a("s_cmp_ge_u32 s2, 16\ns_cbranch_scc1 L_h_noci")
    a("s_mul_i32 s76, s2, %d\ns_add_u32 s76, s76, %d" % (CSTR, WS_CNT))
    a("buffer_store_dwordx2 v[30:31], v10, s[48:51], s76 offen sc1")
    a("L_h_noci:")
    a("s_mov_b64 exec, -1")
    stamp(2)
    ldswait("prg", 6, 4, L_CNT + C_PRG, "ge", 4, slp=2)
    a("s_mov_b32 s83, %d" % spin)
    a("L_h_fw:")
    a("buffer_load_dwordx4 v[16:19], v1, s[48:51], s72 offen sc1")
    a("buffer_load_dwordx4 v[20:23], v1, s[48:51], s72 offen offset:1024 sc1")
    a("buffer_load_dwordx4 v[24:27], v1, s[48:51], s73 offen sc1")
    a("s_waitcnt vmcnt(0)")
    a("v_xor_b32 v4, s70, v17\nv_xor_b32 v5, s70, v19\nv_xor_b32 v8, s70, v21\nv_xor_b32 v9, s70, v23\nv_xor_b32 v11, s70, v25\nv_xor_b32 v12, s70, v27")
    a("v_or3_b32 v4, v4, v5, v8\nv_or3_b32 v9, v9, v11, v12\nv_or_b32 v4, v4, v9\nv_cmp_ne_u32 vcc, 0, v4")
    a("s_sub_u32 s83, s83, 1\ns_cbranch_scc1 L_h_fg")
    a("s_cbranch_vccnz L_h_fw")
    a("L_h_fg:")
    a("ds_write2_b32 v10, v16, v18 offset0:0 offset1:1")
    a("ds_write2_b32 v10, v20, v22 offset0:128 offset1:129")
    a("v_add_u32 v10, 1024, v10")
    a("ds_write2_b32 v10, v24, v26 offset0:0 offset1:1")
    a("s_mov_b64 exec, 1")
    a("ds_write_b32 v6, v7 offset:%d" % (L_CNT + C_QRDY))
    a("s_mov_b64 exec, -1")
    stamp(3)
    a("L_h_wq:")
    ldswait("bq", 6, 4, L_CNT + C_QRDY, "lg", 0, slp=4)
    WB = 104; WA_ = 120; WC = 136
    G_ = 60; GA = 61; OV = 62; YV = 64; PV = 68; MLV = 69; PVA = 70; MLA = 71; EE = 32; ACC = 72
    a("v_lshrrev_b32 v12, 4, v0\nv_mul_u32_u24 v12, 896, v12\nv_and_b32 v13, 15, v0\nv_lshl_add_u32 v12, v13, 4, v12")
    a("s_and_b32 s78, s2, 3\ns_cmp_eq_u32 s78, 3\ns_cselect_b32 s77, 8, 0\nv_and_b32 v13, s77, v0\nv_lshl_or_b32 v12, v13, 24, v12")
    for rg in range(1, 4): a("v_add_u32 v%d, %d, v12" % (12 + rg, rg * 3584))
    a("s_lshr_b32 s76, s2, 2\ns_lshl2_add_u32 s69, s76, s71\ns_mul_i32 s76, s69, 14336\ns_lshl_b32 s78, s78, 8\ns_add_u32 s76, s76, s78")
    a("s_sub_u32 s34, 14336, s78\ns_mov_b32 s46, s34\ns_mov_b32 s47, 0x20000")
    a("s_add_u32 s32, s22, s76\ns_addc_u32 s33, s23, 0\ns_add_u32 s44, s12, s76\ns_addc_u32 s45, s13, 0")
    if "wo" not in dis:
        if WBL is None:
            for rg in range(4): a("buffer_load_dwordx4 v[%d:%d], v%d, s[32:35], 0 offen%s" % (WC + 4 * rg, WC + 4 * rg + 3, 12 + rg, NTW))
        if WOL is None:
            for rg in range(4): a("buffer_load_dwordx4 v[%d:%d], v%d, s[44:47], 0 offen%s" % (WA_ + 4 * rg, WA_ + 4 * rg + 3, 12 + rg, NTW))
    masks(8, 4, 5)
    for r in range(4): a("v_mov_b32 v%d, 0" % (ACC + r))
    a("v_lshrrev_b32 v4, 2, v0\nv_mul_u32_u24 v%d, %d, v4\nv_add_u32 v%d, v%d, v3" % (PVA, PAS, PVA, PVA))
    a("s_mov_b32 s63, 0x0c04000c")
    a("v_mul_u32_u24 v%d, %d, v0" % (YV, 4 * YS))
    a("v_and_b32 v4, 15, v0\nv_lshrrev_b32 v5, 4, v0\nv_lshlrev_b32 v5, 1, v5\nv_lshl_or_b32 v%d, v4, 20, v5" % OV)
    a("s_lshl_b32 s76, s71, 9\nv_add_u32 v%d, s76, v1" % (YV + 1))
    a("s_and_b32 s76, s2, 0xf0\ns_mul_i32 s76, s76, %d\ns_add_u32 s76, s76, %d" % (PAS, WS_PA))
    a("s_and_b32 s77, s69, 15\ns_lshl_b32 s77, s77, 6\ns_add_u32 s62, s76, s77")
    a("s_mul_i32 s68, s2, %d\ns_add_u32 s68, s68, %d" % (YS, WS_Y))
    a("s_add_u32 s56, s30, s68\ns_addc_u32 s57, s31, 0\ns_mov_b32 s58, 0\ns_mov_b32 s59, 0x20000")
    a("s_and_b32 s78, s2, 3\ns_cmp_eq_u32 s78, 3\ns_cselect_b32 s72, 0x00ff00ff, -1")
    a("s_lshr_b32 s73, s2, 1\ns_add_u32 s77, s73, 8\ns_cmp_ge_u32 s73, 104\ns_cselect_b32 s76, s77, s73")
    a("s_lshr_b32 s77, s76, 5\ns_mul_i32 s60, s77, %d\ns_and_b32 s78, s76, 31\ns_lshl4_add_u32 s60, s78, s60\ns_add_u32 s60, s60, %d" % (YS, WS_Y))
    a("s_lshl_b32 s77, s77, 8\ns_and_b32 s78, s76, 15\ns_lshl4_add_u32 s77, s78, s77\ns_bfe_u32 s78, s76, 0x10004\ns_lshl3_add_u32 s77, s78, s77")
    a("s_add_u32 s64, s26, s77\ns_addc_u32 s65, s27, 0\ns_mov_b32 s66, 0\ns_mov_b32 s67, 0x20000")
    a("s_and_b32 s76, s2, 1\ns_lshl_b32 s76, s76, 8\ns_or_b32 s73, s73, s76")
    a("s_mov_b32 s80, 0x03020105\ns_mov_b32 s81, 0x03020106\ns_mov_b32 s82, 0x03020107")
    if CK:
        if "bchain" in dis: a("s_branch L_t_a")
        a("s_cmp_lg_u32 s71, 2\ns_cbranch_scc1 L_b_rd")
    else:
        a("s_mov_b32 s40, s28\ns_mov_b32 s41, s29\ns_mov_b32 s42, 256\ns_mov_b32 s43, 0x20000")
        if "clear" in dis: a("v_mov_b32 v4, 2\nds_write_b32 v6, v4 offset:%d" % (L_CNT + C_CLR))
        if "bchain" in dis and "clear" in dis: a("s_branch L_t_a")
        if "clear" not in dis: a("s_cmp_lt_u32 s71, 2\ns_cbranch_scc1 L_h_clr")
        if "clear" in dis: a("s_cmp_lt_u32 s71, 2\ns_cbranch_scc1 L_b_rd")
        if "bchain" in dis: a("s_branch L_t_a")
        a("s_cmp_eq_u32 s71, 3\ns_cbranch_scc1 L_b_rd")
    a("s_mov_b32 s52, s24\ns_mov_b32 s53, s25\ns_mov_b32 s54, 896\ns_mov_b32 s55, 0x20000")
    a("buffer_load_dwordx4 v[16:19], v1, s[36:39], 0 offen")
    a("buffer_load_dwordx4 v[20:23], v1, s[52:55], 0 offen")
    a("s_waitcnt vmcnt(0)")
    for d in range(4):
        a("v_lshlrev_b32 v24, 16, v%d\nv_and_b32 v25, 0xffff0000, v%d\nv_lshlrev_b32 v26, 16, v%d\nv_and_b32 v27, 0xffff0000, v%d" % (16 + d, 16 + d, 20 + d, 20 + d))
        a("v_mul_f32 v24, v24, v26\nv_mul_f32 v25, v25, v27\nv_cvt_pk_bf16_f32 v24, v24, v25")
        a("v_lshlrev_b32 v25, 16, v24\nv_and_b32 v24, 0xffff0000, v24")
        if d == 0: a("v_add_f32 v28, v24, v25")
        else: a("v_add_f32 v28, v28, v24\nv_add_f32 v28, v28, v25")
    for ctl in ("quad_perm:[1,0,3,2]", "quad_perm:[2,3,0,1]", "row_half_mirror", "row_mirror"):
        a(dpp("v_add_f32", 28, 28, 28, ctl))
    allrows("v_add_f32", 28, 29)
    a("v_cvt_pk_bf16_f32 v28, v28, v28\nv_and_b32 v28, 0xffff0000, v28")
    a("v_mul_f32 v28, %s, v28\nv_exp_f32 v28, v28\nv_add_f32 v28, 1.0, v28\nv_rcp_f32 v28, v28" % f32(-math.log2(math.e)))
    a("v_cvt_pk_bf16_f32 v28, v28, v28\nv_and_b32 v%d, 0xffff0000, v28" % GA)
    a("v_sub_f32 v28, 1.0, v%d\nv_cvt_pk_bf16_f32 v28, v28, v28\nv_and_b32 v%d, 0xffff0000, v28" % (GA, G_))
    a("ds_write_b32 v6, v%d offset:%d" % (GA, L_CNT + C_G))
    ldswait("vb", 6, 4, L_CNT + C_VDB, "eq", 8, slp=4)
    stamp(4)
    a("s_mul_i32 s76, s%d, %d\ns_add_u32 s76, s76, %d" % (2 if wqx else 92, PBS, WS_PB))
    for h in range(2):
        a("ds_read_b128 v[16:19], v6 offset:%d\nds_read_b128 v[20:23], v6 offset:%d" % (L_MW + 32 * h, L_MW + 32 * h + 16))
        a("ds_read_b128 v[24:27], v6 offset:%d\nds_read_b128 v[28:31], v6 offset:%d" % (L_LW + 32 * h, L_LW + 32 * h + 16))
        a("s_waitcnt lgkmcnt(0)")
        mx = 88 + 4 * h
        a("v_max3_f32 v%d, v16, v17, v18\nv_max3_f32 v%d, v%d, v19, v20\nv_max3_f32 v%d, v%d, v21, v22\nv_max_f32 v%d, v%d, v23" % (mx, mx, mx, mx, mx, mx, mx))
        for w in range(8): a("v_sub_f32 v%d, v%d, v%d" % (16 + w, 16 + w, mx))
        for w in range(8): a("v_exp_f32 v%d, v%d" % (16 + w, 16 + w))
        a("v_mul_f32 v%d, v16, v24" % (mx + 2))
        for w in range(1, 8): a("v_fmac_f32 v%d, v%d, v%d" % (mx + 2, 16 + w, 24 + w))
        o = 96 + 4 * h
        for half in range(2):
            for w in range(4):
                a("ds_read_b128 v[%d:%d], v1 offset:%d" % (32 + 4 * w, 35 + 4 * w, L_ACCB + h * 8192 + (half * 4 + w) * 1024))
            a("s_waitcnt lgkmcnt(0)")
            for w in range(4):
                for k in range(4):
                    if half == 0 and w == 0: a("v_mul_f32 v%d, v%d, v16" % (o + k, 32 + k))
                    else: a("v_fmac_f32 v%d, v%d, v%d" % (o + k, 32 + 4 * w + k, 16 + half * 4 + w))
        if BH:
            a("v_cvt_pk_bf16_f32 v%d, v%d, v%d\nv_cvt_pk_bf16_f32 v%d, v%d, v%d\nv_lshlrev_b32 v5, 3, v0" % (o, o, o + 1, o + 1, o + 2, o + 3))
            a("buffer_store_dwordx2 v[%d:%d], v5, s[48:51], s76 offen offset:%d sc1" % (o, o + 1, 512 * h))
        else:
            a("buffer_store_dwordx4 v[%d:%d], v1, s[48:51], s76 offen offset:%d sc1" % (o, o + 3, 1024 * h))
    a("v_and_b32 v4, 1, v0\nv_cmp_eq_u32 vcc, 1, v4")
    a("v_cndmask_b32 v88, v88, v92, vcc\nv_cndmask_b32 v90, v90, v94, vcc\nv_mov_b32 v89, s70\nv_mov_b32 v91, s70")
    a("s_waitcnt vmcnt(0)")
    a("s_mov_b64 exec, 0xff")
    a("buffer_store_dwordx4 v[88:91], v1, s[48:51], s76 offen offset:%d sc1" % MLO)
    a("s_mov_b64 exec, -1")
    stamp(5)
    a("s_mov_b32 s79, 0x01010101")
    a("v_and_b32 v4, 31, v0\nv_mul_u32_u24 v%d, %d, v4" % (MLV, PBS))
    if BH:
        a("v_lshrrev_b32 v5, 3, v0\nv_mul_u32_u24 v%d, %d, v5\nv_and_b32 v16, 7, v0\nv_lshl_add_u32 v%d, v16, 4, v%d" % (PV, PBS, PV, PV))
        a("v_lshlrev_b32 v66, 4, v5")
        a("v_lshrrev_b32 v4, 3, v4\nv_lshl_or_b32 v67, v16, 2, v4\nv_lshlrev_b32 v67, 2, v67")
        a("v_lshrrev_b32 v5, 4, v0\nv_lshlrev_b32 v5, 3, v5\nv_lshl_or_b32 v71, v16, 5, v5")
    else:
        a("v_lshrrev_b32 v5, 4, v0\nv_mul_u32_u24 v%d, %d, v5\nv_and_b32 v16, 15, v0\nv_lshl_add_u32 v%d, v16, 4, v%d" % (PV, PBS, PV, PV))
        a("v_lshlrev_b32 v66, 5, v5")
        a("v_and_b32 v16, 3, v0\nv_lshrrev_b32 v4, 2, v4\nv_lshl_or_b32 v67, v16, 3, v4\nv_lshlrev_b32 v67, 2, v67")
    a("s_and_b32 s76, s2, 0xe0\ns_mul_i32 s76, s76, %d\ns_add_u32 s76, s76, %d" % (PBS, WS_PB))
    a("s_bfe_u32 s77, s2, 0x10004\ns_lshl4_add_u32 s54, s77, s76\ns_add_u32 s54, s54, %d" % MLO)
    a("s_and_b32 s77, s2, 28\ns_lshl_b32 s77, s77, %d\ns_add_u32 s52, s76, s77" % (5 if BH else 6))
    ldswait("kb", 6, 4, L_CNT + C_KD, "ge", BTRIG, slp=8)
    a("s_mov_b32 s83, %d" % spin)
    a("L_b_w:")
    if "clear" in dis or CK: a("v_mov_b32 v4, s79")
    else: a("buffer_load_dword v4, v2, s[40:43], 0 offen sc1")
    a("buffer_load_dwordx4 v[24:27], v%d, s[48:51], s54 offen sc1" % MLV)
    a("s_waitcnt vmcnt(0)")
    a("v_xor_b32 v4, s79, v4\nv_xor_b32 v5, s70, v25\nv_xor_b32 v16, s70, v27")
    a("v_or3_b32 v4, v4, v5, v16\nv_cmp_ne_u32 vcc, 0, v4")
    a("s_sub_u32 s83, s83, 1\ns_cbranch_scc1 L_b_g")
    a("s_cbranch_vccz L_b_g\ns_sleep 32\ns_branch L_b_w")
    a("L_b_g:")
    for i in range(4 if BH else 8):
        a("buffer_load_dwordx4 v[%d:%d], v%d, s[48:51], s52 offen sc1" % (28 + 4 * i, 31 + 4 * i, PV))
        if i < 7: a("s_add_u32 s52, s52, %d" % ((8 if BH else 4) * PBS))
    a("v_mov_b32 v4, v24")
    for ctl in ("quad_perm:[1,0,3,2]", "quad_perm:[2,3,0,1]", "row_half_mirror", "row_mirror"):
        a(dpp("v_max_f32", 4, 4, 4, ctl))
    allrows("v_max_f32", 4, 5)
    a("v_sub_f32 v24, v24, v4\nv_exp_f32 v24, v24\nv_mul_f32 v26, v26, v24")
    for ctl in ("quad_perm:[1,0,3,2]", "quad_perm:[2,3,0,1]", "row_half_mirror", "row_mirror"):
        a(dpp("v_add_f32", 26, 26, 26, ctl))
    a("v_mov_b32 v5, v26\nv_permlane16_swap_b32 v5, v26\nv_add_f32 v26, v26, v5")
    a("v_rcp_f32 v26, v26\nv_mul_f32 v24, v24, v%d\nv_mul_f32 v24, v24, v26" % G_)
    a("ds_write_b32 v67, v24 offset:%d" % L_ACCB)
    if BH:
        a("ds_read_b128 v[16:19], v66 offset:%d" % L_ACCB)
        a("s_waitcnt vmcnt(0) lgkmcnt(0)")
        AC2 = 44
        for i in range(4):
            for d in range(4):
                a("v_lshlrev_b32 v20, 16, v%d\nv_and_b32 v21, 0xffff0000, v%d" % (28 + 4 * i + d, 28 + 4 * i + d))
                for e in range(2):
                    if i == 0: a("v_mul_f32 v%d, v%d, v16" % (AC2 + 2 * d + e, 20 + e))
                    else: a("v_fmac_f32 v%d, v%d, v%d" % (AC2 + 2 * d + e, 20 + e, 16 + i))
        for j in range(4): a("v_permlane32_swap_b32 v%d, v%d" % (AC2 + j, AC2 + j + 4))
        for j in range(4): a("v_add_f32 v%d, v%d, v%d" % (AC2 + j, AC2 + j, AC2 + j + 4))
        for j in range(2): a("v_permlane16_swap_b32 v%d, v%d" % (AC2 + j, AC2 + j + 2))
        for j in range(2): a("v_add_f32 v%d, v%d, v%d" % (AC2 + j, AC2 + j, AC2 + j + 2))
        for j in range(2): a(dpp("v_add_f32", AC2 + j, AC2 + j, AC2 + j, "row_ror:8"))
        a("ds_write_b64 v71, v[%d:%d] offset:%d" % (AC2, AC2 + 1, L_ACCB + 1024))
    else:
        a("ds_read_b128 v[16:19], v66 offset:%d\nds_read_b128 v[20:23], v66 offset:%d" % (L_ACCB, L_ACCB + 16))
        a("s_waitcnt vmcnt(0) lgkmcnt(0)")
        for i in range(8):
            for r in range(4):
                if i == 0: a("v_mul_f32 v%d, v%d, v16" % (24 + r, 28 + r))
                else: a("v_fmac_f32 v%d, v%d, v%d" % (24 + r, 28 + 4 * i + r, 16 + i))
        for r in range(4): allrows("v_add_f32", 24 + r, 5)
        a("ds_write_b128 v1, v[24:27] offset:%d" % (L_ACCB + 1024))
    a("s_mov_b64 exec, 1")
    a("ds_write_b32 v6, v7 offset:%d" % (L_CNT + C_YB))
    a("s_mov_b64 exec, -1")
    a("L_b_rd:")
    ldswait("yb", 6, 4, L_CNT + C_YB, "lg", 0, slp=8)
    PR = 76; LM = 88
    a("v_mov_b32 v%d, 0\nv_mov_b32 v%d, 0\nv_mov_b32 v%d, 0\nv_mov_b32 v%d, %s\nv_mov_b32 v%d, 1.0" % (PR, PR + 1, PR + 2, LM, f32(-1e30), G_))
    a("ds_read_b32 v%d, v6 offset:%d" % (GA, L_CNT + C_G))
    a("s_lshl_b32 s76, s71, 6\nv_add_u32 v4, s76, v1\ns_mov_b64 exec, 0xf")
    a("ds_read_b128 v[%d:%d], v4 offset:%d\nv_mov_b32 v%d, 0" % (PR, PR + 3, L_ACCB + 1024, LM))
    a("s_mov_b32 s61, 0\ns_mov_b32 s74, 1")
    a("s_waitcnt vmcnt(0) lgkmcnt(0)")
    for k in range(3): a("v_perm_b32 v%d, v%d, v%d, s%d" % (PR + k, PR + 3, PR + k, 80 + k))
    a("s_mov_b64 exec, -1")
    stamp(6)
    a("s_branch L_t_pg")
    a("L_t_a:")
    a("s_mov_b32 s61, 4\ns_mov_b32 s74, %d\ns_movk_i32 s58, 512\ns_mov_b32 s66, 8" % spin)
    a("v_mov_b32 v%d, v%d" % (G_, GA))
    if WOL is None:
        for r in range(16): a("v_mov_b32 v%d, v%d" % (WC + r, WA_ + r))
    elif WBL is not None:
        th = WST or [WBL] * 4 + [-WOL] * 4
        for i in range(8):
            if i == 0 or th[i] != th[i - 1]: ldswait("eb%d" % i, 6, 4, L_CNT + C_VDA, "ge", th[i], slp=EXS)
            rg = i & 3
            if i < 4: a("buffer_load_dwordx4 v[%d:%d], v%d, s[32:35], 0 offen%s" % (WB + 4 * rg, WB + 4 * rg + 3, 12 + rg, NTW))
            else: a("buffer_load_dwordx4 v[%d:%d], v%d, s[44:47], 0 offen%s" % (WC + 4 * rg, WC + 4 * rg + 3, 12 + rg, NTW))
        for rg in range(4):
            a("s_waitcnt vmcnt(%d)" % (7 - rg))
            a("v_mfma_f32_16x16x32_bf16 v[%d:%d], v[%d:%d], v[%d:%d], %s" % (ACC, ACC + 3, EE + rg * 4, EE + rg * 4 + 3, WB + 4 * rg, WB + 4 * rg + 3, "0" if rg == 0 else "v[%d:%d]" % (ACC, ACC + 3)))
    else:
        if WOL >= 0: ldswait("ex", 6, 4, L_CNT + C_LS, "gt", NT_ - WOL, slp=EXS)
        else: ldswait("ex", 6, 4, L_CNT + C_VDA, "ge", -WOL, slp=EXS)
        for rg in range(4): a("buffer_load_dwordx4 v[%d:%d], v%d, s[44:47], 0 offen%s" % (WC + 4 * rg, WC + 4 * rg + 3, 12 + rg, NTW))
    stamp(8)
    if dumat:
        a("s_lshr_b32 s76, s93, 4\ns_lshl_b32 s76, s76, 10\ns_lshl_b32 s77, s71, 8\ns_add_u32 s76, s76, s77\ns_add_u32 s76, s76, %d" % (WS_CNT + 0x10000))
        a("v_lshlrev_b32 v20, 7, v0\nv_add_u32 v20, s76, v20\nv_mov_b32 v22, 1\nv_mov_b32 v23, 0\ns_mov_b32 s83, 4000")
        a("L_du_w:")
        a("s_mov_b64 exec, %d" % (2 ** dumat - 1))
        a("global_atomic_add_x2 v[24:25], v20, v[22:23], s[30:31] sc0 sc1")
        a("s_mov_b64 exec, -1")
        a("ds_read_b32 v4, v6 offset:%d\ns_waitcnt vmcnt(0) lgkmcnt(0)\nv_readfirstlane_b32 s76, v4" % (L_CNT + C_VDA))
        a("s_sub_u32 s83, s83, 1\ns_cbranch_scc1 L_du_g")
        a("s_cmp_eq_u32 s76, 0\ns_cbranch_scc1 L_du_w")
        a("L_du_g:")
    ldswait("va", 6, 4, L_CNT + C_VDA, "ge", VAT, slp=LSL)
    if "apass" in dis: a("s_mov_b32 s76, 3\ns_branch L_fin")
    stamp(9)
    a("s_mov_b32 s83, %d" % spin)
    PL = 84 if PP > 1 else PR
    pl = "buffer_load_dwordx4 v[%d:%d], v%d, s[48:51], s62 offen sc1" % (PL, PL + 3, PVA)
    for i in range(PP - 1): a(pl + "\ns_sleep %d" % PD)
    a("L_t_pw:")
    a(pl)
    a("s_waitcnt vmcnt(%d)" % (PP - 1))
    if PP > 1: a("v_mov_b64 v[%d:%d], v[%d:%d]\nv_mov_b64 v[%d:%d], v[%d:%d]" % (PR, PR + 1, PL, PL + 1, PR + 2, PR + 3, PL + 2, PL + 3))
    if CK:
        a("v_bitop3_b32 v4, v%d, v%d, v%d %s\nv_xor_b32 v4, v4, v%d" % (PR, PR + 1, PR + 2, X3, PR + 3))
        a("v_mov_b32_dpp v%d, v%d quad_perm:[0,0,2,2] row_mask:0xf bank_mask:0xf" % (LM, PR + 3))
        a(dpp("v_xor_b32", 4, 4, 4, "quad_perm:[1,0,3,2]"))
        a("v_cmp_ne_u32 vcc, s70, v4")
    else:
        a("v_max3_u32 v4, v%d, v%d, v%d\nv_max_u32 v4, v4, v%d\nv_cmp_eq_u32 vcc, -1, v4\nv_mov_b32 v%d, v%d" % (PR, PR + 1, PR + 2, PR + 3, LM, PR + 3))
    a("s_cbranch_vccz L_t_pg0")
    if PMASK: a("s_mov_b64 exec, vcc")
    if PSLP: a("s_sleep %d" % PSLP)
    a("s_sub_u32 s83, s83, 1\ns_cbranch_scc0 L_t_pw")
    a("L_t_pg0:")
    if PMASK: a("s_mov_b64 exec, -1")
    stamp(10)
    a("L_t_pg:")
    a(dpp("v_max_f32", 4, LM, LM, "row_ror:4"))
    a("v_perm_b32 v19, v%d, v%d, s63" % (PR + 1, PR))
    a("v_lshl_or_b32 v19, v%d, 24, v19" % (PR + 2))
    a(dpp("v_max_f32", 4, 4, 4, "row_ror:8"))
    allrows("v_max_f32", 4, 5)
    a("v_sub_f32 v24, v%d, v4\nv_exp_f32 v24, v24" % LM)
    for r in range(3): a("v_mul_f32 v%d, v%d, v24" % (16 + r, PR + r))
    a("v_mul_f32 v19, v19, v24")
    a(dpp("v_add_f32", 25, 24, 24, "row_ror:4"))
    a("v_permlane16_swap_b32 v16, v17\nv_permlane16_swap_b32 v18, v19")
    a(dpp("v_add_f32", 25, 25, 25, "row_ror:8"))
    a("v_add_f32 v16, v16, v17\nv_add_f32 v18, v18, v19")
    a("v_mov_b32 v5, v25\nv_permlane32_swap_b32 v16, v18\nv_permlane16_swap_b32 v5, v25")
    a("v_add_f32 v16, v16, v18\nv_add_f32 v25, v25, v5\nv_mov_b32 v5, v25")
    a(dpp("v_add_f32", 16, 16, 16, "row_ror:4"))
    a("v_permlane32_swap_b32 v5, v25\nv_add_f32 v25, v25, v5")
    a(dpp("v_add_f32", 16, 16, 16, "row_ror:8"))
    a("v_rcp_f32 v25, v25\nv_mul_f32 v16, v16, v%d\nv_mul_f32 v16, v16, v25\nv_cvt_pk_bf16_f32 v16, v16, v16" % G_)
    for rg in range(4):
        for k in range(4):
            a(dpp("v_and_b32", EE + rg * 4 + k, 16, 8 + k, "quad_perm:[%d,%d,%d,%d]" % (rg, rg, rg, rg)))
        if rg: a("v_mfma_f32_16x16x32_bf16 v[%d:%d], v[%d:%d], v[%d:%d], v[%d:%d]" % (ACC, ACC + 3, EE + rg * 4 - 4, EE + rg * 4 - 1, WC + 4 * rg - 4, WC + 4 * rg - 1, ACC, ACC + 3))
    a("v_mfma_f32_16x16x32_bf16 v[%d:%d], v[%d:%d], v[%d:%d], v[%d:%d]" % (ACC, ACC + 3, EE + 12, EE + 15, WC + 12, WC + 15, ACC, ACC + 3))
    a("s_mov_b32 exec_hi, 0")
    a("ds_write_b128 v%d, v[%d:%d] offset:%d" % (YV + 1, ACC, ACC + 3, L_QP))
    a("s_mov_b64 exec, 1")
    a("ds_add_rtn_u32 v4, v6, v7 offset:%d" % (L_CNT + C_YARR))
    a("s_mov_b32 exec_lo, s72")
    for k in range(4): a("ds_read_b128 v[%d:%d], v1 offset:%d" % (16 + 4 * k, 19 + 4 * k, L_QP + 512 * k))
    a("s_waitcnt lgkmcnt(0)\nv_readfirstlane_b32 s76, v4")
    for r in (0, 2): a("v_pk_add_f32 v[%d:%d], v[%d:%d], v[%d:%d]" % (16 + r, 17 + r, 16 + r, 17 + r, 20 + r, 21 + r))
    for r in (0, 2): a("v_pk_add_f32 v[%d:%d], v[%d:%d], v[%d:%d]" % (24 + r, 25 + r, 24 + r, 25 + r, 28 + r, 29 + r))
    a("s_sub_u32 s76, s76, s61\ns_cmp_lg_u32 s76, 3\ns_cbranch_scc1 L_t_nst")
    for r in (0, 2): a("v_pk_add_f32 v[%d:%d], v[%d:%d], v[%d:%d]" % (16 + r, 17 + r, 16 + r, 17 + r, 24 + r, 25 + r))
    if CK:
        for k in range(3): a("v_perm_b32 v%d, v19, v%d, s%d" % (16 + k, 16 + k, 80 + k))
        a("v_xor_b32 v19, s70, v16\nv_bitop3_b32 v19, v19, v17, v18 %s" % X3)
    a("buffer_store_dwordx4 v[16:19], v1, s[56:59], 0 offen sc1")
    stamp(11)
    a("L_t_nst:")
    a("s_mov_b64 exec, -1")
    a("s_cmp_lg_u32 s76, 0\ns_cbranch_scc1 L_t_next")
    a("s_cmp_ge_u32 s73, 112\ns_cbranch_scc1 L_t_next")
    a("s_mov_b32 s83, s74")
    YL = 80 if YP > 1 else 16
    yl = "buffer_load_dwordx4 v[%d:%d], v%d, s[48:51], s60 offen sc1" % (YL, YL + 3, YV)
    if YP > 1: a("s_cmp_eq_u32 s61, 0\ns_cbranch_scc1 L_t_yw")
    for i in range(YP - 1): a(yl + "\ns_sleep %d" % YD)
    a("L_t_yw:")
    a(yl)
    a("s_waitcnt vmcnt(%d)" % (YP - 1))
    if YP > 1: a("v_mov_b64 v[16:17], v[%d:%d]\nv_mov_b64 v[18:19], v[%d:%d]" % (YL, YL + 1, YL + 2, YL + 3))
    if CK:
        a("v_bitop3_b32 v4, v16, v17, v18 %s\nv_xor_b32 v5, s70, v19\nv_perm_b32 v19, v17, v16, s63\nv_cmp_ne_u32 vcc, v4, v5\nv_lshl_or_b32 v19, v18, 24, v19" % X3)
    else:
        a("v_max3_u32 v4, v16, v17, v18\nv_max_u32 v4, v4, v19\nv_cmp_eq_u32 vcc, -1, v4")
    a("s_cbranch_vccz L_t_yg")
    if YMASK: a("s_mov_b64 exec, vcc")
    a("s_sub_u32 s83, s83, 1\ns_cmp_lg_u32 s83, 0\ns_cbranch_scc1 L_t_yw")
    a("L_t_yg:")
    if YMASK: a("s_mov_b64 exec, -1")
    stamp(12)
    a("v_permlane16_swap_b32 v16, v17\nv_permlane16_swap_b32 v18, v19")
    a("v_add_f32 v16, v16, v17\nv_add_f32 v18, v18, v19")
    a("v_permlane32_swap_b32 v16, v18\nv_add_f32 v16, v16, v18")
    for ctl in ("quad_perm:[1,0,3,2]", "quad_perm:[2,3,0,1]", "row_half_mirror", "row_mirror"):
        a(dpp("v_add_f32", 16, 16, 16, ctl))
    a("v_cvt_pk_bf16_f32 v16, v16, v16")
    a("buffer_store_short v16, v%d, s[64:67], 0 offen" % OV)
    stamp(13)
    a("s_cmp_eq_u32 s61, 0\ns_cbranch_scc1 L_t_next")
    a("s_cmp_lg_u32 s2, 0\ns_cbranch_scc1 L_t_next")
    a("v_mov_b32 v4, s70\nv_mov_b32 v5, 0x%x\ns_mov_b64 exec, 1" % WS_EPOCH)
    a("buffer_store_dword v4, v5, s[48:51], 0 offen sc1")
    a("s_mov_b64 exec, -1")
    a("L_t_next:")
    a("s_cmp_lg_u32 s61, 0\ns_cbranch_scc1 L_fin")
    ldswait("y4", 6, 4, L_CNT + C_YARR, "ge", 4, slp=2)
    a("s_branch L_t_a")
    a("L_fin:")
    if dbgt:
        a("s_lshl_b32 s84, s2, 7\ns_add_u32 s84, s84, %d\ns_add_u32 s84, s84, s30\ns_addc_u32 s85, s31, 0\ns_mov_b32 s86, 128\ns_mov_b32 s87, 0x20000" % STAMP_OFF)
        a("v_mov_b32 v16, v63\nv_mov_b32 v17, 0\nv_lshlrev_b32 v18, 3, v0")
        a("s_mov_b32 s77, 0\ns_cmp_eq_u32 s71, 3\ns_cselect_b32 s78, 0xc00f, 0\ns_or_b32 s77, s77, s78\ns_cmp_eq_u32 s71, 2\ns_cselect_b32 s78, 0x30, 0\ns_or_b32 s77, s77, s78")
        a("s_cmp_eq_u32 s76, 3\ns_cselect_b32 s78, 0xf40, 0\ns_or_b32 s77, s77, s78\ns_cmp_eq_u32 s76, 0\ns_cselect_b32 s78, 0x3080, 0\ns_or_b32 s77, s77, s78")
        a("s_cbranch_scc0 L_end\ns_mov_b32 exec_lo, s77\ns_mov_b32 exec_hi, 0")
        a("buffer_store_dwordx2 v[16:17], v18, s[84:87], 0 offen")
    a("s_endpgm")
    a.flush()
    if not CK:
        a("L_h_clr:")
        if touch:
            a("s_cmp_eq_u32 s71, 0\ns_cselect_b32 s52, s6, s8\ns_cselect_b32 s53, s7, s9\ns_mov_b32 s54, 0x4000000\ns_mov_b32 s55, 0x20000")
            a("s_lshr_b32 s76, s93, 4\ns_lshl_b32 s76, s76, 22\ns_and_b32 s77, s93, 15\ns_mul_i32 s77, s77, %d\ns_add_u32 s77, s77, s76\ns_add_u32 s76, s76, %d" % (NS * 16384, NS * 262144 + 0x40000))
            a("v_mul_u32_u24 v16, %d, v0\nv_add_u32 v16, s77, v16\nv_writelane_b32 v16, s76, 2" % (NS * 16384 - 64))
            a("s_mov_b64 exec, 7")
            a("buffer_load_dword v17, v16, s[52:55], 0 offen%s" % (" nt" if touch == 1 else ""))
            a("s_mov_b64 exec, 1")
            a("s_cmp_eq_u32 s71, 0\ns_cbranch_scc1 L_tch0")
            a("buffer_load_dword v18, v12, s[44:47], 0 offen\ns_branch L_tch1")
            a("L_tch0:")
            a("buffer_load_dword v18, v12, s[32:35], 0 offen")
            a("L_tch1:")
            a("s_mov_b64 exec, -1")
        if CLT: ldswait("clq", 6, 4, L_CNT + C_VDB, "ge", CLT, slp=8)
        a("v_mov_b32 v36, -1\nv_mov_b32 v37, -1\nv_mov_b32 v38, -1\nv_mov_b32 v39, -1")
        a("s_cmp_eq_u32 s71, 0\ns_cbranch_scc1 L_h_cl0")
        a("s_mov_b32 exec_lo, s72\ns_mov_b32 exec_hi, 0")
        a("buffer_store_dwordx4 v[36:39], v1, s[48:51], s68 offen sc1")
        a("s_branch L_h_cl1")
        a("L_h_cl0:")
        a("s_mul_i32 s76, s93, %d\ns_add_u32 s76, s76, %d" % (PAS, WS_PA))
        a("buffer_store_dwordx4 v[36:39], v1, s[48:51], s76 offen sc1")
        a("L_h_cl1:")
        a("s_mov_b64 exec, 1")
        a("v_mov_b32 v5, s2")
        a("s_waitcnt vmcnt(0)")
        a("ds_add_rtn_u32 v4, v6, v7 offset:%d" % (L_CNT + C_CLR))
        a("s_waitcnt lgkmcnt(0)\nv_readfirstlane_b32 s76, v4")
        a("s_nop 0\ns_cmp_lg_u32 s76, 1\ns_cbranch_scc1 L_h_cl2")
        a("buffer_store_byte v7, v5, s[40:43], 0 offen sc1")
        a("L_h_cl2:")
        a("s_mov_b64 exec, -1\ns_branch %s" % ("L_t_a" if "bchain" in dis else "L_b_rd"))
    a("L_end:")
    a("s_endpgm")
    a.raw('.section .rodata,"a"\n.p2align 6\n.amdhsa_kernel %s' % NAME)
    a.raw("  .amdhsa_next_free_vgpr 168\n  .amdhsa_next_free_sgpr 102\n  .amdhsa_accum_offset 168")
    a.raw("  .amdhsa_group_segment_fixed_size 0\n  .amdhsa_kernarg_size 112\n  .amdhsa_user_sgpr_count 2\n  .amdhsa_user_sgpr_kernarg_segment_ptr 1\n  .amdhsa_system_sgpr_workgroup_id_x 1\n.end_amdhsa_kernel")
    open(fname, "w").write(a.text())
    return a

if __name__ == "__main__":
    kw = dict(dbgt=2, G=1, W0=6, WS_=[(6, 3)])
    gen("g_a.s", NS=16, **kw)
    gen("g_b.s", NS=14, **kw)
    gen("g_c.s", NS=16, wqx=2, dis=("wo",), **kw)
    gen("g_d.s", NS=16, wqx=2, dis=("wo", "apass", "bchain"), **kw)
```

```python
import sys, math, struct
from asmlib import Asm
NAME = "gated_mix__mha_block_cached__gqa_block_cached__decode_kernel"
HEADER = open("gated_mix__mha_block_cached__gqa_block_cached__decode.s.ref").read().split("; Override launch")[0]

WS_Q = 0x0
WS_EPOCH = 0x8000
WS_CNT = 0x10000
WS_Y = 0x100000
WS_PB = 0x200000
WS_PA = 0x300000
WS_END = 0x400000
YS = 640; PAS = 1152
STAMP_OFF = 200 * 1024 * 1024
L_Q = 0; L_QP = 1536; L_MW = 3584; L_LW = 3712; L_CNT = 3840; L_ACCB = 4096; L_ACCA = 20480; L_LIST = 28672; LDS_BYTES = 29184
C_QARR, C_QRDY, C_QARDY, C_KD, C_VDB, C_VDA, C_LS, C_CLR, C_YB, C_PRG, C_TAG, C_YARR, C_G, C_PC, C_FST = 0, 4, 8, 12, 16, 20, 24, 32, 36, 40, 44, 48, 52, 56, 60
L_YB = L_ACCB
SC = math.log2(math.e) / 16.0
def f32(x): return "0x%08x" % struct.unpack("<I", struct.pack("<f", x))[0]

def gen(fname, W0=4, G=2, BUD=60, RAMP=4, nt=True, round_s=True, spin=400000, ntw=True, dbgt=0, dis=(), NPOLL=3, PSL=6, BTRIG=1, xl=1, prio=None, touch=0, WS_=None, wperm=0, QT=16, CLT=1, YINC=1, WQW=8, SP=0, HP=3, wqx=0, amap=1, NS=14, ATL=4, VAT=8, PSLP=0, PMASK=0, LSL=1, bmap=0, wqm=0, FIN=0, dumat=0, LB=1, PP=1, YP=1, PD=2, YD=2, YMASK=0, CSTR=4352, SPS=1, TH=0, FK=0, DW=4, WOL=None, EXS=2, WBL=None, WST=None, CK=1, BH=1, PBS=1152, OVL=1, WPAT=None, LAY=0, OST='', EST=' sc1', BST=' sc1', BL=1, BK=12):
    a = Asm()
    if not BH: PBS = 2176
    MLO = 1024 if BH else 2048
    X3 = "bitop3:0x96"
    if BL:
        assert BH and CK and not bmap
        BST = ""
    NT = (" " + nt if isinstance(nt, str) else " nt") if nt else ""
    NTW = (" " + ntw if isinstance(ntw, str) else " nt") if ntw else ""
    a.raw(HEADER.rstrip("\n"))
    a.raw("; @launch grid=(256,1,1) block=(768,1,1) lds=%d" % LDS_BYTES)
    a.raw('.amdgcn_target "amdgcn-amd-amdhsa--gfx950"\n.text\n.globl %s\n.p2align 8\n.type %s,@function\n%s:' % (NAME, NAME, NAME))
    SB = 4
    def stamp(idx):
        if not dbgt: return
        a("s_memrealtime s[88:89]\ns_waitcnt lgkmcnt(0)\nv_writelane_b32 v63, s88, %d" % idx)

    def allrows(op, x, t):
        a("v_mov_b32 v%d, v%d" % (t, x))
        a("v_permlane16_swap_b32 v%d, v%d" % (t, x))
        a("%s v%d, v%d, v%d" % (op, x, t, x))
        a("v_mov_b32 v%d, v%d" % (t, x))
        a("v_permlane32_swap_b32 v%d, v%d" % (t, x))
        a("%s v%d, v%d, v%d" % (op, x, t, x))
    def dpp(op, d, s0, s1, ctrl, bank=0xf):
        return "%s_dpp v%d, v%d, v%d %s row_mask:0xf bank_mask:0x%x" % (op, d, s0, s1, ctrl, bank)
    def masks(M, t0, t1):
        a("v_and_b32 v%d, 1, v0\nv_lshlrev_b32 v%d, 4, v%d" % (t0, t0, t0))
        a("v_mov_b32 v%d, 0xffff\nv_lshlrev_b32 v%d, v%d, v%d" % (t1, t0, t0, t1))
        a("v_bfe_u32 v%d, v0, 1, 2" % t1)
        for k in range(4):
            a("v_cmp_eq_u32 vcc, %d, v%d" % (k, t1))
            a("v_cndmask_b32 v%d, 0, v%d, vcc" % (M + k, t0))
    def ldswait(lab, vz, vt, off, cmp, val, slp=1, sreg=76, cnt=83):
        a("s_mov_b32 s%d, %d" % (cnt, spin * 8))
        a("L_%s_w:" % lab)
        a("ds_read_b32 v%d, v%d offset:%d\ns_waitcnt lgkmcnt(0)\nv_readfirstlane_b32 s%d, v%d" % (vt, vz, off, sreg, vt))
        a("s_sub_u32 s%d, s%d, 1\ns_cbranch_scc1 L_%s_g" % (cnt, cnt, lab))
        a("s_cmp_%s_u32 s%d, %d\ns_cbranch_scc1 L_%s_g\ns_sleep %d\ns_branch L_%s_w" % (cmp, sreg, val, lab, slp, lab))
        a("L_%s_g:" % lab)

    a("s_cmp_ge_u32 s2, 256\ns_cbranch_scc1 L_end")
    a("s_load_dwordx16 s[4:19], s[0:1], 0")
    if bmap == 1: a("s_mov_b32 s92, s2")
    if xl == 2: a("s_add_u32 s3, s2, 2\ns_and_b32 s3, s3, 7\ns_and_b32 s2, s2, 0xf8\ns_or_b32 s2, s2, s3")
    if xl == 3: a("s_lshr_b32 s3, s2, 3\ns_add_u32 s3, s3, s2\ns_and_b32 s3, s3, 7\ns_and_b32 s2, s2, 0xf8\ns_or_b32 s2, s2, s3")
    if xl == 1: a("s_and_b32 s3, s2, 7\ns_lshr_b32 s2, s2, 3\ns_lshl_b32 s3, s3, 5\ns_add_u32 s2, s2, s3")
    a("s_load_dwordx8 s[20:27], s[0:1], 64")
    a("s_load_dwordx4 s[28:31], s[0:1], 96")
    if dbgt: a("s_memrealtime s[90:91]")
    if amap:
        a("s_bfe_u32 s93, s2, 0x40001\ns_lshl_b32 s93, s93, 4\ns_lshr_b32 s3, s2, 5\ns_lshl1_add_u32 s93, s3, s93\ns_and_b32 s3, s2, 1\ns_add_u32 s93, s93, s3")
    else:
        a("s_mov_b32 s93, s2")
    if bmap == 0: a("s_mov_b32 s92, s2")
    if bmap == 2: a("s_mov_b32 s92, s93")
    assert not (bmap and wqx)
    a("v_lshrrev_b32 v1, 6, v0\nv_and_b32 v0, 63, v0\nv_readfirstlane_b32 s3, v1")
    a("s_nop 0\ns_cmp_lt_u32 s3, 4\ns_cbranch_scc1 L_helper")

    OFF = 1; T = [2, 3, 4, 5]; MC = 6; LS = 7; M = 8; E = 12; X = 16; S = 32; RING = 40
    QA = 104; TB = [112, 128]; ONES = 144; ACL = 148; TK = [152, 154]; AD = 156; AV = 158; TV = 159; SD = 160; WA = 161; RA = 162; R8 = 163
    SO = 52
    NP = 16 + 2 * NS
    NL = 2 * NP
    NT_ = (16 - NS) * 16
    PO = NS // 2 * 32768 + (NS & 1) * 2048
    assert NS % 2 == 0 or (NS == 15 and LAY)
    a("s_sub_u32 s3, s3, 4")
    if SP: a("s_setprio %d" % SP)
    a("v_lshrrev_b32 v2, 4, v0\nv_and_b32 v3, 15, v0\nv_lshlrev_b32 v2, 9, v2\nv_lshl_or_b32 v%d, v3, 4, v2" % OFF)
    a("s_add_u32 s80, s3, s93\ns_and_b32 s80, s80, 7\ns_lshl_b32 s79, s80, 12")
    a("s_lshl_b32 s77, s92, 17\ns_add_u32 s77, s77, s79")
    for j in range(1, 8): a("s_mov_b32 s%d, 0x%x" % (SO + j, j * 32768))
    a("s_mov_b32 s34, 0x19000\ns_mov_b32 s35, 0x20000\ns_mov_b32 s38, 0x19000\ns_mov_b32 s39, 0x20000")
    a("s_waitcnt lgkmcnt(0)")
    if not LB: a("s_barrier")
    if dbgt == 3: a("s_memrealtime s[84:85]")
    a("s_add_u32 s32, s16, s77\ns_addc_u32 s33, s17, 0")
    a("s_add_u32 s36, s18, s77\ns_addc_u32 s37, s19, 0")
    pairs = [(32, j) for j in range(8)] + [(36, j) for j in range(8)] + [(40, j) for j in range(NS)] + [(44, j) for j in range(NS)]
    def slot(n): return RING + (n % 16 if n < 24 else n % 8) * 8
    def prev_in_slot(n): return n - 16 if n < 24 else n - 8
    def atomic(k):
        a("s_mov_b64 exec, 1")
        a("global_atomic_add_x2 v[%d:%d], v%d, v[%d:%d], s[30:31] sc0 sc1" % (TK[k], TK[k] + 1, AV, AD, AD + 1))
        a("s_mov_b64 exec, -1")
    VP = 164; DU = 165; DV = 166
    nreq = [0]
    def request():
        nreq[0] += 1; u = nreq[0]
        a("s_cbranch_scc0 L_rql%d" % u)
        a("global_atomic_add_x2 v[%d:%d], v%d, v[%d:%d], s[30:31] sc0 sc1" % (TK[0], TK[0] + 1, AV, AD, AD + 1))
        a("s_branch L_rqe%d" % u)
        a("L_rql%d:" % u)
        a("buffer_load_dword v%d, v%d, s[60:63], 0 offen" % (DU, DV))
        a("L_rqe%d:" % u)
        a("s_mov_b64 exec, -1")
    def claim(off):
        a("s_mov_b64 exec, 1\nds_add_rtn_u32 v%d, v%d, v%d offset:%d\ns_mov_b64 exec, -1" % (VP, AD + 1, AD, L_CNT + off))
    st = {"issued": 0, "landed": 0, "at": None}
    def issue_load(i):
        n = i >> 1; c = i & 1
        srd, j = pairs[n]; r = slot(n) + 4 * c
        if dbgt == 2 and c == 0 and n % 6 == 0 and n > 0: a("s_memrealtime s[%d:%d]" % (84 + 2 * (n // 6 - 1) + (4 if n // 6 > 3 else 0), 85 + 2 * (n // 6 - 1) + (4 if n // 6 > 3 else 0)))
        if i == NL - ATL - 1 and NT_:
            claim(C_FST)
            a("v_mov_b32 v%d, 0x%x" % (DV, 0x400000))
        if i == NL - ATL and NT_:
            a("s_waitcnt lgkmcnt(0)\nv_readfirstlane_b32 s76, v%d\ns_mov_b64 exec, 1\ns_cmp_eq_u32 s76, %d\ns_cselect_b32 s80, %d, 0" % (VP, FK, L_LIST))
            request(); st["at"] = i
        so = "0" if j < 2 else "s%d" % (SO + (j >> 1))
        a("buffer_load_dwordx4 v[%d:%d], v%d, s[%d:%d], %s offen offset:%d%s" % (r, r + 3, OFF, srd, srd + 3, so, (j & 1) * 2048 + c * 256, NT))
    def Wn(i):
        w = W0
        for (frm, ww) in (WS_ or []):
            if i >= frm: w = ww
        if WPAT and 3 <= i < NL - 6: w = WPAT[i % len(WPAT)]
        return w
    extra = {"n": 0}
    def wait_landed(k):
        if k > st["landed"]:
            cnt = st["issued"] - k + extra["n"]
            if st["at"] is not None and k <= st["at"]: cnt += 1
            a("s_waitcnt vmcnt(%d)" % cnt); st["landed"] = k
    def issue_event():
        i = st["issued"]
        wait_landed(i + G - Wn(i))
        for t in range(G): issue_load(i + t)
        st["issued"] = i + G
    while st["issued"] + G <= Wn(0): issue_event()
    if dbgt == 3: a("s_memrealtime s[86:87]")
    if LB: a("s_barrier")
    if dbgt == 3: a("s_memrealtime s[88:89]\ns_waitcnt vmcnt(%d)\ns_memrealtime s[94:95]\ns_memrealtime s[96:97]\ns_memrealtime s[98:99]" % (W0 - 1))
    a("s_lshr_b32 s81, s93, 4\ns_lshl_b32 s78, s81, 22\ns_and_b32 s76, s93, 15\ns_mul_i32 s76, s76, %d\ns_add_u32 s76, s76, s78\ns_add_u32 s76, s76, s79\ns_add_u32 s78, s78, %d" % ((262144, PO) if LAY else (NS * 16384, NS * 262144)))
    nrec = ((NS + 1) // 2 - 1) * 32768 + 4096
    a("s_add_u32 s40, s6, s76\ns_addc_u32 s41, s7, 0\ns_mov_b32 s42, 0x%x\ns_mov_b32 s43, 0x20000" % nrec)
    a("s_add_u32 s44, s8, s76\ns_addc_u32 s45, s9, 0\ns_mov_b32 s46, 0x%x\ns_mov_b32 s47, 0x20000" % nrec)
    prec = 0x400000 - PO if LAY else NT_ // 2 * 32768
    a("s_add_u32 s60, s6, s78\ns_addc_u32 s61, s7, 0\ns_mov_b32 s62, 0x%x\ns_mov_b32 s63, 0x20000" % prec)
    a("s_add_u32 s64, s8, s78\ns_addc_u32 s65, s9, 0\ns_mov_b32 s66, 0x%x\ns_mov_b32 s67, 0x20000" % prec)
    a("s_mul_i32 s81, s81, %d\ns_add_u32 s81, s81, %d" % (CSTR, WS_CNT))
    a("s_mov_b32 s48, s30\ns_mov_b32 s49, s31\ns_mov_b32 s50, 0x%x\ns_mov_b32 s51, 0x20000" % WS_END)
    a("s_mul_i32 s75, s93, %d\ns_add_u32 s75, s75, %d" % (PAS, WS_PA))
    masks(M, T[0], T[1])
    a("s_mov_b32 s82, %s" % f32(SC))
    a("v_mov_b32 v%d, 0" % T[0])
    a("v_mov_b32 v%d, 1" % T[1])
    while st["issued"] < 32:
        if QT and st["issued"] <= QT < st["issued"] + G:
            a("s_mov_b64 exec, 1\nds_add_u32 v%d, v%d offset:%d\ns_mov_b64 exec, -1" % (T[0], T[1], L_CNT + C_PRG))
        issue_event()
    ldswait("sq", T[0], T[1], L_CNT + C_QRDY, "lg", 0)

    chunks = []
    class Rec:
        def __init__(self): self.l = []
        def __call__(self, t): self.l += [x for x in t.split("\n") if x.strip()]
    def phase(ph, n0, ng):
        nonlocal a
        real = a
        def begin():
            nonlocal a
            a = Rec(); return a
        def done(need=None, pre=None):
            chunks.append((need, pre or [], a.l))
        nh = 2 if ph == 0 else 1
        Q = X if ph == 0 else QA
        sc = [S + j for j in range(8)] if ph == 0 else ([X + 8 + j for j in range(8)] + [S + j for j in range(8)])[:ng]
        begin()
        a("v_and_b32 v%d, 15, v0\nv_lshlrev_b32 v%d, 4, v%d" % (T[0], T[0], T[0]))
        for h in range(nh):
            for c in range(2):
                a("ds_read_b128 v[%d:%d], v%d offset:%d" % (Q + h * 8 + c * 4, Q + h * 8 + c * 4 + 3, T[0], L_Q + ph * 1024 + h * 512 + c * 256))
        if ph == 1:
            a("v_mov_b32 v%d, 0\nds_read_b32 v%d, v%d offset:%d" % (AD + 1, T[1], AD + 1, L_CNT + C_TAG))
            a("v_mov_b32 v%d, 1\nv_mov_b32 v%d, s81" % (AD, AV))
            for k in range(4): a("v_mov_b32 v%d, 0x3f803f80" % (ONES + k))
            a("v_and_b32 v%d, 15, v0\nv_and_b32 v%d, 16, v0\nv_lshlrev_b32 v%d, 3, v0\nv_lshl_or_b32 v%d, v%d, 5, v%d" % (WA, RA, R8, WA, WA, RA))
            a("s_lshl_b32 s76, s3, 10\nv_add_u32 v%d, s76, v%d\nv_lshlrev_b32 v%d, 4, v0" % (WA, WA, RA))
        a("s_waitcnt lgkmcnt(0)")
        if ph == 1: a("v_readfirstlane_b32 s74, v%d\ns_mov_b32 s83, %d" % (T[1], spin))
        done()
        pend = []
        for j in range(ng):
            begin()
            n = n0 + j; r = slot(n)
            ta, tb = (T[0], T[1]) if j % 2 == 0 else (T[2], T[3])
            dots = []
            for k in range(8):
                dots.append("v_dot2_f32_bf16 v%d, v%d, v%d, %s" % (ta, r + k, Q + k, "0" if k == 0 else "v%d" % ta))
                if nh == 2:
                    dots.append("v_dot2_f32_bf16 v%d, v%d, v%d, %s" % (tb, r + k, Q + 8 + k, "0" if k == 0 else "v%d" % tb))
            step = 3 if nh == 2 else 2
            for i, dline in enumerate(dots):
                a(dline)
                if i % step == step - 1 and pend: a(pend.pop(0))
            while pend: a(pend.pop(0))
            done(n)
            s_ = sc[j]
            pend = [dpp("v_add_f32", s_, ta, ta, "row_ror:8")]
            if nh == 2: pend.append(dpp("v_add_f32", s_, tb, tb, "row_ror:8", 0xc))
            pend += [dpp("v_add_f32", s_, s_, s_, "quad_perm:[1,0,3,2]"), dpp("v_add_f32", s_, s_, s_, "quad_perm:[2,3,0,1]"), dpp("v_add_f32", s_, s_, s_, "row_half_mirror")]
        begin()
        while pend: a(pend.pop(0))
        if round_s:
            for s_ in sc: a("v_cvt_pk_bf16_f32 v%d, v%d, v%d" % (s_, s_, s_))
            for s_ in sc: a("v_and_b32 v%d, 0xffff0000, v%d" % (s_, s_))
        done(); begin()
        a("v_max3_f32 v%d, v%d, v%d, v%d" % (MC, sc[0], sc[1], sc[2]))
        i = 3
        while i + 1 < ng:
            a("v_max3_f32 v%d, v%d, v%d, v%d" % (MC, MC, sc[i], sc[i + 1])); i += 2
        if i < ng: a("v_max_f32 v%d, v%d, v%d" % (MC, MC, sc[i]))
        allrows("v_max_f32", MC, T[0])
        a("v_mul_f32 v%d, s82, v%d" % (MC, MC))
        a("v_and_b32 v%d, 8, v0\nv_lshlrev_b32 v%d, 2, v%d\ns_lshl_b32 s76, s3, 2\nv_add_u32 v%d, s76, v%d" % (T[3], T[3], T[3], T[3], T[3]))
        a("v_mov_b32 v%d, 0\nv_mov_b32 v%d, 1" % (T[1], T[2]))
        if ph == 1:
            a("s_mov_b64 exec, 1")
            a("ds_add_u32 v%d, v%d offset:%d" % (T[1], T[2], L_CNT + C_KD))
            a("s_mov_b64 exec, -1")
        done(); begin()
        for s_ in sc: a("v_fma_f32 v%d, v%d, s82, -v%d" % (s_, s_, MC))
        for s_ in sc: a("v_exp_f32 v%d, v%d" % (s_, s_))
        done(); begin()
        L_ = LS if ph == 0 else ACL
        a("v_add_f32 v%d, v%d, v%d" % (L_, sc[0], sc[1]))
        for s_ in sc[2:]: a("v_add_f32 v%d, v%d, v%d" % (L_, L_, s_))
        for s_ in sc: a("v_cvt_pk_bf16_f32 v%d, v%d, v%d" % (s_, s_, s_))
        allrows("v_add_f32", L_, T[0])
        if ph == 0:
            a("s_mov_b64 exec, 0x101")
            a("ds_write_b32 v%d, v%d offset:%d" % (T[3], MC, L_MW))
            a("ds_write_b32 v%d, v%d offset:%d" % (T[3], LS, L_LW))
            a("s_mov_b64 exec, -1")
            a("v_and_b32 v%d, 15, v0\nv_and_b32 v%d, 16, v0\nv_lshl_or_b32 v%d, v%d, 5, v%d" % (T[0], T[3], T[0], T[0], T[3]))
            a("v_lshrrev_b32 v%d, 5, v0\nv_lshl_or_b32 v%d, v%d, 13, v%d" % (T[3], T[0], T[3], T[0]))
            a("s_lshl_b32 s76, s3, 10\nv_add_u32 v%d, s76, v%d" % (T[0], T[0]))
        else:
            for k in range(1, 4): a("v_mov_b32 v%d, 0" % (ACL + k))
        done()
        for j in range(ng):
            n = n0 + ng + j; r = slot(n)
            begin()
            pre = ["v_and_b32 v%d, v%d, v%d" % (E + k, sc[j], M + k) for k in range(4)]
            a("v_mfma_f32_16x16x32_bf16 v[%d:%d], v[%d:%d], v[%d:%d], %s" % (X, X + 3, E, E + 3, r, r + 3, "0" if j == 0 else "v[%d:%d]" % (X, X + 3)))
            a("v_mfma_f32_16x16x32_bf16 v[%d:%d], v[%d:%d], v[%d:%d], %s" % (X + 4, X + 7, E, E + 3, r + 4, r + 7, "0" if j == 0 else "v[%d:%d]" % (X + 4, X + 7)))
            if ph == 0 and j == ng - 1:
                for c in range(2):
                    a("ds_write_b128 v%d, v[%d:%d] offset:%d" % (T[0], X + c * 4, X + c * 4 + 3, L_ACCB + c * 512))
                a("s_mov_b64 exec, 1")
                a("ds_add_u32 v%d, v%d offset:%d" % (T[1], T[2], L_CNT + C_VDB))
                a("s_mov_b64 exec, -1")
            done(n, pre)
        a = real

    phase(0, 0, 8)
    phase(1, 16, NS)

    def acquire(lab, mid=None):
        a("s_mov_b64 exec, 1")
        a("v_lshrrev_b32 v%d, 3, v%d\nv_lshlrev_b32 v%d, 2, v%d" % (T[1], VP, T[1], T[1]))
        a("s_cmp_eq_u32 s80, 0\ns_cbranch_scc1 L_rd%s" % lab)
        a("L_tk%s:" % lab)
        a("v_readfirstlane_b32 s69, v%d\nv_add_u32 v%d, 1, v%d\nv_mov_b32 v%d, s80" % (TK[0] + 1, TK[0], TK[0], T[2]))
        a("s_cmp_lg_u32 s69, s74\ns_cbranch_scc1 L_tr%s" % lab)
        a("L_tg%s:" % lab)
        a("ds_write_b32 v%d, v%d" % (T[2], TK[0]))
        a("L_rd%s:" % lab)
        a("ds_read_b32 v%d, v%d offset:%d" % (T[2], T[1], L_LIST))
        a("v_readfirstlane_b32 s77, v%d\nv_readfirstlane_b32 s80, v%d" % (VP, T[1]))
        if mid:
            a("s_mov_b64 exec, -1"); mid(); a("s_mov_b64 exec, 1")
        a("s_and_b32 s77, s77, 7\ns_add_u32 s80, s80, %d" % (L_LIST + 4))
        a("L_sw%s:" % lab)
        a("s_waitcnt lgkmcnt(0)\nv_readfirstlane_b32 s68, v%d" % T[2])
        a("s_nop 0\ns_sub_u32 s68, s68, 1\ns_cbranch_scc1 L_sp%s" % lab)
        a("L_sg%s:" % lab)
        if WOL is not None and WOL >= 0: a("ds_max_u32 v%d, v%d offset:%d" % (AD + 1, T[2], L_CNT + C_LS))
        if NS == 15:
            a("s_min_u32 s76, s68, %d\ns_lshl_b32 s76, s76, 6\ns_add_u32 s76, s76, s77\ns_lshl_b32 s76, s76, 12" % NT_)
        elif LAY and NS == 14:
            a("s_min_u32 s76, s68, %d\ns_lshr_b32 s69, s76, 1\ns_lshl_b32 s69, s69, 6\ns_add_u32 s69, s69, s77\ns_and_b32 s76, s76, 1\ns_lshl1_add_u32 s76, s69, s76\ns_lshl_b32 s76, s76, 11" % NT_)
        elif LAY:
            a("s_bfe_u32 s69, s68, 0x40001\ns_lshr_b32 s76, s68, 5\ns_lshl3_add_u32 s69, s69, s76\ns_lshl3_add_u32 s69, s69, s77\ns_and_b32 s76, s68, 1\ns_lshl1_add_u32 s76, s69, s76\ns_lshl_b32 s76, s76, 11")
            a("s_cmp_ge_u32 s68, %d\ns_cselect_b32 s76, 0x400000, s76" % NT_)
        else:
            a("s_min_u32 s76, s68, %d\ns_lshr_b32 s69, s76, 1\ns_lshl3_add_u32 s69, s69, s77\ns_and_b32 s76, s76, 1\ns_lshl1_add_u32 s76, s69, s76\ns_lshl_b32 s76, s76, 11" % NT_)
        a("s_cmp_ge_u32 s68, %d\ns_cselect_b32 s69, 9, s77\ns_cmp_eq_u32 s69, %d\ns_cselect_b32 s80, s80, 0" % (NT_, TH))
        request()
        a("v_add_u32 v%d, s76, v%d" % (TV, OFF))
    retries = []
    def tload(b, kv, tv=TV, which=(0, 1)):
        r = TB[b] + 8 * kv; srd = 60 + 4 * kv
        if 0 in which: a("buffer_load_dwordx4 v[%d:%d], v%d, s[%d:%d], 0 offen%s" % (r, r + 3, tv, srd, srd + 3, NT))
        if 1 in which: a("buffer_load_dwordx4 v[%d:%d], v%d, s[%d:%d], 0 offen offset:256%s" % (r + 4, r + 7, tv, srd, srd + 3, NT))

    assert DW == 3
    TF = max(NT_ - FIN, 0)
    def early(b, lab):
        if not FIN: return
        a("s_cmp_lt_u32 s68, %d\ns_cbranch_scc1 L_fa%s" % (TF, lab))
        tload(b, 0, which=(1,)); tload(b, 1)
        a("L_fa%s:" % lab)
    consumed = 0; budget = 0; dyn_stage = 0
    for (need, pre, lines) in chunks:
        def can_issue(): return st["issued"] < NL and prev_in_slot((st["issued"] + G - 1) // 2) < consumed
        for l in pre: a(l)
        while can_issue() and ((need is not None and 2 * need + 2 > st["landed"] and st["issued"] + G - Wn(st["issued"]) <= 2 * need + 2) or (budget > 0 and budget + len(lines) > BUD) or st["issued"] - 32 < RAMP):
            issue_event(); budget = 0
        if need == NP - 2 and NT_: claim(C_PC)
        if need == NP - 1 and NT_:
            assert st["landed"] == NL - 2
            if FIN: a("s_waitcnt vmcnt(5)\ns_cmp_ge_u32 s68, %d\ns_cbranch_scc1 L_fbp" % TF)
            wait_landed(2 * need + 1); tload(0, 0, which=(1,)); extra["n"] += 1
        if need is not None: wait_landed(2 * need + 2)
        if need == NP - 2 and dbgt == 2: a("s_memrealtime s[70:71]")
        if need == NP - 2 and NT_:
            assert st["issued"] == NL and st["landed"] > st["at"]
            a("s_waitcnt lgkmcnt(0)")
            acquire("p"); retries.append("p")
            tload(0, 0, which=(0,)); extra["n"] += 2
            early(0, "p")
        if need == NP - 1 and NT_:
            tload(0, 1, which=(0,))
            if FIN: a("L_fbp:")
        for l in lines: a(l)
        budget += len(lines) + len(pre)
        if need is not None: consumed = need + 1
    assert st["issued"] == NL
    if dbgt == 2: a("s_mov_b32 s72, 0")
    if NT_:
        a("s_cmp_ge_u32 s68, %d\ns_cbranch_scc1 L_dend" % NT_)
        if FIN: a("s_cmp_ge_u32 s68, %d\ns_cbranch_scc1 L_dloop" % TF)
        a("s_waitcnt vmcnt(2)"); tload(0, 1, which=(1,))
        a.flush()
        a("L_dloop:")
    for b in range(2 if NT_ else 0):
        r = TB[b]; lab = "d%d" % b
        if dbgt == 2: a("s_add_u32 s72, s72, 1")
        claim(C_PC)
        a("s_waitcnt vmcnt(2) lgkmcnt(0)")
        def dots():
            for k in range(8):
                a("v_dot2_f32_bf16 v%d, v%d, v%d, %s" % (SD, r + k, QA + k, "0" if k == 0 else "v%d" % SD))
        acquire(lab, dots if OVL else None); retries.append(lab)
        tload(1 - b, 0, which=(0,))
        early(1 - b, lab)
        if not OVL: dots()
        for ctl in ("row_ror:8", "quad_perm:[1,0,3,2]", "quad_perm:[2,3,0,1]", "row_half_mirror"):
            a(dpp("v_add_f32", SD, SD, SD, ctl))
        if round_s: a("v_cvt_pk_bf16_f32 v%d, v%d, v%d\nv_and_b32 v%d, 0xffff0000, v%d" % (SD, SD, SD, SD, SD))
        a("v_fma_f32 v%d, v%d, s82, -v%d" % (T[0], SD, MC))
        a("v_cmp_lt_f32 vcc, 0, v%d\ns_cbranch_vccnz L_rs%d" % (T[0], b))
        a("L_rb%d:" % b)
        a("v_exp_f32 v%d, v%d\nv_cvt_pk_bf16_f32 v%d, v%d, v%d" % (T[0], T[0], T[0], T[0], T[0]))
        for k in range(4): a("v_and_b32 v%d, v%d, v%d" % (E + k, T[0], M + k))
        a("v_mfma_f32_16x16x32_bf16 v[%d:%d], v[%d:%d], v[%d:%d], v[%d:%d]" % (ACL, ACL + 3, E, E + 3, ONES, ONES + 3, ACL, ACL + 3))
        if FIN: a("s_waitcnt vmcnt(5)\ns_cmp_ge_u32 s68, %d\ns_cbranch_scc1 L_fb%s" % (TF, lab))
        a("s_waitcnt vmcnt(3)"); tload(1 - b, 0, which=(1,))
        a("s_waitcnt vmcnt(3)"); tload(1 - b, 1, which=(0,))
        if FIN: a("L_fb%s:" % lab)
        a("v_mfma_f32_16x16x32_bf16 v[%d:%d], v[%d:%d], v[%d:%d], v[%d:%d]" % (X, X + 3, E, E + 3, r + 8, r + 11, X, X + 3))
        a("v_mfma_f32_16x16x32_bf16 v[%d:%d], v[%d:%d], v[%d:%d], v[%d:%d]" % (X + 4, X + 7, E, E + 3, r + 12, r + 15, X + 4, X + 7))
        a("s_cmp_ge_u32 s68, %d\ns_cbranch_scc1 L_dend" % NT_)
        if FIN: a("s_cmp_ge_u32 s68, %d\ns_cbranch_scc1 %s" % (TF, "L_dl1" if b == 0 else "L_dloop"))
        a("s_waitcnt vmcnt(2)"); tload(1 - b, 1, which=(1,))
        if FIN and b == 0: a("L_dl1:")
    if NT_:
        a("s_branch L_dloop")
        a("L_dend:")
        a("s_nop 2")
    a("s_lshl_b32 s76, s3, 3\nv_mov_b32 v%d, s76\nv_mov_b32 v%d, v%d" % (T[0], LS, ACL))
    a("s_mov_b32 s53, 0x03020105\ns_mov_b32 s54, 0x03020106\ns_mov_b32 s55, 0x03020107")
    if CK: a("s_mov_b32 s56, 0xaaaaaaaa\ns_mov_b32 s57, 0xaaaaaaaa")
    a("s_mov_b32 exec_hi, 0")
    for c in range(2):
        a("ds_write_b128 v%d, v[%d:%d] offset:%d" % (WA, X + c * 4, X + c * 4 + 3, L_ACCA + c * 512))
    a("s_mov_b64 exec, 1")
    a("ds_write_b64 v%d, v[%d:%d] offset:%d" % (T[0], MC, LS, L_MW + 64))
    a("ds_add_rtn_u32 v%d, v%d, v%d offset:%d" % (T[3], AD + 1, AD, L_CNT + C_VDA))
    a("s_mov_b64 exec, -1")
    G0 = RING; ML = RING + 32
    a("L_mrg:")
    for k in range(4):
        a("ds_read_b128 v[%d:%d], v%d offset:%d" % (ML + 4 * k, ML + 4 * k + 3, AD + 1, L_MW + 64 + 16 * k))
    if not CK: a("ds_read_b32 v%d, v%d offset:%d" % (T[2], AD + 1, L_CNT + C_CLR))
    for w in range(8):
        a("ds_read_b128 v[%d:%d], v%d offset:%d" % (G0 + 4 * w, G0 + 4 * w + 3, RA, L_ACCA + w * 1024))
    a("s_waitcnt lgkmcnt(8)")
    mw = [ML + 2 * w for w in range(8)]
    a("v_max3_f32 v%d, v%d, v%d, v%d\nv_max3_f32 v%d, v%d, v%d, v%d" % (MC, mw[0], mw[1], mw[2], T[0], mw[3], mw[4], mw[5]))
    a("v_readfirstlane_b32 s79, v%d" % T[3])
    if not CK: a("v_readfirstlane_b32 s78, v%d" % T[2])
    a("v_max3_f32 v%d, v%d, v%d, v%d\nv_max_f32 v%d, v%d, v%d" % (MC, MC, mw[6], mw[7], MC, MC, T[0]))
    a("s_cmp_lg_u32 s79, 7\ns_cbranch_scc1 %s" % ("L_sst" if dbgt >= 2 else "L_end"))
    for w in range(8): a("v_sub_f32 v%d, v%d, v%d" % (mw[w], mw[w], MC))
    for w in range(8): a("v_exp_f32 v%d, v%d" % (mw[w], mw[w]))
    if not CK: a("s_cmp_lg_u32 s78, 2\ns_cbranch_scc1 L_mwait")
    a("v_mul_f32 v%d, v%d, v%d\nv_mul_f32 v%d, v%d, v%d" % (LS, mw[0], mw[0] + 1, T[0], mw[1], mw[1] + 1))
    for w in (2, 4, 6):
        a("v_fmac_f32 v%d, v%d, v%d\nv_fmac_f32 v%d, v%d, v%d" % (LS, mw[w], mw[w] + 1, T[0], mw[w + 1], mw[w + 1] + 1))
    a("v_add_f32 v%d, v%d, v%d" % (LS, LS, T[0]))
    a("v_rcp_f32 v%d, v%d\nv_log_f32 v%d, v%d" % (T[0], LS, LS, LS))
    if CK: a("v_add_f32 v%d, v%d, v%d\nv_xor_b32 v%d, s74, v%d" % (LS, MC, LS, MC, LS))
    a("s_waitcnt lgkmcnt(0)")
    for k in (0, 2):
        a("v_pk_mul_f32 v[%d:%d], v[%d:%d], v[%d:%d] op_sel_hi:[1,0]" % (G0 + k, G0 + k + 1, G0 + k, G0 + k + 1, mw[0], mw[0] + 1))
        a("v_pk_mul_f32 v[%d:%d], v[%d:%d], v[%d:%d] op_sel_hi:[1,0]" % (G0 + 16 + k, G0 + 17 + k, G0 + 16 + k, G0 + 17 + k, mw[4], mw[4] + 1))
    for w in (1, 2, 3):
        for base in (0, 4):
            for k in (0, 2):
                d = G0 + 4 * base + k; s0 = G0 + 4 * (base + w) + k
                a("v_pk_fma_f32 v[%d:%d], v[%d:%d], v[%d:%d], v[%d:%d] op_sel_hi:[1,0,1]" % (d, d + 1, s0, s0 + 1, mw[base + w], mw[base + w] + 1, d, d + 1))
    for k in (2, 0):
        a("v_pk_add_f32 v[%d:%d], v[%d:%d], v[%d:%d]" % (G0 + k, G0 + k + 1, G0 + k, G0 + k + 1, G0 + 16 + k, G0 + 17 + k))
    for k in (2, 0):
        a("v_pk_mul_f32 v[%d:%d], v[%d:%d], v[%d:%d] op_sel_hi:[1,0]" % (G0 + k, G0 + k + 1, G0 + k, G0 + k + 1, T[0], T[0] + 1))
    for k in (2, 0, 1):
        a("v_perm_b32 v%d, v%d, v%d, s%d" % (G0 + k, G0 + 3, G0 + k, 53 + k))
    if CK:
        a("v_bitop3_b32 v%d, v%d, v%d, v%d %s" % (T[2], G0, G0 + 1, G0 + 2, X3))
        a("v_xor_b32 v%d, v%d, v%d" % (MC, MC, T[2]))
        a(dpp("v_xor_b32", MC, T[2], MC, "quad_perm:[1,0,3,2]"))
        a("v_cndmask_b32 v%d, v%d, v%d, s[56:57]" % (G0 + 3, LS, MC))
    else:
        a("v_add_f32 v%d, v%d, v%d" % (G0 + 3, MC, LS))
    a("buffer_store_dwordx4 v[%d:%d], v%d, s[48:51], s75 offen sc1" % (G0, G0 + 3, RA))
    if dbgt >= 2:
        a("L_sst:")
        a("s_mov_b64 exec, -1\ns_memrealtime s[100:101]\ns_waitcnt lgkmcnt(0)\nv_mov_b32 v100, 0\nv_mov_b32 v101, 0")
        for i, r in enumerate([90, 84, 86, 88, 94, 96, 98, 70, 83, 100, 72]):
            a("v_writelane_b32 v100, s%d, %d" % (r, i))
        a("s_lshl3_add_u32 s76, s2, s3\ns_add_u32 s76, s76, 256\ns_lshl_b32 s76, s76, 7\ns_add_u32 s76, s76, %d\ns_add_u32 s52, s76, s30\ns_addc_u32 s53, s31, 0\ns_mov_b32 s54, 128\ns_mov_b32 s55, 0x20000" % STAMP_OFF)
        a("v_lshlrev_b32 v102, 3, v0\nbuffer_store_dwordx2 v[100:101], v102, s[52:55], 0 offen")
    a("s_endpgm")
    a.flush()
    if not CK:
        a("L_mwait:")
        a("s_waitcnt lgkmcnt(0)\ns_sleep 4\ns_sub_u32 s83, s83, 1\ns_cbranch_scc0 L_mrg\ns_endpgm")
    for b in range(2 if NT_ else 0):
        a.flush()
        a("L_rs%d:" % b)
        a("v_max_f32 v%d, 0, v%d" % (T[1], T[0]))
        allrows("v_max_f32", T[1], T[2])
        a("v_add_f32 v%d, v%d, v%d\nv_sub_f32 v%d, v%d, v%d" % (MC, MC, T[1], T[0], T[0], T[1]))
        a("v_sub_f32 v%d, 0, v%d\nv_exp_f32 v%d, v%d" % (T[1], T[1], T[1], T[1]))
        for k in range(8): a("v_mul_f32 v%d, v%d, v%d" % (X + k, X + k, T[1]))
        a("v_mul_f32 v%d, v%d, v%d" % (ACL, ACL, T[1]))
        a("s_branch L_rb%d" % b)
    for lab in retries:
        a.flush()
        a("L_tr%s:" % lab)
        a("v_mov_b32 v%d, -1\ns_sub_u32 s83, s83, 1\ns_cbranch_scc1 L_tg%s" % (TK[0], lab))
        a("s_sleep 8")
        a("global_atomic_add_x2 v[%d:%d], v%d, v[%d:%d], s[30:31] sc0 sc1" % (TK[0], TK[0] + 1, AV, AD, AD + 1))
        a("s_waitcnt vmcnt(0)\ns_branch L_tk%s" % lab)
        a("L_sp%s:" % lab)
        a("s_sub_u32 s83, s83, 1\ns_cbranch_scc1 L_sg%s" % lab)
        a("s_sleep %d\nds_read_b32 v%d, v%d offset:%d\ns_branch L_sw%s" % (SPS, T[2], T[1], L_LIST, lab))

    a.flush()
    a("L_helper:")
    a("s_setprio %d" % HP)
    W = 104
    W2 = 64
    XV = 16; AC = 20
    a("v_mov_b32 v4, 0\nv_mov_b32 v5, 0\nv_mov_b32 v6, 0\nv_mov_b32 v7, 0")
    a("v_lshlrev_b32 v1, 4, v0")
    a("v_and_b32 v3, 48, v1\nds_write_b128 v3, v[4:7] offset:%d" % L_CNT)
    a("v_lshlrev_b32 v10, 3, v0\nds_write_b64 v10, v[4:5] offset:%d" % L_LIST)
    if wqm:
        XV = 16; AC = 24; PT = 32
        a("v_lshrrev_b32 v8, 3, v0\nv_mul_u32_u24 v8, 14, v8\ns_mul_i32 s76, s3, 112\nv_add_u32 v8, s76, v8")
        a("v_lshlrev_b32 v9, 1, v8\nv_and_b32 v11, 0x70, v1\nv_lshl_or_b32 v8, v8, 13, v11")
        if wqm == 2:
            a("s_lshr_b32 s76, s2, 2\ns_lshl_b32 s76, s76, 7")
        else:
            a("s_lshr_b32 s76, s2, 4\ns_lshl_b32 s76, s76, 9")
            a("s_and_b32 s77, s2, 3\ns_lshl_b32 s77, s77, 7\ns_add_u32 s76, s76, s77")
        for i in range(1, 14): a("s_mov_b32 s%d, %d" % (52 + i, i * 8192))
        a("s_sub_u32 s34, 3670016, s76\ns_bitcmp1_b32 s2, " + ("0" if wqm == 2 else "3") + "\ns_cselect_b32 s34, 0, s34\ns_mov_b32 s35, 0x20000\ns_mov_b32 s38, 896\ns_mov_b32 s39, 0x20000")
    else:
        a("v_lshrrev_b32 v8, 2, v0\ns_lshl_b32 s76, s3, 4\nv_add_u32 v8, s76, v8")
        a("v_lshlrev_b32 v9, 4, v8")
        a("v_lshl_or_b32 v8, v8, 16, v3")
        a("s_lshr_b32 s76, s2, 4\ns_lshl_b32 s76, s76, 9")
        a("s_and_b32 s77, s2, 3\ns_lshl_b32 s77, s77, 7\ns_add_u32 s76, s76, s77")
        a("s_bfe_u32 s77, s2, 0x10003\ns_lshl_b32 s77, s77, 6\ns_add_u32 s76, s76, s77")
        for i in range(1, 8): a("s_mov_b32 s%d, %d" % (52 + i, i * 8192))
        a("s_sub_u32 s34, 3670016, s76\ns_mov_b32 s35, 0x20000\ns_mov_b32 s38, 896\ns_mov_b32 s39, 0x20000")
    a("s_mov_b32 s50, 0x%x\ns_mov_b32 s51, 0x20000" % WS_END)
    if wqx:
        a("v_lshrrev_b32 v8, 4, v0\ns_mul_i32 s77, s3, 28\nv_add_u32 v8, s77, v8\nv_and_b32 v11, 15, v0\nv_lshlrev_b32 v11, 4, v11\nv_lshl_or_b32 v8, v8, 13, v11")
        a("s_lshr_b32 s76, s2, 5\ns_lshl_b32 s76, s76, 10\ns_and_b32 s77, s2, 3\ns_lshl_b32 s77, s77, 8\ns_add_u32 s76, s76, s77")
        a("s_bfe_u32 s77, s2, 0x20003\ns_mul_i32 s77, s77, %d\ns_add_u32 s92, s76, s77" % (112 * 8192))
        for i in range(1, 7): a("s_mov_b32 s%d, %d" % (52 + i, i * 32768))
        a("s_mov_b32 s59, 0\ns_sub_u32 s34, 3670016, s92")
        a("s_lshr_b32 s76, s2, 4\ns_lshl_b32 s76, s76, 9")
        a("s_and_b32 s77, s2, 3\ns_lshl_b32 s77, s77, 7\ns_add_u32 s76, s76, s77")
        a("s_bfe_u32 s77, s2, 0x10003\ns_lshl_b32 s77, s77, 6\ns_add_u32 s76, s76, s77")
    a("s_bitcmp1_b32 s2, %d" % (1 if wqm == 2 else 2))
    a("s_waitcnt lgkmcnt(0)")
    if not LB or "helper" in dis: a("s_barrier")
    if "helper" in dis:
        a("v_mov_b32 v6, 0\nv_mov_b32 v7, 2\nds_write_b32 v6, v7 offset:%d\nds_write_b32 v6, v7 offset:%d" % (L_CNT + C_QRDY, L_CNT + C_CLR))
        a("s_lshl_b32 s84, s2, 7\ns_add_u32 s84, s84, %d\ns_add_u32 s84, s84, s30\ns_addc_u32 s85, s31, 0\ns_mov_b32 s86, 128\ns_mov_b32 s87, 0x20000" % STAMP_OFF)
        a("v_mov_b32 v16, s90\nv_mov_b32 v17, 0\nbuffer_store_dwordx2 v[16:17], v6, s[84:87], 0 offen\ns_endpgm")
    a("s_cselect_b32 s32, s20, s10\ns_cselect_b32 s33, s21, s11\ns_cselect_b32 s77, 0x2000, 0")
    a("s_add_u32 s32, s32, s%d\ns_addc_u32 s33, s33, 0\ns_mov_b32 s36, s4\ns_mov_b32 s37, s5" % (92 if wqx else 76))
    a("buffer_load_dwordx4 v[%d:%d], v9, s[36:39], 0 offen" % (XV, XV + 3))
    def wql(i): a("buffer_load_dwordx4 v[%d:%d], v8, s[32:35], %s offen%s" % (W + 4 * i, W + 4 * i + 3, "0" if i == 0 else "s%d" % (52 + i), NTW))
    if wqm: a("buffer_load_dwordx3 v[%d:%d], v9, s[36:39], 0 offen offset:16" % (XV + 4, XV + 6))
    for i in range(14 if wqm else WQW):
        if wqx == 2 or (wqx and i == 7): continue
        wql(i)
    a("s_load_dword s70, s[30:31], 0x%x" % WS_EPOCH)
    if LB: a("s_barrier")
    a("s_add_u32 s75, s76, s77\ns_lshl_b32 s75, s75, 1")
    a("s_mov_b32 s48, s30\ns_mov_b32 s49, s31")
    a("s_lshl_b32 s74, s2, 12")
    a("s_mov_b32 s76, 0x05040100\ns_mov_b32 s77, 0x07060302")
    if wqm:
        a("v_lshrrev_b32 v4, 4, v0\nv_lshlrev_b32 v4, 3, v4\nv_lshl_or_b32 v4, v11, 1, v4\ns_lshl_b32 s78, s3, 8\nv_add_u32 v4, s78, v4")
        a("v_and_b32 v5, 31, v0\nv_lshlrev_b32 v5, 3, v5\nv_add_u32 v5, %d, v5" % L_QP)
    else:
        a("v_lshrrev_b32 v4, 4, v0\ns_lshl_b32 s78, s3, 2\nv_add_u32 v4, s78, v4\nv_lshlrev_b32 v4, 7, v4\nv_lshl_or_b32 v4, v3, 1, v4")
        a("v_and_b32 v5, 31, v0\nv_lshlrev_b32 v5, 2, v5\nv_lshrrev_b32 v6, 5, v0\nv_lshl_or_b32 v5, v6, 10, v5")
        a("v_add_u32 v5, %d, v5" % L_QP)
    a("v_mov_b32 v6, 0\nv_mov_b32 v7, 1\nv_lshlrev_b32 v2, 2, v0")
    if dbgt: a("v_mov_b32 v63, 0\nv_writelane_b32 v63, s90, 0")
    a("s_lshr_b32 s72, s%d, 5\ns_lshl_b32 s72, s72, 11\ns_add_u32 s72, s72, 0x4000" % (2 if wqx else 92))
    a("s_lshr_b32 s73, s93, 4\ns_lshl_b32 s73, s73, 10")
    a("v_lshlrev_b32 v10, 3, v0")
    for i in range(WQW, 8):
        a("s_waitcnt vmcnt(%d)" % (WQW - 1)); wql(i)
    a("s_setprio 3")
    if wqm:
        for k in range(7):
            a("s_waitcnt vmcnt(%d)" % (12 - 2 * k))
            w0 = W + 8 * k; w1 = w0 + 4
            for d in range(4):
                a("v_perm_b32 v%d, v%d, v%d, s76" % (PT + 2 * d, w1 + d, w0 + d))
                a("v_perm_b32 v%d, v%d, v%d, s77" % (PT + 1 + 2 * d, w1 + d, w0 + d))
            for e in range(8):
                a("v_dot2_f32_bf16 v%d, v%d, v%d, %s" % (AC + e, PT + e, XV + k, "0" if k == 0 else "v%d" % (AC + e)))
        a("s_waitcnt lgkmcnt(0)")
        stamp(1)
        for j in range(4): a("v_permlane32_swap_b32 v%d, v%d" % (AC + j, AC + j + 4))
        for j in range(4): a("v_add_f32 v%d, v%d, v%d" % (AC + j, AC + j, AC + j + 4))
        for j in range(2): a("v_permlane16_swap_b32 v%d, v%d" % (AC + j, AC + j + 2))
        for j in range(2): a("v_add_f32 v%d, v%d, v%d" % (AC + j, AC + j, AC + j + 2))
        for j in range(2): a(dpp("v_add_f32", AC + j, AC + j, AC + j, "row_ror:8"))
        a("ds_write_b64 v4, v[%d:%d] offset:%d" % (AC, AC + 1, L_QP))
        a("s_mov_b64 exec, 1")
        a("ds_add_rtn_u32 v9, v6, v7 offset:%d" % (L_CNT + C_QARR))
        a("s_mov_b64 exec, -1")
        a("ds_read2_b64 v[28:31], v5 offset0:0 offset1:32\nds_read2_b64 v[32:35], v5 offset0:64 offset1:96")
        a("s_waitcnt lgkmcnt(0)\nv_readfirstlane_b32 s71, v9")
        a("s_mul_i32 s70, s70, 0x9e3779b1\ns_add_u32 s70, s70, 0x7f4a7c15")
        a("s_cmp_lg_u32 s71, 3\ns_cbranch_scc1 L_h_wq")
        a("v_pk_add_f32 v[28:29], v[28:29], v[30:31]\nv_pk_add_f32 v[32:33], v[32:33], v[34:35]\nv_pk_add_f32 v[28:29], v[28:29], v[32:33]")
        a("v_cvt_pk_bf16_f32 v28, v28, v29\nv_mov_b32 v29, s70")
        a("s_bitcmp1_b32 s2, %d\ns_cselect_b32 exec_lo, 0, -1\ns_mov_b32 exec_hi, 0" % (0 if wqm == 2 else 3))
        a("buffer_store_dwordx2 v[28:29], v10, s[48:51], s75 offen sc1")
    else:
        if dbgt == 3:
            a("s_waitcnt vmcnt(8)"); stamp(14)
            a("s_waitcnt vmcnt(7)"); stamp(15)
        a("s_waitcnt vmcnt(0) lgkmcnt(0)")
        stamp(1)
    if not wqm:
        for k in range(4):
            w0 = W + 8 * k; w1 = w0 + 4
            for d in range(4):
                a("v_perm_b32 v%d, v%d, v%d, s76" % (28 + 2 * d, w1 + d, w0 + d))
                a("v_perm_b32 v%d, v%d, v%d, s77" % (29 + 2 * d, w1 + d, w0 + d))
            for e in range(8):
                a("v_dot2_f32_bf16 v%d, v%d, v%d, %s" % (AC + e, 28 + e, XV + k, "0" if k == 0 else "v%d" % (AC + e)))
        for e in range(8): a(dpp("v_add_f32", AC + e, AC + e, AC + e, "row_ror:4"))
        for e in range(8): a(dpp("v_add_f32", AC + e, AC + e, AC + e, "row_ror:8"))
        a("s_mov_b32 exec_lo, 0x000f000f\ns_mov_b32 exec_hi, 0x000f000f")
        a("ds_write_b128 v4, v[%d:%d] offset:%d" % (AC, AC + 3, L_QP))
        a("ds_write_b128 v4, v[%d:%d] offset:%d" % (AC + 4, AC + 7, L_QP + 16))
        a("s_mov_b64 exec, 1")
        a("ds_add_rtn_u32 v9, v6, v7 offset:%d" % (L_CNT + C_QARR))
        a("s_mov_b64 exec, -1")
        for i in range(4):
            a("ds_read2_b32 v[%d:%d], v5 offset0:%d offset1:%d" % (28 + 2 * i, 29 + 2 * i, 64 * i, 64 * i + 32))
        a("s_waitcnt lgkmcnt(0)\nv_readfirstlane_b32 s71, v9")
        a("s_mul_i32 s70, s70, 0x9e3779b1\ns_add_u32 s70, s70, 0x7f4a7c15")
        a("s_cmp_lg_u32 s71, 3\ns_cbranch_scc1 L_h_wq")
        a("v_add_f32 v28, v28, v29\nv_add_f32 v30, v30, v31\nv_add_f32 v32, v32, v33\nv_add_f32 v34, v34, v35")
        a("v_add_f32 v28, v28, v30\nv_add_f32 v32, v32, v34\nv_add_f32 v28, v28, v32")
        a("v_mov_b32 v29, v28\nv_permlane32_swap_b32 v29, v28\nv_add_f32 v28, v28, v29")
        a("v_mov_b32_dpp v29, v28 quad_perm:[1,0,3,2] row_mask:0xf bank_mask:0xf")
        a("s_getreg_b32 s79, hwreg(HW_REG_XCC_ID, 0, 4)\ns_xor_b32 s79, s79, s70")
        a("v_cvt_pk_bf16_f32 v28, v28, v29\nv_mov_b32 v29, s79")
        a("s_mov_b32 exec_lo, 0x55555555\ns_mov_b32 exec_hi, 0")
        a("buffer_store_dwordx2 v[28:29], v2, s[48:51], s75 offen sc1")
    a("s_mov_b64 exec, 0xffff")
    a("v_mov_b32 v30, 0\nv_mov_b32 v31, s70\nds_write_b32 v6, v31 offset:%d" % (L_CNT + C_TAG))
    a("s_cmp_ge_u32 s2, 16\ns_cbranch_scc1 L_h_noci")
    a("s_mul_i32 s76, s2, %d\ns_add_u32 s76, s76, %d" % (CSTR, WS_CNT))
    a("buffer_store_dwordx2 v[30:31], v10, s[48:51], s76 offen sc1")
    a("L_h_noci:")
    a("s_mov_b64 exec, -1")
    stamp(2)
    ldswait("prg", 6, 4, L_CNT + C_PRG, "ge", 4, slp=2)
    a("s_mov_b32 s83, %d" % spin)
    a("L_h_fw:")
    a("buffer_load_dwordx4 v[16:19], v1, s[48:51], s72 offen sc1")
    a("buffer_load_dwordx4 v[20:23], v1, s[48:51], s72 offen offset:1024 sc1")
    a("buffer_load_dwordx4 v[24:27], v1, s[48:51], s73 offen sc1")
    a("s_waitcnt vmcnt(0)")
    assert not wqm
    a("v_xor_b32 v4, s79, v17\nv_xor_b32 v5, s79, v19\nv_xor_b32 v8, s79, v21\nv_xor_b32 v9, s79, v23\nv_xor_b32 v11, s79, v25\nv_xor_b32 v12, s79, v27")
    a("v_or3_b32 v4, v4, v5, v8\nv_or_b32 v4, v4, v9\nv_or3_b32 v9, v4, v11, v12\nv_cmp_lt_u32 vcc, 15, v9")
    a("s_sub_u32 s83, s83, 1\ns_cbranch_scc1 L_h_fg")
    a("s_cbranch_vccnz L_h_fw")
    a("L_h_fg:")
    a("ds_write2_b32 v10, v16, v18 offset0:0 offset1:1")
    a("ds_write2_b32 v10, v20, v22 offset0:128 offset1:129")
    a("v_add_u32 v10, 1024, v10")
    a("ds_write2_b32 v10, v24, v26 offset0:0 offset1:1")
    a("v_cmp_ne_u32 vcc, 0, v4\ns_nop 0\ns_cmp_lg_u64 vcc, 0\ns_cselect_b32 s76, 1, %d\nv_mov_b32 v5, s76" % BK)
    a("s_mov_b64 exec, 1")
    a("ds_write_b32 v6, v5 offset:%d" % (L_CNT + C_QRDY))
    a("s_mov_b64 exec, -1")
    stamp(3)
    a("L_h_wq:")
    ldswait("bq", 6, 4, L_CNT + C_QRDY, "lg", 0, slp=4)
    a("s_max_u32 s94, s76, 1")
    WB = 104; WA_ = 120; WC = 136
    G_ = 60; GA = 61; OV = 62; YV = 64; PV = 68; MLV = 69; PVA = 70; MLA = 71; EE = 32; ACC = 72
    a("v_lshrrev_b32 v12, 4, v0\nv_mul_u32_u24 v12, 896, v12\nv_and_b32 v13, 15, v0\nv_lshl_add_u32 v12, v13, 4, v12")
    a("s_and_b32 s78, s2, 3\ns_cmp_eq_u32 s78, 3\ns_cselect_b32 s77, 8, 0\nv_and_b32 v13, s77, v0\nv_lshl_or_b32 v12, v13, 24, v12")
    for rg in range(1, 4): a("v_add_u32 v%d, %d, v12" % (12 + rg, rg * 3584))
    a("s_lshr_b32 s76, s2, 2\ns_lshl2_add_u32 s69, s76, s71\ns_mul_i32 s76, s69, 14336\ns_lshl_b32 s78, s78, 8\ns_add_u32 s76, s76, s78")
    a("s_sub_u32 s34, 14336, s78\ns_mov_b32 s46, s34\ns_mov_b32 s47, 0x20000")
    a("s_add_u32 s32, s22, s76\ns_addc_u32 s33, s23, 0\ns_add_u32 s44, s12, s76\ns_addc_u32 s45, s13, 0")
    if "wo" not in dis:
        if WBL is None:
            for rg in range(4): a("buffer_load_dwordx4 v[%d:%d], v%d, s[32:35], 0 offen%s" % (WC + 4 * rg, WC + 4 * rg + 3, 12 + rg, NTW))
        if WOL is None:
            for rg in range(4): a("buffer_load_dwordx4 v[%d:%d], v%d, s[44:47], 0 offen%s" % (WA_ + 4 * rg, WA_ + 4 * rg + 3, 12 + rg, NTW))
    masks(8, 4, 5)
    for r in range(4): a("v_mov_b32 v%d, 0" % (ACC + r))
    a("v_lshrrev_b32 v4, 2, v0\nv_mul_u32_u24 v%d, %d, v4\nv_add_u32 v%d, v%d, v3" % (PVA, PAS, PVA, PVA))
    a("s_mov_b32 s63, 0x0c04000c")
    a("v_mul_u32_u24 v%d, %d, v0" % (YV, 4 * YS))
    a("v_and_b32 v4, 15, v0\nv_lshrrev_b32 v5, 4, v0\nv_lshlrev_b32 v5, 1, v5\nv_lshl_or_b32 v%d, v4, 20, v5" % OV)
    a("s_lshl_b32 s76, s71, 9\nv_add_u32 v%d, s76, v1" % (YV + 1))
    a("s_and_b32 s76, s2, 0xf0\ns_mul_i32 s76, s76, %d\ns_add_u32 s76, s76, %d" % (PAS, WS_PA))
    a("s_and_b32 s77, s69, 15\ns_lshl_b32 s77, s77, 6\ns_add_u32 s62, s76, s77")
    a("s_mul_i32 s68, s2, %d\ns_add_u32 s68, s68, %d" % (YS, WS_Y))
    a("s_add_u32 s56, s30, s68\ns_addc_u32 s57, s31, 0\ns_mov_b32 s58, 0\ns_mov_b32 s59, 0x20000")
    a("s_and_b32 s78, s2, 3\ns_cmp_eq_u32 s78, 3\ns_cselect_b32 s72, 0x00ff00ff, -1")
    a("s_lshr_b32 s73, s2, 1\ns_add_u32 s77, s73, 8\ns_cmp_ge_u32 s73, 104\ns_cselect_b32 s76, s77, s73")
    a("s_lshr_b32 s77, s76, 5\ns_mul_i32 s60, s77, %d\ns_and_b32 s78, s76, 31\ns_lshl4_add_u32 s60, s78, s60\ns_add_u32 s60, s60, %d" % (YS, WS_Y))
    a("s_lshl_b32 s77, s77, 8\ns_and_b32 s78, s76, 15\ns_lshl4_add_u32 s77, s78, s77\ns_bfe_u32 s78, s76, 0x10004\ns_lshl3_add_u32 s77, s78, s77")
    a("s_add_u32 s64, s26, s77\ns_addc_u32 s65, s27, 0\ns_mov_b32 s66, 0\ns_mov_b32 s67, 0x20000")
    a("s_and_b32 s76, s2, 1\ns_lshl_b32 s76, s76, 8\ns_or_b32 s73, s73, s76")
    a("s_mov_b32 s80, 0x03020105\ns_mov_b32 s81, 0x03020106\ns_mov_b32 s82, 0x03020107")
    if CK:
        if "bchain" in dis: a("s_branch L_t_a")
        a("s_cmp_lg_u32 s71, 2\ns_cbranch_scc1 L_b_rd")
    else:
        a("s_mov_b32 s40, s28\ns_mov_b32 s41, s29\ns_mov_b32 s42, 256\ns_mov_b32 s43, 0x20000")
        if "clear" in dis: a("v_mov_b32 v4, 2\nds_write_b32 v6, v4 offset:%d" % (L_CNT + C_CLR))
        if "bchain" in dis and "clear" in dis: a("s_branch L_t_a")
        if "clear" not in dis: a("s_cmp_lt_u32 s71, 2\ns_cbranch_scc1 L_h_clr")
        if "clear" in dis: a("s_cmp_lt_u32 s71, 2\ns_cbranch_scc1 L_b_rd")
        if "bchain" in dis: a("s_branch L_t_a")
        a("s_cmp_eq_u32 s71, 3\ns_cbranch_scc1 L_b_rd")
    a("s_mov_b32 s52, s24\ns_mov_b32 s53, s25\ns_mov_b32 s54, 896\ns_mov_b32 s55, 0x20000")
    a("buffer_load_dwordx4 v[16:19], v1, s[36:39], 0 offen")
    a("buffer_load_dwordx4 v[20:23], v1, s[52:55], 0 offen")
    a("s_waitcnt vmcnt(0)")
    for d in range(4):
        a("v_lshlrev_b32 v24, 16, v%d\nv_and_b32 v25, 0xffff0000, v%d\nv_lshlrev_b32 v26, 16, v%d\nv_and_b32 v27, 0xffff0000, v%d" % (16 + d, 16 + d, 20 + d, 20 + d))
        a("v_mul_f32 v24, v24, v26\nv_mul_f32 v25, v25, v27\nv_cvt_pk_bf16_f32 v24, v24, v25")
        a("v_lshlrev_b32 v25, 16, v24\nv_and_b32 v24, 0xffff0000, v24")
        if d == 0: a("v_add_f32 v28, v24, v25")
        else: a("v_add_f32 v28, v28, v24\nv_add_f32 v28, v28, v25")
    for ctl in ("quad_perm:[1,0,3,2]", "quad_perm:[2,3,0,1]", "row_half_mirror", "row_mirror"):
        a(dpp("v_add_f32", 28, 28, 28, ctl))
    allrows("v_add_f32", 28, 29)
    a("v_cvt_pk_bf16_f32 v28, v28, v28\nv_and_b32 v28, 0xffff0000, v28")
    a("v_mul_f32 v28, %s, v28\nv_exp_f32 v28, v28\nv_add_f32 v28, 1.0, v28\nv_rcp_f32 v28, v28" % f32(-math.log2(math.e)))
    a("v_cvt_pk_bf16_f32 v28, v28, v28\nv_and_b32 v%d, 0xffff0000, v28" % GA)
    a("v_sub_f32 v28, 1.0, v%d\nv_cvt_pk_bf16_f32 v28, v28, v28\nv_and_b32 v%d, 0xffff0000, v28" % (GA, G_))
    a("ds_write_b32 v6, v%d offset:%d" % (GA, L_CNT + C_G))
    ldswait("vb", 6, 4, L_CNT + C_VDB, "eq", 8, slp=4)
    stamp(4)
    a("s_mul_i32 s76, s%d, %d\ns_add_u32 s76, s76, %d" % (2 if wqx else 92, PBS, WS_PB))
    if BL: a("s_mov_b32 s55, s76\ns_getreg_b32 s79, hwreg(HW_REG_XCC_ID, 0, 4)\ns_add_u32 s79, s79, s70\ns_add_u32 s79, s79, 1")
    for h in range(2):
        a("ds_read_b128 v[16:19], v6 offset:%d\nds_read_b128 v[20:23], v6 offset:%d" % (L_MW + 32 * h, L_MW + 32 * h + 16))
        a("ds_read_b128 v[24:27], v6 offset:%d\nds_read_b128 v[28:31], v6 offset:%d" % (L_LW + 32 * h, L_LW + 32 * h + 16))
        a("s_waitcnt lgkmcnt(0)")
        mx = 88 + 4 * h
        a("v_max3_f32 v%d, v16, v17, v18\nv_max3_f32 v%d, v%d, v19, v20\nv_max3_f32 v%d, v%d, v21, v22\nv_max_f32 v%d, v%d, v23" % (mx, mx, mx, mx, mx, mx, mx))
        for w in range(8): a("v_sub_f32 v%d, v%d, v%d" % (16 + w, 16 + w, mx))
        for w in range(8): a("v_exp_f32 v%d, v%d" % (16 + w, 16 + w))
        a("v_mul_f32 v%d, v16, v24" % (mx + 2))
        for w in range(1, 8): a("v_fmac_f32 v%d, v%d, v%d" % (mx + 2, 16 + w, 24 + w))
        o = 96 + 4 * h
        for half in range(2):
            for w in range(4):
                a("ds_read_b128 v[%d:%d], v1 offset:%d" % (32 + 4 * w, 35 + 4 * w, L_ACCB + h * 8192 + (half * 4 + w) * 1024))
            a("s_waitcnt lgkmcnt(0)")
            for w in range(4):
                for k in range(4):
                    if half == 0 and w == 0: a("v_mul_f32 v%d, v%d, v16" % (o + k, 32 + k))
                    else: a("v_fmac_f32 v%d, v%d, v%d" % (o + k, 32 + 4 * w + k, 16 + half * 4 + w))
        if BH:
            a("v_cvt_pk_bf16_f32 v%d, v%d, v%d\nv_cvt_pk_bf16_f32 v%d, v%d, v%d\nv_lshlrev_b32 v5, 3, v0" % (o, o, o + 1, o + 1, o + 2, o + 3))
            a("buffer_store_dwordx2 v[%d:%d], v5, s[48:51], s76 offen offset:%d%s" % (o, o + 1, 512 * h, BST))
        else:
            a("buffer_store_dwordx4 v[%d:%d], v1, s[48:51], s76 offen offset:%d sc1" % (o, o + 3, 1024 * h))
    a("v_and_b32 v4, 1, v0\nv_cmp_eq_u32 vcc, 1, v4")
    a("v_cndmask_b32 v88, v88, v92, vcc\nv_cndmask_b32 v90, v90, v94, vcc\nv_mov_b32 v89, s%d\nv_mov_b32 v91, s%d" % ((79, 79) if BL else (70, 70)))
    a("s_waitcnt vmcnt(0)")
    a("s_mov_b64 exec, 0xff")
    a("buffer_store_dwordx4 v[88:91], v1, s[48:51], s76 offen offset:%d%s" % (MLO, BST))
    a("s_mov_b64 exec, -1")
    stamp(5)
    if not BL: a("s_mov_b32 s79, 0x01010101")
    a("v_and_b32 v4, 31, v0\nv_mul_u32_u24 v%d, %d, v4" % (MLV, PBS))
    if BH:
        a("v_lshrrev_b32 v5, 3, v0\nv_mul_u32_u24 v%d, %d, v5\nv_and_b32 v16, 7, v0\nv_lshl_add_u32 v%d, v16, 4, v%d" % (PV, PBS, PV, PV))
        a("v_lshlrev_b32 v66, 4, v5")
        a("v_lshrrev_b32 v4, 3, v4\nv_lshl_or_b32 v67, v16, 2, v4\nv_lshlrev_b32 v67, 2, v67")
        a("v_lshrrev_b32 v5, 4, v0\nv_lshlrev_b32 v5, 3, v5\nv_lshl_or_b32 v71, v16, 5, v5")
    else:
        a("v_lshrrev_b32 v5, 4, v0\nv_mul_u32_u24 v%d, %d, v5\nv_and_b32 v16, 15, v0\nv_lshl_add_u32 v%d, v16, 4, v%d" % (PV, PBS, PV, PV))
        a("v_lshlrev_b32 v66, 5, v5")
        a("v_and_b32 v16, 3, v0\nv_lshrrev_b32 v4, 2, v4\nv_lshl_or_b32 v67, v16, 3, v4\nv_lshlrev_b32 v67, 2, v67")
    a("s_and_b32 s76, s2, 0xe0\ns_mul_i32 s76, s76, %d\ns_add_u32 s76, s76, %d" % (PBS, WS_PB))
    a("s_bfe_u32 s77, s2, 0x10004\ns_lshl4_add_u32 s54, s77, s76\ns_add_u32 s54, s54, %d" % MLO)
    a("s_and_b32 s77, s2, 28\ns_lshl_b32 s77, s77, %d\ns_add_u32 s52, s76, s77" % (5 if BH else 6))
    ldswait("kb", 6, 4, L_CNT + C_KD, "ge", BTRIG, slp=8)
    a("s_mov_b32 s83, %d" % spin)
    if BL:
        a("s_mov_b32 s53, s94")
        a("L_b_w:")
        a("buffer_load_dwordx4 v[24:27], v%d, s[48:51], s54 offen sc1" % MLV)
        a("s_waitcnt vmcnt(0)")
        a("v_xor_b32 v4, s79, v25\nv_xor_b32 v5, s79, v27\nv_or_b32 v4, v4, v5\nv_cmp_ne_u32 vcc, 0, v4")
        a("s_cbranch_vccz L_b_g")
        a("v_xor_b32 v16, s70, v25\nv_xor_b32 v5, s70, v27\nv_or_b32 v16, v16, v5\nv_cmp_eq_u32 s[76:77], 0, v16")
        a("s_nop 0\ns_cmp_lg_u64 s[76:77], 0\ns_cselect_b32 s78, 1, s53\ns_min_u32 s53, s53, s78")
        a("s_andn2_b64 s[76:77], vcc, s[76:77]")
        a("s_cmp_eq_u32 s53, 0\ns_cbranch_scc1 L_b_n")
        a("s_sub_u32 s53, s53, 1\ns_cmp_lg_u32 s53, 0\ns_cbranch_scc1 L_b_n")
        a("v_lshlrev_b32 v5, 3, v0\nv_mov_b32 v89, s70\nv_mov_b32 v91, s70")
        a("buffer_store_dwordx2 v[96:97], v5, s[48:51], s55 offen sc1")
        a("buffer_store_dwordx2 v[100:101], v5, s[48:51], s55 offen offset:512 sc1")
        a("s_waitcnt vmcnt(0)\ns_mov_b64 exec, 0xff")
        a("buffer_store_dwordx4 v[88:91], v1, s[48:51], s55 offen offset:%d sc1" % MLO)
        a("s_mov_b64 exec, -1")
        a("L_b_n:")
        a("s_cmp_eq_u64 s[76:77], 0\ns_cbranch_scc1 L_b_g")
        a("s_sub_u32 s83, s83, 1\ns_cbranch_scc1 L_b_g")
        a("s_sleep 32\ns_branch L_b_w")
    else:
        a("L_b_w:")
        if "clear" in dis or CK: a("v_mov_b32 v4, s79")
        else: a("buffer_load_dword v4, v2, s[40:43], 0 offen sc1")
        a("buffer_load_dwordx4 v[24:27], v%d, s[48:51], s54 offen sc1" % MLV)
        a("s_waitcnt vmcnt(0)")
        a("v_xor_b32 v4, s79, v4\nv_xor_b32 v5, s70, v25\nv_xor_b32 v16, s70, v27")
        a("v_or3_b32 v4, v4, v5, v16\nv_cmp_ne_u32 vcc, 0, v4")
        a("s_sub_u32 s83, s83, 1\ns_cbranch_scc1 L_b_g")
        a("s_cbranch_vccz L_b_g\ns_sleep 32\ns_branch L_b_w")
    a("L_b_g:")
    for i in range(4 if BH else 8):
        a("buffer_load_dwordx4 v[%d:%d], v%d, s[48:51], s52 offen sc1" % (28 + 4 * i, 31 + 4 * i, PV))
        if i < 7: a("s_add_u32 s52, s52, %d" % ((8 if BH else 4) * PBS))
    a("v_mov_b32 v4, v24")
    for ctl in ("quad_perm:[1,0,3,2]", "quad_perm:[2,3,0,1]", "row_half_mirror", "row_mirror"):
        a(dpp("v_max_f32", 4, 4, 4, ctl))
    allrows("v_max_f32", 4, 5)
    a("v_sub_f32 v24, v24, v4\nv_exp_f32 v24, v24\nv_mul_f32 v26, v26, v24")
    for ctl in ("quad_perm:[1,0,3,2]", "quad_perm:[2,3,0,1]", "row_half_mirror", "row_mirror"):
        a(dpp("v_add_f32", 26, 26, 26, ctl))
    a("v_mov_b32 v5, v26\nv_permlane16_swap_b32 v5, v26\nv_add_f32 v26, v26, v5")
    a("v_rcp_f32 v26, v26\nv_mul_f32 v24, v24, v%d\nv_mul_f32 v24, v24, v26" % G_)
    a("ds_write_b32 v67, v24 offset:%d" % L_ACCB)
    if BH:
        a("ds_read_b128 v[16:19], v66 offset:%d" % L_ACCB)
        a("s_waitcnt vmcnt(0) lgkmcnt(0)")
        AC2 = 44
        for i in range(4):
            for d in range(4):
                a("v_lshlrev_b32 v20, 16, v%d\nv_and_b32 v21, 0xffff0000, v%d" % (28 + 4 * i + d, 28 + 4 * i + d))
                for e in range(2):
                    if i == 0: a("v_mul_f32 v%d, v%d, v16" % (AC2 + 2 * d + e, 20 + e))
                    else: a("v_fmac_f32 v%d, v%d, v%d" % (AC2 + 2 * d + e, 20 + e, 16 + i))
        for j in range(4): a("v_permlane32_swap_b32 v%d, v%d" % (AC2 + j, AC2 + j + 4))
        for j in range(4): a("v_add_f32 v%d, v%d, v%d" % (AC2 + j, AC2 + j, AC2 + j + 4))
        for j in range(2): a("v_permlane16_swap_b32 v%d, v%d" % (AC2 + j, AC2 + j + 2))
        for j in range(2): a("v_add_f32 v%d, v%d, v%d" % (AC2 + j, AC2 + j, AC2 + j + 2))
        for j in range(2): a(dpp("v_add_f32", AC2 + j, AC2 + j, AC2 + j, "row_ror:8"))
        a("ds_write_b64 v71, v[%d:%d] offset:%d" % (AC2, AC2 + 1, L_ACCB + 1024))
    else:
        a("ds_read_b128 v[16:19], v66 offset:%d\nds_read_b128 v[20:23], v66 offset:%d" % (L_ACCB, L_ACCB + 16))
        a("s_waitcnt vmcnt(0) lgkmcnt(0)")
        for i in range(8):
            for r in range(4):
                if i == 0: a("v_mul_f32 v%d, v%d, v16" % (24 + r, 28 + r))
                else: a("v_fmac_f32 v%d, v%d, v%d" % (24 + r, 28 + 4 * i + r, 16 + i))
        for r in range(4): allrows("v_add_f32", 24 + r, 5)
        a("ds_write_b128 v1, v[24:27] offset:%d" % (L_ACCB + 1024))
    a("s_mov_b64 exec, 1")
    a("ds_write_b32 v6, v7 offset:%d" % (L_CNT + C_YB))
    a("s_mov_b64 exec, -1")
    a("L_b_rd:")
    ldswait("yb", 6, 4, L_CNT + C_YB, "lg", 0, slp=8)
    PR = 76; LM = 88
    a("v_mov_b32 v%d, 0\nv_mov_b32 v%d, 0\nv_mov_b32 v%d, 0\nv_mov_b32 v%d, %s\nv_mov_b32 v%d, 1.0" % (PR, PR + 1, PR + 2, LM, f32(-1e30), G_))
    a("ds_read_b32 v%d, v6 offset:%d" % (GA, L_CNT + C_G))
    a("s_lshl_b32 s76, s71, 6\nv_add_u32 v4, s76, v1\ns_mov_b64 exec, 0xf")
    a("ds_read_b128 v[%d:%d], v4 offset:%d\nv_mov_b32 v%d, 0" % (PR, PR + 3, L_ACCB + 1024, LM))
    a("s_mov_b32 s61, 0\ns_mov_b32 s74, 1")
    a("s_waitcnt vmcnt(0) lgkmcnt(0)")
    for k in range(3): a("v_perm_b32 v%d, v%d, v%d, s%d" % (PR + k, PR + 3, PR + k, 80 + k))
    a("s_mov_b64 exec, -1")
    stamp(6)
    a("s_branch L_t_pg")
    a("L_t_a:")
    a("s_mov_b32 s61, 4\ns_mov_b32 s74, %d\ns_movk_i32 s58, 512\ns_mov_b32 s66, 8" % spin)
    a("v_mov_b32 v%d, v%d" % (G_, GA))
    if WOL is None:
        for r in range(16): a("v_mov_b32 v%d, v%d" % (WC + r, WA_ + r))
    elif WBL is not None:
        th = WST or [WBL] * 4 + [-WOL] * 4
        for i in range(8):
            if i == 0 or th[i] != th[i - 1]: ldswait("eb%d" % i, 6, 4, L_CNT + C_VDA, "ge", th[i], slp=EXS)
            rg = i & 3
            if i < 4: a("buffer_load_dwordx4 v[%d:%d], v%d, s[32:35], 0 offen%s" % (WB + 4 * rg, WB + 4 * rg + 3, 12 + rg, NTW))
            else: a("buffer_load_dwordx4 v[%d:%d], v%d, s[44:47], 0 offen%s" % (WC + 4 * rg, WC + 4 * rg + 3, 12 + rg, NTW))
        for rg in range(4):
            a("s_waitcnt vmcnt(%d)" % (7 - rg))
            a("v_mfma_f32_16x16x32_bf16 v[%d:%d], v[%d:%d], v[%d:%d], %s" % (ACC, ACC + 3, EE + rg * 4, EE + rg * 4 + 3, WB + 4 * rg, WB + 4 * rg + 3, "0" if rg == 0 else "v[%d:%d]" % (ACC, ACC + 3)))
    else:
        if WOL >= 0: ldswait("ex", 6, 4, L_CNT + C_LS, "gt", NT_ - WOL, slp=EXS)
        else: ldswait("ex", 6, 4, L_CNT + C_VDA, "ge", -WOL, slp=EXS)
        for rg in range(4): a("buffer_load_dwordx4 v[%d:%d], v%d, s[44:47], 0 offen%s" % (WC + 4 * rg, WC + 4 * rg + 3, 12 + rg, NTW))
    stamp(8)
    if dumat:
        a("s_lshr_b32 s76, s93, 4\ns_lshl_b32 s76, s76, 10\ns_lshl_b32 s77, s71, 8\ns_add_u32 s76, s76, s77\ns_add_u32 s76, s76, %d" % (WS_CNT + 0x10000))
        a("v_lshlrev_b32 v20, 7, v0\nv_add_u32 v20, s76, v20\nv_mov_b32 v22, 1\nv_mov_b32 v23, 0\ns_mov_b32 s83, 4000")
        a("L_du_w:")
        a("s_mov_b64 exec, %d" % (2 ** dumat - 1))
        a("global_atomic_add_x2 v[24:25], v20, v[22:23], s[30:31] sc0 sc1")
        a("s_mov_b64 exec, -1")
        a("ds_read_b32 v4, v6 offset:%d\ns_waitcnt vmcnt(0) lgkmcnt(0)\nv_readfirstlane_b32 s76, v4" % (L_CNT + C_VDA))
        a("s_sub_u32 s83, s83, 1\ns_cbranch_scc1 L_du_g")
        a("s_cmp_eq_u32 s76, 0\ns_cbranch_scc1 L_du_w")
        a("L_du_g:")
    ldswait("va", 6, 4, L_CNT + C_VDA, "ge", VAT, slp=LSL)
    if "apass" in dis: a("s_mov_b32 s76, 3\ns_branch L_fin")
    stamp(9)
    a("s_mov_b32 s83, %d" % spin)
    PL = 84 if PP > 1 else PR
    pl = "buffer_load_dwordx4 v[%d:%d], v%d, s[48:51], s62 offen sc1" % (PL, PL + 3, PVA)
    for i in range(PP - 1): a(pl + "\ns_sleep %d" % PD)
    a("L_t_pw:")
    a(pl)
    a("s_waitcnt vmcnt(%d)" % (PP - 1))
    if PP > 1: a("v_mov_b64 v[%d:%d], v[%d:%d]\nv_mov_b64 v[%d:%d], v[%d:%d]" % (PR, PR + 1, PL, PL + 1, PR + 2, PR + 3, PL + 2, PL + 3))
    if CK:
        a("v_bitop3_b32 v4, v%d, v%d, v%d %s\nv_xor_b32 v4, v4, v%d" % (PR, PR + 1, PR + 2, X3, PR + 3))
        a("v_mov_b32_dpp v%d, v%d quad_perm:[0,0,2,2] row_mask:0xf bank_mask:0xf" % (LM, PR + 3))
        a(dpp("v_xor_b32", 4, 4, 4, "quad_perm:[1,0,3,2]"))
        a("v_cmp_ne_u32 vcc, s70, v4")
    else:
        a("v_max3_u32 v4, v%d, v%d, v%d\nv_max_u32 v4, v4, v%d\nv_cmp_eq_u32 vcc, -1, v4\nv_mov_b32 v%d, v%d" % (PR, PR + 1, PR + 2, PR + 3, LM, PR + 3))
    a("s_cbranch_vccz L_t_pg0")
    if PMASK: a("s_mov_b64 exec, vcc")
    if PSLP: a("s_sleep %d" % PSLP)
    a("s_sub_u32 s83, s83, 1\ns_cbranch_scc0 L_t_pw")
    a("L_t_pg0:")
    if PMASK: a("s_mov_b64 exec, -1")
    stamp(10)
    a("L_t_pg:")
    a(dpp("v_max_f32", 4, LM, LM, "row_ror:4"))
    a("v_perm_b32 v19, v%d, v%d, s63" % (PR + 1, PR))
    a("v_lshl_or_b32 v19, v%d, 24, v19" % (PR + 2))
    a(dpp("v_max_f32", 4, 4, 4, "row_ror:8"))
    allrows("v_max_f32", 4, 5)
    a("v_sub_f32 v24, v%d, v4\nv_exp_f32 v24, v24" % LM)
    for r in range(3): a("v_mul_f32 v%d, v%d, v24" % (16 + r, PR + r))
    a("v_mul_f32 v19, v19, v24")
    a(dpp("v_add_f32", 25, 24, 24, "row_ror:4"))
    a("v_permlane16_swap_b32 v16, v17\nv_permlane16_swap_b32 v18, v19")
    a(dpp("v_add_f32", 25, 25, 25, "row_ror:8"))
    a("v_add_f32 v16, v16, v17\nv_add_f32 v18, v18, v19")
    a("v_mov_b32 v5, v25\nv_permlane32_swap_b32 v16, v18\nv_permlane16_swap_b32 v5, v25")
    a("v_add_f32 v16, v16, v18\nv_add_f32 v25, v25, v5\nv_mov_b32 v5, v25")
    a(dpp("v_add_f32", 16, 16, 16, "row_ror:4"))
    a("v_permlane32_swap_b32 v5, v25\nv_add_f32 v25, v25, v5")
    a(dpp("v_add_f32", 16, 16, 16, "row_ror:8"))
    a("v_rcp_f32 v25, v25\nv_mul_f32 v16, v16, v%d\nv_mul_f32 v16, v16, v25\nv_cvt_pk_bf16_f32 v16, v16, v16" % G_)
    for rg in range(4):
        for k in range(4):
            a(dpp("v_and_b32", EE + rg * 4 + k, 16, 8 + k, "quad_perm:[%d,%d,%d,%d]" % (rg, rg, rg, rg)))
        if rg: a("v_mfma_f32_16x16x32_bf16 v[%d:%d], v[%d:%d], v[%d:%d], v[%d:%d]" % (ACC, ACC + 3, EE + rg * 4 - 4, EE + rg * 4 - 1, WC + 4 * rg - 4, WC + 4 * rg - 1, ACC, ACC + 3))
    a("v_mfma_f32_16x16x32_bf16 v[%d:%d], v[%d:%d], v[%d:%d], v[%d:%d]" % (ACC, ACC + 3, EE + 12, EE + 15, WC + 12, WC + 15, ACC, ACC + 3))
    a("s_mov_b32 exec_hi, 0")
    a("ds_write_b128 v%d, v[%d:%d] offset:%d" % (YV + 1, ACC, ACC + 3, L_QP))
    a("s_mov_b64 exec, 1")
    a("ds_add_rtn_u32 v4, v6, v7 offset:%d" % (L_CNT + C_YARR))
    a("s_mov_b32 exec_lo, s72")
    for k in range(4): a("ds_read_b128 v[%d:%d], v1 offset:%d" % (16 + 4 * k, 19 + 4 * k, L_QP + 512 * k))
    a("s_waitcnt lgkmcnt(0)\nv_readfirstlane_b32 s76, v4")
    for r in (0, 2): a("v_pk_add_f32 v[%d:%d], v[%d:%d], v[%d:%d]" % (16 + r, 17 + r, 16 + r, 17 + r, 20 + r, 21 + r))
    for r in (0, 2): a("v_pk_add_f32 v[%d:%d], v[%d:%d], v[%d:%d]" % (24 + r, 25 + r, 24 + r, 25 + r, 28 + r, 29 + r))
    a("s_sub_u32 s76, s76, s61\ns_cmp_lg_u32 s76, 3\ns_cbranch_scc1 L_t_nst")
    for r in (0, 2): a("v_pk_add_f32 v[%d:%d], v[%d:%d], v[%d:%d]" % (16 + r, 17 + r, 16 + r, 17 + r, 24 + r, 25 + r))
    if CK:
        for k in range(3): a("v_perm_b32 v%d, v19, v%d, s%d" % (16 + k, 16 + k, 80 + k))
        a("v_xor_b32 v19, s70, v16\nv_bitop3_b32 v19, v19, v17, v18 %s" % X3)
    a("buffer_store_dwordx4 v[16:19], v1, s[56:59], 0 offen sc1")
    stamp(11)
    a("L_t_nst:")
    a("s_mov_b64 exec, -1")
    a("s_cmp_lg_u32 s76, 0\ns_cbranch_scc1 L_t_next")
    a("s_cmp_ge_u32 s73, 112\ns_cbranch_scc1 L_t_next")
    a("s_mov_b32 s83, s74")
    YL = 80 if YP > 1 else 16
    yl = "buffer_load_dwordx4 v[%d:%d], v%d, s[48:51], s60 offen sc1" % (YL, YL + 3, YV)
    if YP > 1: a("s_cmp_eq_u32 s61, 0\ns_cbranch_scc1 L_t_yw")
    for i in range(YP - 1): a(yl + "\ns_sleep %d" % YD)
    a("L_t_yw:")
    a(yl)
    a("s_waitcnt vmcnt(%d)" % (YP - 1))
    if YP > 1: a("v_mov_b64 v[16:17], v[%d:%d]\nv_mov_b64 v[18:19], v[%d:%d]" % (YL, YL + 1, YL + 2, YL + 3))
    if CK:
        a("v_bitop3_b32 v4, v16, v17, v18 %s\nv_xor_b32 v5, s70, v19\nv_perm_b32 v19, v17, v16, s63\nv_cmp_ne_u32 vcc, v4, v5\nv_lshl_or_b32 v19, v18, 24, v19" % X3)
    else:
        a("v_max3_u32 v4, v16, v17, v18\nv_max_u32 v4, v4, v19\nv_cmp_eq_u32 vcc, -1, v4")
    a("s_cbranch_vccz L_t_yg")
    if YMASK: a("s_mov_b64 exec, vcc")
    a("s_sub_u32 s83, s83, 1\ns_cmp_lg_u32 s83, 0\ns_cbranch_scc1 L_t_yw")
    a("L_t_yg:")
    if YMASK: a("s_mov_b64 exec, -1")
    stamp(12)
    a("v_permlane16_swap_b32 v16, v17\nv_permlane16_swap_b32 v18, v19")
    a("v_add_f32 v16, v16, v17\nv_add_f32 v18, v18, v19")
    a("v_permlane32_swap_b32 v16, v18\nv_add_f32 v16, v16, v18")
    for ctl in ("quad_perm:[1,0,3,2]", "quad_perm:[2,3,0,1]", "row_half_mirror", "row_mirror"):
        a(dpp("v_add_f32", 16, 16, 16, ctl))
    a("v_cvt_pk_bf16_f32 v16, v16, v16")
    a("buffer_store_short v16, v%d, s[64:67], 0 offen%s" % (OV, OST))
    stamp(13)
    a("s_cmp_eq_u32 s61, 0\ns_cbranch_scc1 L_t_next")
    a("s_cmp_lg_u32 s2, 0\ns_cbranch_scc1 L_t_next")
    a("v_mov_b32 v4, s70\nv_mov_b32 v5, 0x%x\ns_mov_b64 exec, 1" % WS_EPOCH)
    a("buffer_store_dword v4, v5, s[48:51], 0 offen" + EST)
    a("s_mov_b64 exec, -1")
    a("L_t_next:")
    a("s_cmp_lg_u32 s61, 0\ns_cbranch_scc1 L_fin")
    ldswait("y4", 6, 4, L_CNT + C_YARR, "ge", 4, slp=2)
    a("s_branch L_t_a")
    a("L_fin:")
    if dbgt:
        a("s_lshl_b32 s84, s2, 7\ns_add_u32 s84, s84, %d\ns_add_u32 s84, s84, s30\ns_addc_u32 s85, s31, 0\ns_mov_b32 s86, 128\ns_mov_b32 s87, 0x20000" % STAMP_OFF)
        a("v_mov_b32 v16, v63\nv_mov_b32 v17, 0\nv_lshlrev_b32 v18, 3, v0")
        a("s_mov_b32 s77, 0\ns_cmp_eq_u32 s71, 3\ns_cselect_b32 s78, 0xc00f, 0\ns_or_b32 s77, s77, s78\ns_cmp_eq_u32 s71, 2\ns_cselect_b32 s78, 0x30, 0\ns_or_b32 s77, s77, s78")
        a("s_cmp_eq_u32 s76, 3\ns_cselect_b32 s78, 0xf40, 0\ns_or_b32 s77, s77, s78\ns_cmp_eq_u32 s76, 0\ns_cselect_b32 s78, 0x3080, 0\ns_or_b32 s77, s77, s78")
        a("s_cbranch_scc0 L_end\ns_mov_b32 exec_lo, s77\ns_mov_b32 exec_hi, 0")
        a("buffer_store_dwordx2 v[16:17], v18, s[84:87], 0 offen")
    a("s_endpgm")
    a.flush()
    if not CK:
        a("L_h_clr:")
        if touch:
            a("s_cmp_eq_u32 s71, 0\ns_cselect_b32 s52, s6, s8\ns_cselect_b32 s53, s7, s9\ns_mov_b32 s54, 0x4000000\ns_mov_b32 s55, 0x20000")
            a("s_lshr_b32 s76, s93, 4\ns_lshl_b32 s76, s76, 22\ns_and_b32 s77, s93, 15\ns_mul_i32 s77, s77, %d\ns_add_u32 s77, s77, s76\ns_add_u32 s76, s76, %d" % (NS * 16384, NS * 262144 + 0x40000))
            a("v_mul_u32_u24 v16, %d, v0\nv_add_u32 v16, s77, v16\nv_writelane_b32 v16, s76, 2" % (NS * 16384 - 64))
            a("s_mov_b64 exec, 7")
            a("buffer_load_dword v17, v16, s[52:55], 0 offen%s" % (" nt" if touch == 1 else ""))
            a("s_mov_b64 exec, 1")
            a("s_cmp_eq_u32 s71, 0\ns_cbranch_scc1 L_tch0")
            a("buffer_load_dword v18, v12, s[44:47], 0 offen\ns_branch L_tch1")
            a("L_tch0:")
            a("buffer_load_dword v18, v12, s[32:35], 0 offen")
            a("L_tch1:")
            a("s_mov_b64 exec, -1")
        if CLT: ldswait("clq", 6, 4, L_CNT + C_VDB, "ge", CLT, slp=8)
        a("v_mov_b32 v36, -1\nv_mov_b32 v37, -1\nv_mov_b32 v38, -1\nv_mov_b32 v39, -1")
        a("s_cmp_eq_u32 s71, 0\ns_cbranch_scc1 L_h_cl0")
        a("s_mov_b32 exec_lo, s72\ns_mov_b32 exec_hi, 0")
        a("buffer_store_dwordx4 v[36:39], v1, s[48:51], s68 offen sc1")
        a("s_branch L_h_cl1")
        a("L_h_cl0:")
        a("s_mul_i32 s76, s93, %d\ns_add_u32 s76, s76, %d" % (PAS, WS_PA))
        a("buffer_store_dwordx4 v[36:39], v1, s[48:51], s76 offen sc1")
        a("L_h_cl1:")
        a("s_mov_b64 exec, 1")
        a("v_mov_b32 v5, s2")
        a("s_waitcnt vmcnt(0)")
        a("ds_add_rtn_u32 v4, v6, v7 offset:%d" % (L_CNT + C_CLR))
        a("s_waitcnt lgkmcnt(0)\nv_readfirstlane_b32 s76, v4")
        a("s_nop 0\ns_cmp_lg_u32 s76, 1\ns_cbranch_scc1 L_h_cl2")
        a("buffer_store_byte v7, v5, s[40:43], 0 offen sc1")
        a("L_h_cl2:")
        a("s_mov_b64 exec, -1\ns_branch %s" % ("L_t_a" if "bchain" in dis else "L_b_rd"))
    a("L_end:")
    a("s_endpgm")
    a.raw('.section .rodata,"a"\n.p2align 6\n.amdhsa_kernel %s' % NAME)
    a.raw("  .amdhsa_next_free_vgpr 168\n  .amdhsa_next_free_sgpr 102\n  .amdhsa_accum_offset 168")
    a.raw("  .amdhsa_group_segment_fixed_size 0\n  .amdhsa_kernarg_size 112\n  .amdhsa_user_sgpr_count 2\n  .amdhsa_user_sgpr_kernarg_segment_ptr 1\n  .amdhsa_system_sgpr_workgroup_id_x 1\n.end_amdhsa_kernel")
    open(fname, "w").write(a.text())
    return a

if __name__ == "__main__":
    kw = dict(dbgt=2, G=1, W0=6, WS_=[(6, 3)])
    gen("g_a.s", NS=16, **kw)
    gen("g_b.s", NS=14, **kw)
    gen("g_c.s", NS=16, wqx=2, dis=("wo",), **kw)
    gen("g_d.s", NS=16, wqx=2, dis=("wo", "apass", "bchain"), **kw)
```

```python
import gen16
kw = dict(dbgt=2, G=1, PMASK=1, YMASK=1, DW=3, WOL=-5, WBL=5, W0=3, ntw=False, LAY=1, NS=14, WST=[2,2,4,4,6,6,7,7], FIN=8)
gen16.gen("j_a.s", BL=0, **kw)
gen16.gen("j_b.s", **kw)
gen16.gen("j_c.s", xl=0, **kw)
kw["dbgt"] = 0
gen16.gen("s_a.s", **kw)
gen16.gen("s_x0.s", xl=0, **kw)
gen16.gen("s_x3.s", xl=3, **kw)
```

```python
import sys, math, struct
from asmlib import Asm
NAME = "gated_mix__mha_block_cached__gqa_block_cached__decode_kernel"
HEADER = open("gated_mix__mha_block_cached__gqa_block_cached__decode.s.ref").read().split("; Override launch")[0]

WS_Q = 0x0
WS_EPOCH = 0x8000
WS_CNT = 0x10000
WS_Y = 0x100000
WS_PB = 0x200000
WS_PA = 0x400000
WS_OB = 0x380000
WS_END = 0x800000
YS = 640; PAS = 1152
STAMP_OFF = 200 * 1024 * 1024
L_Q = 0; L_QP = 1536; L_MW = 3584; L_LW = 3712; L_CNT = 3840; L_ACCB = 4096; L_ACCA = 20480; L_LIST = 28672; LDS_BYTES = 29184
C_QARR, C_QRDY, C_QARDY, C_KD, C_VDB, C_VDA, C_LS, C_CLR, C_YB, C_PRG, C_TAG, C_YARR, C_G, C_PC, C_FST = 0, 4, 8, 12, 16, 20, 24, 32, 36, 40, 44, 48, 52, 56, 60
L_YB = L_ACCB
SC = math.log2(math.e) / 16.0
def f32(x): return "0x%08x" % struct.unpack("<I", struct.pack("<f", x))[0]

def gen(fname, W0=4, G=2, BUD=60, RAMP=4, nt=True, round_s=True, spin=400000, ntw=True, dbgt=0, dis=(), NPOLL=3, PSL=6, BTRIG=1, xl=1, prio=None, touch=0, WS_=None, wperm=0, QT=16, CLT=1, YINC=1, WQW=8, SP=0, HP=3, wqx=0, amap=1, NS=14, ATL=4, VAT=8, PSLP=0, PMASK=0, LSL=1, bmap=0, wqm=0, FIN=0, dumat=0, LB=1, PP=1, YP=1, PD=2, YD=2, YMASK=0, CSTR=4352, SPS=1, TH=0, FK=0, DW=4, WOL=None, EXS=2, WBL=None, WST=None, CK=1, BH=1, PBS=1152, OVL=1, WPAT=None, LAY=0, OST='', EST=' sc1', BST=' sc1', BL=1, BK=12, PST=' sc1', QM=0, CP=0, YLOC=1, EP=0, NC=1, nto=None):
    a = Asm()
    if not BH: PBS = 2176
    MLO = 1024 if BH else 2048
    X3 = "bitop3:0x96"
    if BL:
        assert BH and CK and not bmap
        BST = ""
    NT = (" " + nt if isinstance(nt, str) else " nt") if nt else ""
    NTW = (" " + ntw if isinstance(ntw, str) else " nt") if ntw else ""
    a.raw(HEADER.rstrip("\n"))
    a.raw("; @launch grid=(256,1,1) block=(768,1,1) lds=%d" % LDS_BYTES)
    a.raw('.amdgcn_target "amdgcn-amd-amdhsa--gfx950"\n.text\n.globl %s\n.p2align 8\n.type %s,@function\n%s:' % (NAME, NAME, NAME))
    SB = 4
    def stamp(idx):
        if not dbgt: return
        a("s_memrealtime s[88:89]\ns_waitcnt lgkmcnt(0)\nv_writelane_b32 v63, s88, %d" % idx)

    def allrows(op, x, t):
        a("v_mov_b32 v%d, v%d" % (t, x))
        a("v_permlane16_swap_b32 v%d, v%d" % (t, x))
        a("%s v%d, v%d, v%d" % (op, x, t, x))
        a("v_mov_b32 v%d, v%d" % (t, x))
        a("v_permlane32_swap_b32 v%d, v%d" % (t, x))
        a("%s v%d, v%d, v%d" % (op, x, t, x))
    def dpp(op, d, s0, s1, ctrl, bank=0xf):
        return "%s_dpp v%d, v%d, v%d %s row_mask:0xf bank_mask:0x%x" % (op, d, s0, s1, ctrl, bank)
    def masks(M, t0, t1):
        a("v_and_b32 v%d, 1, v0\nv_lshlrev_b32 v%d, 4, v%d" % (t0, t0, t0))
        a("v_mov_b32 v%d, 0xffff\nv_lshlrev_b32 v%d, v%d, v%d" % (t1, t0, t0, t1))
        a("v_bfe_u32 v%d, v0, 1, 2" % t1)
        for k in range(4):
            a("v_cmp_eq_u32 vcc, %d, v%d" % (k, t1))
            a("v_cndmask_b32 v%d, 0, v%d, vcc" % (M + k, t0))
    def ldswait(lab, vz, vt, off, cmp, val, slp=1, sreg=76, cnt=83):
        a("s_mov_b32 s%d, %d" % (cnt, spin * 8))
        a("L_%s_w:" % lab)
        a("ds_read_b32 v%d, v%d offset:%d\ns_waitcnt lgkmcnt(0)\nv_readfirstlane_b32 s%d, v%d" % (vt, vz, off, sreg, vt))
        a("s_sub_u32 s%d, s%d, 1\ns_cbranch_scc1 L_%s_g" % (cnt, cnt, lab))
        a("s_cmp_%s_u32 s%d, %d\ns_cbranch_scc1 L_%s_g\ns_sleep %d\ns_branch L_%s_w" % (cmp, sreg, val, lab, slp, lab))
        a("L_%s_g:" % lab)

    a("s_cmp_ge_u32 s2, 256\ns_cbranch_scc1 L_end")
    a("s_load_dwordx16 s[4:19], s[0:1], 0")
    if bmap == 1: a("s_mov_b32 s92, s2")
    if xl == 2: a("s_add_u32 s3, s2, 2\ns_and_b32 s3, s3, 7\ns_and_b32 s2, s2, 0xf8\ns_or_b32 s2, s2, s3")
    if xl == 3: a("s_lshr_b32 s3, s2, 3\ns_add_u32 s3, s3, s2\ns_and_b32 s3, s3, 7\ns_and_b32 s2, s2, 0xf8\ns_or_b32 s2, s2, s3")
    if xl == 1: a("s_and_b32 s3, s2, 7\ns_lshr_b32 s2, s2, 3\ns_lshl_b32 s3, s3, 5\ns_add_u32 s2, s2, s3")
    a("s_load_dwordx8 s[20:27], s[0:1], 64")
    a("s_load_dwordx4 s[28:31], s[0:1], 96")
    if dbgt: a("s_memrealtime s[90:91]")
    if amap:
        a("s_bfe_u32 s93, s2, 0x40001\ns_lshl_b32 s93, s93, 4\ns_lshr_b32 s3, s2, 5\ns_lshl1_add_u32 s93, s3, s93\ns_and_b32 s3, s2, 1\ns_add_u32 s93, s93, s3")
        if amap == 2:
            a("s_lshr_b32 s3, s2, 1\ns_and_b32 s3, s3, 16\ns_xor_b32 s93, s93, s3\ns_lshl_b32 s3, s2, 1\ns_and_b32 s3, s3, 128\ns_xor_b32 s93, s93, s3")
    else:
        a("s_mov_b32 s93, s2")
    if bmap == 0: a("s_mov_b32 s92, s2")
    if bmap == 2: a("s_mov_b32 s92, s93")
    assert not (bmap and wqx)
    a("v_lshrrev_b32 v1, 6, v0\nv_and_b32 v0, 63, v0\nv_readfirstlane_b32 s3, v1")
    a("s_nop 0\ns_cmp_lt_u32 s3, 4\ns_cbranch_scc1 L_helper")

    OFF = 1; T = [2, 3, 4, 5]; MC = 6; LS = 7; M = 8; E = 12; X = 16; S = 32; RING = 40
    QA = 104; TB = [112, 128]; ONES = 144; ACL = 148; TK = [152, 154]; AD = 156; AV = 158; TV = 159; SD = 160; WA = 161; RA = 162; R8 = 163
    SO = 52
    NP = 16 + 2 * NS
    NL = 2 * NP
    NT_ = (16 - NS) * 16
    PO = NS // 2 * 32768 + (NS & 1) * 2048
    assert NS % 2 == 0 or (NS == 15 and LAY)
    a("s_sub_u32 s3, s3, 4")
    if SP: a("s_setprio %d" % SP)
    a("v_lshrrev_b32 v2, 4, v0\nv_and_b32 v3, 15, v0\nv_lshlrev_b32 v2, 9, v2\nv_lshl_or_b32 v%d, v3, 4, v2" % OFF)
    a("s_add_u32 s80, s3, s93\ns_and_b32 s80, s80, 7\ns_lshl_b32 s79, s80, 12")
    a("s_lshl_b32 s77, s92, 17\ns_add_u32 s77, s77, s79")
    for j in range(1, 8): a("s_mov_b32 s%d, 0x%x" % (SO + j, j * 32768))
    a("s_mov_b32 s34, 0x19000\ns_mov_b32 s35, 0x20000\ns_mov_b32 s38, 0x19000\ns_mov_b32 s39, 0x20000")
    a("s_waitcnt lgkmcnt(0)")
    if not LB: a("s_barrier")
    if dbgt == 3: a("s_memrealtime s[84:85]")
    a("s_add_u32 s32, s16, s77\ns_addc_u32 s33, s17, 0")
    a("s_add_u32 s36, s18, s77\ns_addc_u32 s37, s19, 0")
    pairs = [(32, j) for j in range(8)] + [(36, j) for j in range(8)] + [(40, j) for j in range(NS)] + [(44, j) for j in range(NS)]
    def slot(n): return RING + (n % 16 if n < 24 else n % 8) * 8
    def prev_in_slot(n): return n - 16 if n < 24 else n - 8
    def atomic(k):
        a("s_mov_b64 exec, 1")
        a("global_atomic_add_x2 v[%d:%d], v%d, v[%d:%d], s[30:31] sc0 sc1" % (TK[k], TK[k] + 1, AV, AD, AD + 1))
        a("s_mov_b64 exec, -1")
    VP = 164; DU = 165; DV = 166
    nreq = [0]
    def request():
        nreq[0] += 1; u = nreq[0]
        a("s_cbranch_scc0 L_rql%d" % u)
        a("global_atomic_add_x2 v[%d:%d], v%d, v[%d:%d], s[30:31] sc0 sc1" % (TK[0], TK[0] + 1, AV, AD, AD + 1))
        a("s_branch L_rqe%d" % u)
        a("L_rql%d:" % u)
        a("buffer_load_dword v%d, v%d, s[60:63], 0 offen" % (DU, DV))
        a("L_rqe%d:" % u)
        a("s_mov_b64 exec, -1")
    def claim(off):
        a("s_mov_b64 exec, 1\nds_add_rtn_u32 v%d, v%d, v%d offset:%d\ns_mov_b64 exec, -1" % (VP, AD + 1, AD, L_CNT + off))
    st = {"issued": 0, "landed": 0, "at": None}
    def issue_load(i):
        n = i >> 1; c = i & 1
        srd, j = pairs[n]; r = slot(n) + 4 * c
        if dbgt == 2 and c == 0 and n % 6 == 0 and n > 0: a("s_memrealtime s[%d:%d]" % (84 + 2 * (n // 6 - 1) + (4 if n // 6 > 3 else 0), 85 + 2 * (n // 6 - 1) + (4 if n // 6 > 3 else 0)))
        if i == NL - ATL - 1 and NT_:
            claim(C_FST)
            a("v_mov_b32 v%d, 0x%x" % (DV, 0x400000))
        if i == NL - ATL and NT_:
            a("s_waitcnt lgkmcnt(0)\nv_readfirstlane_b32 s76, v%d\ns_mov_b64 exec, 1\ns_cmp_eq_u32 s76, %d\ns_cselect_b32 s80, %d, 0" % (VP, FK, L_LIST))
            request(); st["at"] = i
        so = "0" if j < 2 else "s%d" % (SO + (j >> 1))
        a("buffer_load_dwordx4 v[%d:%d], v%d, s[%d:%d], %s offen offset:%d%s" % (r, r + 3, OFF, srd, srd + 3, so, (j & 1) * 2048 + c * 256, NT))
    def Wn(i):
        w = W0
        for (frm, ww) in (WS_ or []):
            if i >= frm: w = ww
        if WPAT and 3 <= i < NL - 6: w = WPAT[i % len(WPAT)]
        return w
    extra = {"n": 0}
    def wait_landed(k):
        if k > st["landed"]:
            cnt = st["issued"] - k + extra["n"]
            if st["at"] is not None and k <= st["at"]: cnt += 1
            a("s_waitcnt vmcnt(%d)" % cnt); st["landed"] = k
    def issue_event():
        i = st["issued"]
        wait_landed(i + G - Wn(i))
        for t in range(G): issue_load(i + t)
        st["issued"] = i + G
    while st["issued"] + G <= Wn(0): issue_event()
    if dbgt == 3: a("s_memrealtime s[86:87]")
    if LB: a("s_barrier")
    if dbgt == 3: a("s_memrealtime s[88:89]\ns_waitcnt vmcnt(%d)\ns_memrealtime s[94:95]\ns_memrealtime s[96:97]\ns_memrealtime s[98:99]" % (W0 - 1))
    a("s_lshr_b32 s81, s93, 4\ns_lshl_b32 s78, s81, 22\ns_and_b32 s76, s93, 15\ns_mul_i32 s76, s76, %d\ns_add_u32 s76, s76, s78\ns_add_u32 s76, s76, s79\ns_add_u32 s78, s78, %d" % ((262144, PO) if LAY else (NS * 16384, NS * 262144)))
    nrec = ((NS + 1) // 2 - 1) * 32768 + 4096
    a("s_add_u32 s40, s6, s76\ns_addc_u32 s41, s7, 0\ns_mov_b32 s42, 0x%x\ns_mov_b32 s43, 0x20000" % nrec)
    a("s_add_u32 s44, s8, s76\ns_addc_u32 s45, s9, 0\ns_mov_b32 s46, 0x%x\ns_mov_b32 s47, 0x20000" % nrec)
    prec = 0x400000 - PO if LAY else NT_ // 2 * 32768
    a("s_add_u32 s60, s6, s78\ns_addc_u32 s61, s7, 0\ns_mov_b32 s62, 0x%x\ns_mov_b32 s63, 0x20000" % prec)
    a("s_add_u32 s64, s8, s78\ns_addc_u32 s65, s9, 0\ns_mov_b32 s66, 0x%x\ns_mov_b32 s67, 0x20000" % prec)
    a("s_mul_i32 s81, s81, %d\ns_add_u32 s81, s81, %d" % (CSTR, WS_CNT))
    a("s_mov_b32 s48, s30\ns_mov_b32 s49, s31\ns_mov_b32 s50, 0x%x\ns_mov_b32 s51, 0x20000" % WS_END)
    a("s_mul_i32 s75, s93, %d\ns_add_u32 s75, s75, %d" % (PAS, WS_PA))
    masks(M, T[0], T[1])
    a("s_mov_b32 s82, %s" % f32(SC))
    a("v_mov_b32 v%d, 0" % T[0])
    a("v_mov_b32 v%d, 1" % T[1])
    while st["issued"] < 32:
        if QT and st["issued"] <= QT < st["issued"] + G:
            a("s_mov_b64 exec, 1\nds_add_u32 v%d, v%d offset:%d\ns_mov_b64 exec, -1" % (T[0], T[1], L_CNT + C_PRG))
        issue_event()
    ldswait("sq", T[0], T[1], L_CNT + C_QRDY, "lg", 0)

    chunks = []
    class Rec:
        def __init__(self): self.l = []
        def __call__(self, t): self.l += [x for x in t.split("\n") if x.strip()]
    def phase(ph, n0, ng):
        nonlocal a
        real = a
        def begin():
            nonlocal a
            a = Rec(); return a
        def done(need=None, pre=None):
            chunks.append((need, pre or [], a.l))
        nh = 2 if ph == 0 else 1
        Q = X if ph == 0 else QA
        sc = [S + j for j in range(8)] if ph == 0 else ([X + 8 + j for j in range(8)] + [S + j for j in range(8)])[:ng]
        begin()
        a("v_and_b32 v%d, 15, v0\nv_lshlrev_b32 v%d, 4, v%d" % (T[0], T[0], T[0]))
        for h in range(nh):
            for c in range(2):
                a("ds_read_b128 v[%d:%d], v%d offset:%d" % (Q + h * 8 + c * 4, Q + h * 8 + c * 4 + 3, T[0], L_Q + ph * 1024 + h * 512 + c * 256))
        if ph == 1:
            a("v_mov_b32 v%d, 0\nds_read_b32 v%d, v%d offset:%d" % (AD + 1, T[1], AD + 1, L_CNT + C_TAG))
            a("v_mov_b32 v%d, 1\nv_mov_b32 v%d, s81" % (AD, AV))
            for k in range(4): a("v_mov_b32 v%d, 0x3f803f80" % (ONES + k))
            a("v_and_b32 v%d, 15, v0\nv_and_b32 v%d, 16, v0\nv_lshlrev_b32 v%d, 3, v0\nv_lshl_or_b32 v%d, v%d, 5, v%d" % (WA, RA, R8, WA, WA, RA))
            a("s_lshl_b32 s76, s3, 10\nv_add_u32 v%d, s76, v%d\nv_lshlrev_b32 v%d, 4, v0" % (WA, WA, RA))
        a("s_waitcnt lgkmcnt(0)")
        if ph == 1: a("v_readfirstlane_b32 s74, v%d\ns_mov_b32 s83, %d" % (T[1], spin))
        done()
        pend = []
        for j in range(ng):
            begin()
            n = n0 + j; r = slot(n)
            ta, tb = (T[0], T[1]) if j % 2 == 0 else (T[2], T[3])
            dots = []
            for k in range(8):
                dots.append("v_dot2_f32_bf16 v%d, v%d, v%d, %s" % (ta, r + k, Q + k, "0" if k == 0 else "v%d" % ta))
                if nh == 2:
                    dots.append("v_dot2_f32_bf16 v%d, v%d, v%d, %s" % (tb, r + k, Q + 8 + k, "0" if k == 0 else "v%d" % tb))
            step = 3 if nh == 2 else 2
            for i, dline in enumerate(dots):
                a(dline)
                if i % step == step - 1 and pend: a(pend.pop(0))
            while pend: a(pend.pop(0))
            done(n)
            s_ = sc[j]
            pend = [dpp("v_add_f32", s_, ta, ta, "row_ror:8")]
            if nh == 2: pend.append(dpp("v_add_f32", s_, tb, tb, "row_ror:8", 0xc))
            pend += [dpp("v_add_f32", s_, s_, s_, "quad_perm:[1,0,3,2]"), dpp("v_add_f32", s_, s_, s_, "quad_perm:[2,3,0,1]"), dpp("v_add_f32", s_, s_, s_, "row_half_mirror")]
        begin()
        while pend: a(pend.pop(0))
        if round_s:
            for s_ in sc: a("v_cvt_pk_bf16_f32 v%d, v%d, v%d" % (s_, s_, s_))
            for s_ in sc: a("v_and_b32 v%d, 0xffff0000, v%d" % (s_, s_))
        done(); begin()
        a("v_max3_f32 v%d, v%d, v%d, v%d" % (MC, sc[0], sc[1], sc[2]))
        i = 3
        while i + 1 < ng:
            a("v_max3_f32 v%d, v%d, v%d, v%d" % (MC, MC, sc[i], sc[i + 1])); i += 2
        if i < ng: a("v_max_f32 v%d, v%d, v%d" % (MC, MC, sc[i]))
        allrows("v_max_f32", MC, T[0])
        a("v_mul_f32 v%d, s82, v%d" % (MC, MC))
        a("v_and_b32 v%d, 8, v0\nv_lshlrev_b32 v%d, 2, v%d\ns_lshl_b32 s76, s3, 2\nv_add_u32 v%d, s76, v%d" % (T[3], T[3], T[3], T[3], T[3]))
        a("v_mov_b32 v%d, 0\nv_mov_b32 v%d, 1" % (T[1], T[2]))
        if ph == 1:
            a("s_mov_b64 exec, 1")
            a("ds_add_u32 v%d, v%d offset:%d" % (T[1], T[2], L_CNT + C_KD))
            a("s_mov_b64 exec, -1")
        done(); begin()
        for s_ in sc: a("v_fma_f32 v%d, v%d, s82, -v%d" % (s_, s_, MC))
        for s_ in sc: a("v_exp_f32 v%d, v%d" % (s_, s_))
        done(); begin()
        L_ = LS if ph == 0 else ACL
        a("v_add_f32 v%d, v%d, v%d" % (L_, sc[0], sc[1]))
        for s_ in sc[2:]: a("v_add_f32 v%d, v%d, v%d" % (L_, L_, s_))
        for s_ in sc: a("v_cvt_pk_bf16_f32 v%d, v%d, v%d" % (s_, s_, s_))
        allrows("v_add_f32", L_, T[0])
        if ph == 0:
            a("s_mov_b64 exec, 0x101")
            a("ds_write_b32 v%d, v%d offset:%d" % (T[3], MC, L_MW))
            a("ds_write_b32 v%d, v%d offset:%d" % (T[3], LS, L_LW))
            a("s_mov_b64 exec, -1")
            a("v_and_b32 v%d, 15, v0\nv_and_b32 v%d, 16, v0\nv_lshl_or_b32 v%d, v%d, 5, v%d" % (T[0], T[3], T[0], T[0], T[3]))
            a("v_lshrrev_b32 v%d, 5, v0\nv_lshl_or_b32 v%d, v%d, 13, v%d" % (T[3], T[0], T[3], T[0]))
            a("s_lshl_b32 s76, s3, 10\nv_add_u32 v%d, s76, v%d" % (T[0], T[0]))
        else:
            for k in range(1, 4): a("v_mov_b32 v%d, 0" % (ACL + k))
        done()
        for j in range(ng):
            n = n0 + ng + j; r = slot(n)
            begin()
            pre = ["v_and_b32 v%d, v%d, v%d" % (E + k, sc[j], M + k) for k in range(4)]
            a("v_mfma_f32_16x16x32_bf16 v[%d:%d], v[%d:%d], v[%d:%d], %s" % (X, X + 3, E, E + 3, r, r + 3, "0" if j == 0 else "v[%d:%d]" % (X, X + 3)))
            a("v_mfma_f32_16x16x32_bf16 v[%d:%d], v[%d:%d], v[%d:%d], %s" % (X + 4, X + 7, E, E + 3, r + 4, r + 7, "0" if j == 0 else "v[%d:%d]" % (X + 4, X + 7)))
            if ph == 0 and j == ng - 1:
                for c in range(2):
                    a("ds_write_b128 v%d, v[%d:%d] offset:%d" % (T[0], X + c * 4, X + c * 4 + 3, L_ACCB + c * 512))
                a("s_mov_b64 exec, 1")
                a("ds_add_u32 v%d, v%d offset:%d" % (T[1], T[2], L_CNT + C_VDB))
                a("s_mov_b64 exec, -1")
            done(n, pre)
        a = real

    phase(0, 0, 8)
    phase(1, 16, NS)

    def acquire(lab, mid=None):
        a("s_mov_b64 exec, 1")
        a("v_lshrrev_b32 v%d, 3, v%d\nv_lshlrev_b32 v%d, 2, v%d" % (T[1], VP, T[1], T[1]))
        a("s_cmp_eq_u32 s80, 0\ns_cbranch_scc1 L_rd%s" % lab)
        a("L_tk%s:" % lab)
        a("v_readfirstlane_b32 s69, v%d\nv_add_u32 v%d, 1, v%d\nv_mov_b32 v%d, s80" % (TK[0] + 1, TK[0], TK[0], T[2]))
        a("s_cmp_lg_u32 s69, s74\ns_cbranch_scc1 L_tr%s" % lab)
        a("L_tg%s:" % lab)
        a("ds_write_b32 v%d, v%d" % (T[2], TK[0]))
        a("L_rd%s:" % lab)
        a("ds_read_b32 v%d, v%d offset:%d" % (T[2], T[1], L_LIST))
        a("v_readfirstlane_b32 s77, v%d\nv_readfirstlane_b32 s80, v%d" % (VP, T[1]))
        if mid:
            a("s_mov_b64 exec, -1"); mid(); a("s_mov_b64 exec, 1")
        a("s_and_b32 s77, s77, 7\ns_add_u32 s80, s80, %d" % (L_LIST + 4))
        a("L_sw%s:" % lab)
        a("s_waitcnt lgkmcnt(0)\nv_readfirstlane_b32 s68, v%d" % T[2])
        a("s_nop 0\ns_sub_u32 s68, s68, 1\ns_cbranch_scc1 L_sp%s" % lab)
        a("L_sg%s:" % lab)
        if WOL is not None and WOL >= 0: a("ds_max_u32 v%d, v%d offset:%d" % (AD + 1, T[2], L_CNT + C_LS))
        if NS == 15:
            a("s_min_u32 s76, s68, %d\ns_lshl_b32 s76, s76, 6\ns_add_u32 s76, s76, s77\ns_lshl_b32 s76, s76, 12" % NT_)
        elif LAY and NS == 14:
            a("s_min_u32 s76, s68, %d\ns_lshr_b32 s69, s76, 1\ns_lshl_b32 s69, s69, 6\ns_add_u32 s69, s69, s77\ns_and_b32 s76, s76, 1\ns_lshl1_add_u32 s76, s69, s76\ns_lshl_b32 s76, s76, 11" % NT_)
        elif LAY:
            a("s_bfe_u32 s69, s68, 0x40001\ns_lshr_b32 s76, s68, 5\ns_lshl3_add_u32 s69, s69, s76\ns_lshl3_add_u32 s69, s69, s77\ns_and_b32 s76, s68, 1\ns_lshl1_add_u32 s76, s69, s76\ns_lshl_b32 s76, s76, 11")
            a("s_cmp_ge_u32 s68, %d\ns_cselect_b32 s76, 0x400000, s76" % NT_)
        else:
            a("s_min_u32 s76, s68, %d\ns_lshr_b32 s69, s76, 1\ns_lshl3_add_u32 s69, s69, s77\ns_and_b32 s76, s76, 1\ns_lshl1_add_u32 s76, s69, s76\ns_lshl_b32 s76, s76, 11" % NT_)
        a("s_cmp_ge_u32 s68, %d\ns_cselect_b32 s69, 9, s77\ns_cmp_eq_u32 s69, %d\ns_cselect_b32 s80, s80, 0" % (NT_, TH))
        request()
        a("v_add_u32 v%d, s76, v%d" % (TV, OFF))
    retries = []
    def tload(b, kv, tv=TV, which=(0, 1)):
        r = TB[b] + 8 * kv; srd = 60 + 4 * kv
        if 0 in which: a("buffer_load_dwordx4 v[%d:%d], v%d, s[%d:%d], 0 offen%s" % (r, r + 3, tv, srd, srd + 3, NT))
        if 1 in which: a("buffer_load_dwordx4 v[%d:%d], v%d, s[%d:%d], 0 offen offset:256%s" % (r + 4, r + 7, tv, srd, srd + 3, NT))

    assert DW == 3
    TF = max(NT_ - FIN, 0)
    def early(b, lab):
        if not FIN: return
        a("s_cmp_lt_u32 s68, %d\ns_cbranch_scc1 L_fa%s" % (TF, lab))
        tload(b, 0, which=(1,)); tload(b, 1)
        a("L_fa%s:" % lab)
    consumed = 0; budget = 0; dyn_stage = 0
    for (need, pre, lines) in chunks:
        def can_issue(): return st["issued"] < NL and prev_in_slot((st["issued"] + G - 1) // 2) < consumed
        for l in pre: a(l)
        while can_issue() and ((need is not None and 2 * need + 2 > st["landed"] and st["issued"] + G - Wn(st["issued"]) <= 2 * need + 2) or (budget > 0 and budget + len(lines) > BUD) or st["issued"] - 32 < RAMP):
            issue_event(); budget = 0
        if need == NP - 2 and NT_: claim(C_PC)
        if need == NP - 1 and NT_:
            assert st["landed"] == NL - 2
            if FIN: a("s_waitcnt vmcnt(5)\ns_cmp_ge_u32 s68, %d\ns_cbranch_scc1 L_fbp" % TF)
            wait_landed(2 * need + 1); tload(0, 0, which=(1,)); extra["n"] += 1
        if need is not None: wait_landed(2 * need + 2)
        if need == NP - 2 and dbgt == 2: a("s_memrealtime s[70:71]")
        if need == NP - 2 and NT_:
            assert st["issued"] == NL and st["landed"] > st["at"]
            a("s_waitcnt lgkmcnt(0)")
            acquire("p"); retries.append("p")
            tload(0, 0, which=(0,)); extra["n"] += 2
            early(0, "p")
        if need == NP - 1 and NT_:
            tload(0, 1, which=(0,))
            if FIN: a("L_fbp:")
        for l in lines: a(l)
        budget += len(lines) + len(pre)
        if need is not None: consumed = need + 1
    assert st["issued"] == NL
    if dbgt == 2: a("s_mov_b32 s72, 0")
    if NT_:
        a("s_cmp_ge_u32 s68, %d\ns_cbranch_scc1 L_dend" % NT_)
        if FIN: a("s_cmp_ge_u32 s68, %d\ns_cbranch_scc1 L_dloop" % TF)
        a("s_waitcnt vmcnt(2)"); tload(0, 1, which=(1,))
        a.flush()
        a("L_dloop:")
    for b in range(2 if NT_ else 0):
        r = TB[b]; lab = "d%d" % b
        if dbgt == 2: a("s_add_u32 s72, s72, 1")
        claim(C_PC)
        a("s_waitcnt vmcnt(2) lgkmcnt(0)")
        def dots():
            for k in range(8):
                a("v_dot2_f32_bf16 v%d, v%d, v%d, %s" % (SD, r + k, QA + k, "0" if k == 0 else "v%d" % SD))
        acquire(lab, dots if OVL else None); retries.append(lab)
        tload(1 - b, 0, which=(0,))
        early(1 - b, lab)
        if not OVL: dots()
        for ctl in ("row_ror:8", "quad_perm:[1,0,3,2]", "quad_perm:[2,3,0,1]", "row_half_mirror"):
            a(dpp("v_add_f32", SD, SD, SD, ctl))
        if round_s: a("v_cvt_pk_bf16_f32 v%d, v%d, v%d\nv_and_b32 v%d, 0xffff0000, v%d" % (SD, SD, SD, SD, SD))
        a("v_fma_f32 v%d, v%d, s82, -v%d" % (T[0], SD, MC))
        a("v_cmp_lt_f32 vcc, 0, v%d\ns_cbranch_vccnz L_rs%d" % (T[0], b))
        a("L_rb%d:" % b)
        a("v_exp_f32 v%d, v%d\nv_cvt_pk_bf16_f32 v%d, v%d, v%d" % (T[0], T[0], T[0], T[0], T[0]))
        for k in range(4): a("v_and_b32 v%d, v%d, v%d" % (E + k, T[0], M + k))
        a("v_mfma_f32_16x16x32_bf16 v[%d:%d], v[%d:%d], v[%d:%d], v[%d:%d]" % (ACL, ACL + 3, E, E + 3, ONES, ONES + 3, ACL, ACL + 3))
        if FIN: a("s_waitcnt vmcnt(5)\ns_cmp_ge_u32 s68, %d\ns_cbranch_scc1 L_fb%s" % (TF, lab))
        a("s_waitcnt vmcnt(3)"); tload(1 - b, 0, which=(1,))
        a("s_waitcnt vmcnt(3)"); tload(1 - b, 1, which=(0,))
        if FIN: a("L_fb%s:" % lab)
        a("v_mfma_f32_16x16x32_bf16 v[%d:%d], v[%d:%d], v[%d:%d], v[%d:%d]" % (X, X + 3, E, E + 3, r + 8, r + 11, X, X + 3))
        a("v_mfma_f32_16x16x32_bf16 v[%d:%d], v[%d:%d], v[%d:%d], v[%d:%d]" % (X + 4, X + 7, E, E + 3, r + 12, r + 15, X + 4, X + 7))
        a("s_cmp_ge_u32 s68, %d\ns_cbranch_scc1 L_dend" % NT_)
        if FIN: a("s_cmp_ge_u32 s68, %d\ns_cbranch_scc1 %s" % (TF, "L_dl1" if b == 0 else "L_dloop"))
        a("s_waitcnt vmcnt(2)"); tload(1 - b, 1, which=(1,))
        if FIN and b == 0: a("L_dl1:")
    if NT_:
        a("s_branch L_dloop")
        a("L_dend:")
        a("s_nop 2")
    a("s_lshl_b32 s76, s3, 3\nv_mov_b32 v%d, s76\nv_mov_b32 v%d, v%d" % (T[0], LS, ACL))
    a("s_mov_b32 s53, 0x03020105\ns_mov_b32 s54, 0x03020106\ns_mov_b32 s55, 0x03020107")
    if CK: a("s_mov_b32 s56, 0xaaaaaaaa\ns_mov_b32 s57, 0xaaaaaaaa")
    a("s_mov_b32 exec_hi, 0")
    for c in range(2):
        a("ds_write_b128 v%d, v[%d:%d] offset:%d" % (WA, X + c * 4, X + c * 4 + 3, L_ACCA + c * 512))
    a("s_mov_b64 exec, 1")
    a("ds_write_b64 v%d, v[%d:%d] offset:%d" % (T[0], MC, LS, L_MW + 64))
    a("ds_add_rtn_u32 v%d, v%d, v%d offset:%d" % (T[3], AD + 1, AD, L_CNT + C_VDA))
    a("s_mov_b64 exec, -1")
    G0 = RING; ML = RING + 32
    a("L_mrg:")
    for k in range(4):
        a("ds_read_b128 v[%d:%d], v%d offset:%d" % (ML + 4 * k, ML + 4 * k + 3, AD + 1, L_MW + 64 + 16 * k))
    if not CK: a("ds_read_b32 v%d, v%d offset:%d" % (T[2], AD + 1, L_CNT + C_CLR))
    for w in range(8):
        a("ds_read_b128 v[%d:%d], v%d offset:%d" % (G0 + 4 * w, G0 + 4 * w + 3, RA, L_ACCA + w * 1024))
    a("s_waitcnt lgkmcnt(8)")
    mw = [ML + 2 * w for w in range(8)]
    a("v_max3_f32 v%d, v%d, v%d, v%d\nv_max3_f32 v%d, v%d, v%d, v%d" % (MC, mw[0], mw[1], mw[2], T[0], mw[3], mw[4], mw[5]))
    a("v_readfirstlane_b32 s79, v%d" % T[3])
    if not CK: a("v_readfirstlane_b32 s78, v%d" % T[2])
    a("v_max3_f32 v%d, v%d, v%d, v%d\nv_max_f32 v%d, v%d, v%d" % (MC, MC, mw[6], mw[7], MC, MC, T[0]))
    a("s_cmp_lg_u32 s79, 7\ns_cbranch_scc1 %s" % ("L_sst" if dbgt >= 2 else "L_end"))
    for w in range(8): a("v_sub_f32 v%d, v%d, v%d" % (mw[w], mw[w], MC))
    for w in range(8): a("v_exp_f32 v%d, v%d" % (mw[w], mw[w]))
    if not CK: a("s_cmp_lg_u32 s78, 2\ns_cbranch_scc1 L_mwait")
    a("v_mul_f32 v%d, v%d, v%d\nv_mul_f32 v%d, v%d, v%d" % (LS, mw[0], mw[0] + 1, T[0], mw[1], mw[1] + 1))
    for w in (2, 4, 6):
        a("v_fmac_f32 v%d, v%d, v%d\nv_fmac_f32 v%d, v%d, v%d" % (LS, mw[w], mw[w] + 1, T[0], mw[w + 1], mw[w + 1] + 1))
    a("v_add_f32 v%d, v%d, v%d" % (LS, LS, T[0]))
    a("v_rcp_f32 v%d, v%d\nv_log_f32 v%d, v%d" % (T[0], LS, LS, LS))
    if CK: a("v_add_f32 v%d, v%d, v%d\nv_xor_b32 v%d, s74, v%d" % (LS, MC, LS, MC, LS))
    a("s_waitcnt lgkmcnt(0)")
    for k in (0, 2):
        a("v_pk_mul_f32 v[%d:%d], v[%d:%d], v[%d:%d] op_sel_hi:[1,0]" % (G0 + k, G0 + k + 1, G0 + k, G0 + k + 1, mw[0], mw[0] + 1))
        a("v_pk_mul_f32 v[%d:%d], v[%d:%d], v[%d:%d] op_sel_hi:[1,0]" % (G0 + 16 + k, G0 + 17 + k, G0 + 16 + k, G0 + 17 + k, mw[4], mw[4] + 1))
    for w in (1, 2, 3):
        for base in (0, 4):
            for k in (0, 2):
                d = G0 + 4 * base + k; s0 = G0 + 4 * (base + w) + k
                a("v_pk_fma_f32 v[%d:%d], v[%d:%d], v[%d:%d], v[%d:%d] op_sel_hi:[1,0,1]" % (d, d + 1, s0, s0 + 1, mw[base + w], mw[base + w] + 1, d, d + 1))
    for k in (2, 0):
        a("v_pk_add_f32 v[%d:%d], v[%d:%d], v[%d:%d]" % (G0 + k, G0 + k + 1, G0 + k, G0 + k + 1, G0 + 16 + k, G0 + 17 + k))
    for k in (2, 0):
        a("v_pk_mul_f32 v[%d:%d], v[%d:%d], v[%d:%d] op_sel_hi:[1,0]" % (G0 + k, G0 + k + 1, G0 + k, G0 + k + 1, T[0], T[0] + 1))
    for k in (2, 0, 1):
        a("v_perm_b32 v%d, v%d, v%d, s%d" % (G0 + k, G0 + 3, G0 + k, 53 + k))
    if CK:
        a("v_bitop3_b32 v%d, v%d, v%d, v%d %s" % (T[2], G0, G0 + 1, G0 + 2, X3))
        a("v_xor_b32 v%d, v%d, v%d" % (MC, MC, T[2]))
        a(dpp("v_xor_b32", MC, T[2], MC, "quad_perm:[1,0,3,2]"))
        a("v_cndmask_b32 v%d, v%d, v%d, s[56:57]" % (G0 + 3, LS, MC))
    else:
        a("v_add_f32 v%d, v%d, v%d" % (G0 + 3, MC, LS))
    if PST == "half": a("s_mov_b32 exec_hi, 0")
    CPS = 256 * PAS + 1280
    for c in range(NC):
        a("buffer_store_dwordx4 v[%d:%d], v%d, s[48:51], s75 offen%s" % (G0, G0 + 3, RA, PST))
        if c < NC - 1: a("s_add_u32 s75, s75, %d" % CPS)
    if max(WST + [VAT]) > 8: a("s_mov_b64 exec, 1\nds_add_u32 v%d, v%d offset:%d\ns_waitcnt lgkmcnt(0)" % (AD + 1, AD, L_CNT + C_VDA))
    if dbgt >= 2:
        a("L_sst:")
        a("s_mov_b64 exec, -1\ns_memrealtime s[100:101]\ns_waitcnt lgkmcnt(0)\nv_mov_b32 v100, 0\nv_mov_b32 v101, 0")
        for i, r in enumerate([90, 84, 86, 88, 94, 96, 98, 70, 83, 100, 72]):
            a("v_writelane_b32 v100, s%d, %d" % (r, i))
        a("s_lshl3_add_u32 s76, s2, s3\ns_add_u32 s76, s76, 256\ns_lshl_b32 s76, s76, 7\ns_add_u32 s76, s76, %d\ns_add_u32 s52, s76, s30\ns_addc_u32 s53, s31, 0\ns_mov_b32 s54, 128\ns_mov_b32 s55, 0x20000" % STAMP_OFF)
        a("v_lshlrev_b32 v102, 3, v0\nbuffer_store_dwordx2 v[100:101], v102, s[52:55], 0 offen")
    a("s_endpgm")
    a.flush()
    if not CK:
        a("L_mwait:")
        a("s_waitcnt lgkmcnt(0)\ns_sleep 4\ns_sub_u32 s83, s83, 1\ns_cbranch_scc0 L_mrg\ns_endpgm")
    for b in range(2 if NT_ else 0):
        a.flush()
        a("L_rs%d:" % b)
        a("v_max_f32 v%d, 0, v%d" % (T[1], T[0]))
        allrows("v_max_f32", T[1], T[2])
        a("v_add_f32 v%d, v%d, v%d\nv_sub_f32 v%d, v%d, v%d" % (MC, MC, T[1], T[0], T[0], T[1]))
        a("v_sub_f32 v%d, 0, v%d\nv_exp_f32 v%d, v%d" % (T[1], T[1], T[1], T[1]))
        for k in range(8): a("v_mul_f32 v%d, v%d, v%d" % (X + k, X + k, T[1]))
        a("v_mul_f32 v%d, v%d, v%d" % (ACL, ACL, T[1]))
        a("s_branch L_rb%d" % b)
    for lab in retries:
        a.flush()
        a("L_tr%s:" % lab)
        a("v_mov_b32 v%d, -1\ns_sub_u32 s83, s83, 1\ns_cbranch_scc1 L_tg%s" % (TK[0], lab))
        a("s_sleep 8")
        a("global_atomic_add_x2 v[%d:%d], v%d, v[%d:%d], s[30:31] sc0 sc1" % (TK[0], TK[0] + 1, AV, AD, AD + 1))
        a("s_waitcnt vmcnt(0)\ns_branch L_tk%s" % lab)
        a("L_sp%s:" % lab)
        a("s_sub_u32 s83, s83, 1\ns_cbranch_scc1 L_sg%s" % lab)
        a("s_sleep %d\nds_read_b32 v%d, v%d offset:%d\ns_branch L_sw%s" % (SPS, T[2], T[1], L_LIST, lab))

    a.flush()
    a("L_helper:")
    a("s_setprio %d" % HP)
    W = 104
    W2 = 64
    XV = 16; AC = 20
    a("v_mov_b32 v4, 0\nv_mov_b32 v5, 0\nv_mov_b32 v6, 0\nv_mov_b32 v7, 0")
    a("v_lshlrev_b32 v1, 4, v0")
    a("v_and_b32 v3, 48, v1\nds_write_b128 v3, v[4:7] offset:%d" % L_CNT)
    a("v_lshlrev_b32 v10, 3, v0\nds_write_b64 v10, v[4:5] offset:%d" % L_LIST)
    if wqm:
        XV = 16; AC = 24; PT = 32
        a("v_lshrrev_b32 v8, 3, v0\nv_mul_u32_u24 v8, 14, v8\ns_mul_i32 s76, s3, 112\nv_add_u32 v8, s76, v8")
        a("v_lshlrev_b32 v9, 1, v8\nv_and_b32 v11, 0x70, v1\nv_lshl_or_b32 v8, v8, 13, v11")
        if wqm == 2:
            a("s_lshr_b32 s76, s2, 2\ns_lshl_b32 s76, s76, 7")
        else:
            a("s_lshr_b32 s76, s2, 4\ns_lshl_b32 s76, s76, 9")
            a("s_and_b32 s77, s2, 3\ns_lshl_b32 s77, s77, 7\ns_add_u32 s76, s76, s77")
        for i in range(1, 14): a("s_mov_b32 s%d, %d" % (52 + i, i * 8192))
        a("s_sub_u32 s34, 3670016, s76\ns_bitcmp1_b32 s2, " + ("0" if wqm == 2 else "3") + "\ns_cselect_b32 s34, 0, s34\ns_mov_b32 s35, 0x20000\ns_mov_b32 s38, 896\ns_mov_b32 s39, 0x20000")
    else:
        a("v_lshrrev_b32 v8, 2, v0\ns_lshl_b32 s76, s3, 4\nv_add_u32 v8, s76, v8")
        a("v_lshlrev_b32 v9, %d, v8" % (2 if QM else 4))
        a("v_lshl_or_b32 v8, v8, %d, v3" % (14 if QM else 16))
        a("s_lshr_b32 s76, s2, 4\ns_lshl_b32 s76, s76, 9")
        a("s_and_b32 s77, s2, 3\ns_lshl_b32 s77, s77, 7\ns_add_u32 s76, s76, s77")
        a("s_bfe_u32 s77, s2, 0x10003\ns_lshl_b32 s77, s77, 6\ns_add_u32 s76, s76, s77")
        for i in range(1, 8): a("s_mov_b32 s%d, %d" % (52 + i, ((i >> 1) * 128 + (i & 1)) * 8192 if QM else i * 8192))
        a("s_sub_u32 s34, 3670016, s76\ns_mov_b32 s35, 0x20000\ns_mov_b32 s38, 896\ns_mov_b32 s39, 0x20000")
    a("s_mov_b32 s50, 0x%x\ns_mov_b32 s51, 0x20000" % WS_END)
    if CP:
        a("s_getpc_b64 s[40:41]")
        a("L_pc:")
        a("s_sub_u32 s40, s40, L_pc-%s\ns_subb_u32 s41, s41, 0\ns_mov_b32 s42, L_code_end-%s\ns_mov_b32 s43, 0x20000" % (NAME, NAME))
        a("s_and_b32 s78, s2, 31\ns_lshl2_add_u32 s78, s78, s3\ns_lshl_b32 s78, s78, 8\nv_lshl_add_u32 v40, v0, 7, s78")
        a("s_mov_b64 exec, 3\nbuffer_load_dword v41, v40, s[40:43], 0 offen\ns_mov_b64 exec, -1")
    if wqx:
        a("v_lshrrev_b32 v8, 4, v0\ns_mul_i32 s77, s3, 28\nv_add_u32 v8, s77, v8\nv_and_b32 v11, 15, v0\nv_lshlrev_b32 v11, 4, v11\nv_lshl_or_b32 v8, v8, 13, v11")
        a("s_lshr_b32 s76, s2, 5\ns_lshl_b32 s76, s76, 10\ns_and_b32 s77, s2, 3\ns_lshl_b32 s77, s77, 8\ns_add_u32 s76, s76, s77")
        a("s_bfe_u32 s77, s2, 0x20003\ns_mul_i32 s77, s77, %d\ns_add_u32 s92, s76, s77" % (112 * 8192))
        for i in range(1, 7): a("s_mov_b32 s%d, %d" % (52 + i, i * 32768))
        a("s_mov_b32 s59, 0\ns_sub_u32 s34, 3670016, s92")
        a("s_lshr_b32 s76, s2, 4\ns_lshl_b32 s76, s76, 9")
        a("s_and_b32 s77, s2, 3\ns_lshl_b32 s77, s77, 7\ns_add_u32 s76, s76, s77")
        a("s_bfe_u32 s77, s2, 0x10003\ns_lshl_b32 s77, s77, 6\ns_add_u32 s76, s76, s77")
    a("s_bitcmp1_b32 s2, %d" % (1 if wqm == 2 else 2))
    a("s_waitcnt lgkmcnt(0)")
    if not LB or "helper" in dis: a("s_barrier")
    if "helper" in dis:
        a("v_mov_b32 v6, 0\nv_mov_b32 v7, 2\nds_write_b32 v6, v7 offset:%d\nds_write_b32 v6, v7 offset:%d" % (L_CNT + C_QRDY, L_CNT + C_CLR))
        a("s_lshl_b32 s84, s2, 7\ns_add_u32 s84, s84, %d\ns_add_u32 s84, s84, s30\ns_addc_u32 s85, s31, 0\ns_mov_b32 s86, 128\ns_mov_b32 s87, 0x20000" % STAMP_OFF)
        a("v_mov_b32 v16, s90\nv_mov_b32 v17, 0\nbuffer_store_dwordx2 v[16:17], v6, s[84:87], 0 offen\ns_endpgm")
    a("s_cselect_b32 s32, s20, s10\ns_cselect_b32 s33, s21, s11\ns_cselect_b32 s77, 0x2000, 0")
    a("s_add_u32 s32, s32, s%d\ns_addc_u32 s33, s33, 0\ns_mov_b32 s36, s4\ns_mov_b32 s37, s5" % (92 if wqx else 76))
    if QM:
        for k in range(4): a("buffer_load_dword v%d, v9, s[36:39], 0 offen offset:%d" % (XV + k, 256 * k))
        a("v_add_u32 v11, %d, v8" % (384 * 8192))
    else:
        a("buffer_load_dwordx4 v[%d:%d], v9, s[36:39], 0 offen" % (XV, XV + 3))
    def wql(i):
        if QM and i >= 6:
            a("buffer_load_dwordx4 v[%d:%d], v11, s[32:35], %s offen%s" % (W + 4 * i, W + 4 * i + 3, "0" if i == 6 else "s53", NTW)); return
        a("buffer_load_dwordx4 v[%d:%d], v8, s[32:35], %s offen%s" % (W + 4 * i, W + 4 * i + 3, "0" if i == 0 else "s%d" % (52 + i), NTW))
    if wqm: a("buffer_load_dwordx3 v[%d:%d], v9, s[36:39], 0 offen offset:16" % (XV + 4, XV + 6))
    for i in range(14 if wqm else WQW):
        if wqx == 2 or (wqx and i == 7): continue
        wql(i)
    a("s_load_dword s70, s[30:31], 0x%x" % WS_EPOCH)
    if LB: a("s_barrier")
    a("s_add_u32 s75, s76, s77\ns_lshl_b32 s75, s75, 1")
    a("s_mov_b32 s48, s30\ns_mov_b32 s49, s31")
    a("s_lshl_b32 s74, s2, 12")
    a("s_mov_b32 s76, 0x05040100\ns_mov_b32 s77, 0x07060302")
    if wqm:
        a("v_lshrrev_b32 v4, 4, v0\nv_lshlrev_b32 v4, 3, v4\nv_lshl_or_b32 v4, v11, 1, v4\ns_lshl_b32 s78, s3, 8\nv_add_u32 v4, s78, v4")
        a("v_and_b32 v5, 31, v0\nv_lshlrev_b32 v5, 3, v5\nv_add_u32 v5, %d, v5" % L_QP)
    else:
        a("v_lshrrev_b32 v4, 4, v0\ns_lshl_b32 s78, s3, 2\nv_add_u32 v4, s78, v4\nv_lshlrev_b32 v4, 7, v4\nv_lshl_or_b32 v4, v3, 1, v4")
        a("v_and_b32 v5, 31, v0\nv_lshlrev_b32 v5, 2, v5\nv_lshrrev_b32 v6, 5, v0\nv_lshl_or_b32 v5, v6, 10, v5")
        a("v_add_u32 v5, %d, v5" % L_QP)
    a("v_mov_b32 v6, 0\nv_mov_b32 v7, 1\nv_lshlrev_b32 v2, 2, v0")
    if dbgt: a("v_mov_b32 v63, 0\nv_writelane_b32 v63, s90, 0")
    a("s_lshr_b32 s72, s%d, 5\ns_lshl_b32 s72, s72, 11\ns_add_u32 s72, s72, 0x4000" % (2 if wqx else 92))
    a("s_lshr_b32 s73, s93, 4\ns_lshl_b32 s73, s73, 10")
    a("v_lshlrev_b32 v10, 3, v0")
    for i in range(WQW, 8):
        a("s_waitcnt vmcnt(%d)" % (WQW - 1)); wql(i)
    a("s_setprio 3")
    if wqm:
        for k in range(7):
            a("s_waitcnt vmcnt(%d)" % (12 - 2 * k))
            w0 = W + 8 * k; w1 = w0 + 4
            for d in range(4):
                a("v_perm_b32 v%d, v%d, v%d, s76" % (PT + 2 * d, w1 + d, w0 + d))
                a("v_perm_b32 v%d, v%d, v%d, s77" % (PT + 1 + 2 * d, w1 + d, w0 + d))
            for e in range(8):
                a("v_dot2_f32_bf16 v%d, v%d, v%d, %s" % (AC + e, PT + e, XV + k, "0" if k == 0 else "v%d" % (AC + e)))
        a("s_waitcnt lgkmcnt(0)")
        stamp(1)
        for j in range(4): a("v_permlane32_swap_b32 v%d, v%d" % (AC + j, AC + j + 4))
        for j in range(4): a("v_add_f32 v%d, v%d, v%d" % (AC + j, AC + j, AC + j + 4))
        for j in range(2): a("v_permlane16_swap_b32 v%d, v%d" % (AC + j, AC + j + 2))
        for j in range(2): a("v_add_f32 v%d, v%d, v%d" % (AC + j, AC + j, AC + j + 2))
        for j in range(2): a(dpp("v_add_f32", AC + j, AC + j, AC + j, "row_ror:8"))
        a("ds_write_b64 v4, v[%d:%d] offset:%d" % (AC, AC + 1, L_QP))
        a("s_mov_b64 exec, 1")
        a("ds_add_rtn_u32 v9, v6, v7 offset:%d" % (L_CNT + C_QARR))
        a("s_mov_b64 exec, -1")
        a("ds_read2_b64 v[28:31], v5 offset0:0 offset1:32\nds_read2_b64 v[32:35], v5 offset0:64 offset1:96")
        a("s_waitcnt lgkmcnt(0)\nv_readfirstlane_b32 s71, v9")
        a("s_mul_i32 s70, s70, 0x9e3779b1\ns_add_u32 s70, s70, 0x7f4a7c15")
        a("s_cmp_lg_u32 s71, 3\ns_cbranch_scc1 L_h_wq")
        a("v_pk_add_f32 v[28:29], v[28:29], v[30:31]\nv_pk_add_f32 v[32:33], v[32:33], v[34:35]\nv_pk_add_f32 v[28:29], v[28:29], v[32:33]")
        a("v_cvt_pk_bf16_f32 v28, v28, v29\nv_mov_b32 v29, s70")
        a("s_bitcmp1_b32 s2, %d\ns_cselect_b32 exec_lo, 0, -1\ns_mov_b32 exec_hi, 0" % (0 if wqm == 2 else 3))
        a("buffer_store_dwordx2 v[28:29], v10, s[48:51], s75 offen sc1")
    else:
        if dbgt == 3:
            a("s_waitcnt vmcnt(8)"); stamp(14)
            a("s_waitcnt vmcnt(7)"); stamp(15)
        a("s_waitcnt vmcnt(0) lgkmcnt(0)")
        stamp(1)
    if not wqm:
        for k in range(4):
            w0 = W + 8 * k; w1 = w0 + 4
            for d in range(4):
                a("v_perm_b32 v%d, v%d, v%d, s76" % (28 + 2 * d, w1 + d, w0 + d))
                a("v_perm_b32 v%d, v%d, v%d, s77" % (29 + 2 * d, w1 + d, w0 + d))
            for e in range(8):
                a("v_dot2_f32_bf16 v%d, v%d, v%d, %s" % (AC + e, 28 + e, XV + k, "0" if k == 0 else "v%d" % (AC + e)))
        for e in range(8): a(dpp("v_add_f32", AC + e, AC + e, AC + e, "row_ror:4"))
        for e in range(8): a(dpp("v_add_f32", AC + e, AC + e, AC + e, "row_ror:8"))
        a("s_mov_b32 exec_lo, 0x000f000f\ns_mov_b32 exec_hi, 0x000f000f")
        a("ds_write_b128 v4, v[%d:%d] offset:%d" % (AC, AC + 3, L_QP))
        a("ds_write_b128 v4, v[%d:%d] offset:%d" % (AC + 4, AC + 7, L_QP + 16))
        a("s_mov_b64 exec, 1")
        a("ds_add_rtn_u32 v9, v6, v7 offset:%d" % (L_CNT + C_QARR))
        a("s_mov_b64 exec, -1")
        for i in range(4):
            a("ds_read2_b32 v[%d:%d], v5 offset0:%d offset1:%d" % (28 + 2 * i, 29 + 2 * i, 64 * i, 64 * i + 32))
        a("s_waitcnt lgkmcnt(0)\nv_readfirstlane_b32 s71, v9")
        a("s_mul_i32 s70, s70, 0x9e3779b1\ns_add_u32 s70, s70, 0x7f4a7c15")
        a("s_cmp_lg_u32 s71, 3\ns_cbranch_scc1 L_h_wq")
        a("v_add_f32 v28, v28, v29\nv_add_f32 v30, v30, v31\nv_add_f32 v32, v32, v33\nv_add_f32 v34, v34, v35")
        a("v_add_f32 v28, v28, v30\nv_add_f32 v32, v32, v34\nv_add_f32 v28, v28, v32")
        a("v_mov_b32 v29, v28\nv_permlane32_swap_b32 v29, v28\nv_add_f32 v28, v28, v29")
        a("v_mov_b32_dpp v29, v28 quad_perm:[1,0,3,2] row_mask:0xf bank_mask:0xf")
        a("s_getreg_b32 s79, hwreg(HW_REG_XCC_ID, 0, 4)\ns_xor_b32 s79, s79, s70")
        a("v_cvt_pk_bf16_f32 v28, v28, v29\nv_mov_b32 v29, s79")
        a("s_mov_b32 exec_lo, 0x55555555\ns_mov_b32 exec_hi, 0")
        if "qst" not in dis: a("buffer_store_dwordx2 v[28:29], v2, s[48:51], s75 offen%s" % ("" if "qpl" in dis else " sc1"))
    a("s_mov_b64 exec, 0xffff")
    a("v_mov_b32 v30, 0\nv_mov_b32 v31, s70\nds_write_b32 v6, v31 offset:%d" % (L_CNT + C_TAG))
    a("s_cmp_ge_u32 s2, 16\ns_cbranch_scc1 L_h_noci")
    a("s_mul_i32 s76, s2, %d\ns_add_u32 s76, s76, %d" % (CSTR, WS_CNT))
    a("buffer_store_dwordx2 v[30:31], v10, s[48:51], s76 offen sc1")
    a("L_h_noci:")
    a("s_mov_b64 exec, -1")
    stamp(2)
    ldswait("prg", 6, 4, L_CNT + C_PRG, "ge", 4, slp=2)
    a("s_mov_b32 s83, %d" % spin)
    if "qld" in dis: a("v_mov_b32 v16, 0\nv_mov_b32 v18, 0\nv_mov_b32 v20, 0\nv_mov_b32 v22, 0\nv_mov_b32 v24, 0\nv_mov_b32 v26, 0\nv_mov_b32 v4, 0\ns_branch L_h_fg")
    if "q1" in dis: a("s_mov_b32 s83, 0")
    a("L_h_fw:")
    a("buffer_load_dwordx4 v[16:19], v1, s[48:51], s72 offen sc1")
    a("buffer_load_dwordx4 v[20:23], v1, s[48:51], s72 offen offset:1024 sc1")
    a("buffer_load_dwordx4 v[24:27], v1, s[48:51], s73 offen sc1")
    a("s_waitcnt vmcnt(0)")
    assert not wqm
    a("v_xor_b32 v4, s79, v17\nv_xor_b32 v5, s79, v19\nv_xor_b32 v8, s79, v21\nv_xor_b32 v9, s79, v23\nv_xor_b32 v11, s79, v25\nv_xor_b32 v12, s79, v27")
    a("v_or3_b32 v4, v4, v5, v8\nv_or_b32 v4, v4, v9\nv_or3_b32 v9, v4, v11, v12\nv_cmp_lt_u32 vcc, 15, v9")
    a("s_sub_u32 s83, s83, 1\ns_cbranch_scc1 L_h_fg")
    a("s_cbranch_vccnz L_h_fw")
    a("L_h_fg:")
    a("ds_write2_b32 v10, v16, v18 offset0:0 offset1:1")
    a("ds_write2_b32 v10, v20, v22 offset0:128 offset1:129")
    a("v_add_u32 v10, 1024, v10")
    a("ds_write2_b32 v10, v24, v26 offset0:0 offset1:1")
    if "q1" in dis: a("v_mov_b32 v4, 0")
    a("v_cmp_ne_u32 vcc, 0, v4\ns_nop 0\ns_cmp_lg_u64 vcc, 0\ns_cselect_b32 s76, 1, %d\nv_mov_b32 v5, s76" % BK)
    a("s_mov_b64 exec, 1")
    a("ds_write_b32 v6, v5 offset:%d" % (L_CNT + C_QRDY))
    a("s_mov_b64 exec, -1")
    stamp(3)
    a("L_h_wq:")
    ldswait("bq", 6, 4, L_CNT + C_QRDY, "lg", 0, slp=4)
    a("s_max_u32 s94, s76, 1")
    assert CK and BH and BL and WST
    WB = 104; WC = 136
    G_ = 60; GA = 61; OV = 62; YV = 64; PV = 68; MLV = 69; PVA = 70; EE = 32; ACC = 72
    P0 = 76; P1 = 80; LM0 = 84; LM1 = 85
    a("v_lshrrev_b32 v4, 4, v0\nv_and_b32 v5, 8, v0\nv_lshl_add_u32 v12, v5, 1, v4\nv_mul_u32_u24 v12, 896, v12\nv_and_b32 v16, 0x70, v1\nv_add_u32 v12, v12, v16")
    for rg in range(1, 4): a("v_add_u32 v%d, %d, v12" % (12 + rg, rg * 3584))
    a("s_and_b32 s76, s2, 31\ns_lshl2_add_u32 s73, s76, s71\ns_mul_i32 s76, s73, 28672\ns_lshr_b32 s78, s2, 5\ns_min_u32 s78, s78, 6\ns_lshl_b32 s78, s78, 7\ns_add_u32 s76, s76, s78")
    a("s_sub_u32 s34, 28672, s78\ns_mov_b32 s46, s34\ns_mov_b32 s47, 0x20000")
    a("s_add_u32 s32, s22, s76\ns_addc_u32 s33, s23, 0\ns_add_u32 s44, s12, s76\ns_addc_u32 s45, s13, 0")
    a("v_lshrrev_b32 v17, 3, v0\nv_mul_u32_u24 v%d, %d, v17\nv_add_u32 v%d, v%d, v16" % (PVA, PAS, PVA, PVA))
    a("v_lshrrev_b32 v17, 1, v0\nv_mul_u32_u24 v%d, %d, v17\nv_and_b32 v17, 1, v0\nv_lshl_add_u32 v%d, v17, 8, v%d" % (YV, YS, YV, YV))
    a("v_lshrrev_b32 v17, 5, v0\nv_lshlrev_b32 v17, 8, v17\nv_lshl_or_b32 v17, v16, 1, v17\nv_and_b32 v18, 16, v0\ns_lshl_b32 s76, s71, 9\nv_or3_b32 v%d, v17, v18, s76" % (YV + 1))
    a("v_and_b32 v17, 15, v0\nv_lshlrev_b32 v4, 1, v4\nv_lshl_or_b32 v%d, v17, 20, v4" % OV)
    masks(8, 4, 5)
    a("s_mov_b32 s63, 0x0c04000c")
    a("s_lshr_b32 s76, s73, 3\ns_mul_i32 s76, s76, %d\ns_and_b32 s77, s73, 7\ns_lshl_b32 s77, s77, 7\ns_add_u32 s62, s76, s77\ns_add_u32 s62, s62, %d" % (16 * PAS, WS_PA))
    if NC > 1: a("s_lshr_b32 s76, s2, 5\ns_mul_i32 s76, s76, %d\ns_lshr_b32 s76, s76, 3\ns_min_u32 s76, s76, %d\ns_mul_i32 s76, s76, %d\ns_add_u32 s62, s62, s76" % (8 if NC == 7 else NC, NC - 1, CPS))
    a("s_add_u32 s72, s62, %d" % (8 * PAS))
    a("s_lshl_b32 s73, s73, 7\ns_add_u32 s73, s73, %d" % WS_OB)
    a("s_mul_i32 s68, s2, %d\ns_add_u32 s68, s68, %d" % (YS, WS_Y))
    a("s_add_u32 s56, s30, s68\ns_addc_u32 s57, s31, 0\ns_mov_b32 s58, 0\ns_mov_b32 s59, 0x20000")
    a("s_and_b32 s76, s2, 0xe0\ns_mul_i32 s60, s76, %d\ns_bfe_u32 s77, s2, 0x40001\ns_lshl4_add_u32 s60, s77, s60\ns_add_u32 s60, s60, %d" % (YS, WS_Y))
    a("s_lshl3_add_u32 s77, s77, s78")
    a("s_add_u32 s64, s26, s77\ns_addc_u32 s65, s27, 0\ns_mov_b32 s66, 0\ns_mov_b32 s67, 0x20000")
    a("s_mov_b32 s80, 0x03020105\ns_mov_b32 s81, 0x03020106\ns_mov_b32 s82, 0x03020107")
    a("s_cmp_lg_u32 s71, 2\ns_cbranch_scc1 L_b_rd")
    a("s_mov_b32 s52, s24\ns_mov_b32 s53, s25\ns_mov_b32 s54, 896\ns_mov_b32 s55, 0x20000")
    a("buffer_load_dwordx4 v[16:19], v1, s[36:39], 0 offen")
    a("buffer_load_dwordx4 v[20:23], v1, s[52:55], 0 offen")
    a("s_waitcnt vmcnt(0)")
    for d in range(4):
        a("v_lshlrev_b32 v24, 16, v%d\nv_and_b32 v25, 0xffff0000, v%d\nv_lshlrev_b32 v26, 16, v%d\nv_and_b32 v27, 0xffff0000, v%d" % (16 + d, 16 + d, 20 + d, 20 + d))
        a("v_mul_f32 v24, v24, v26\nv_mul_f32 v25, v25, v27\nv_cvt_pk_bf16_f32 v24, v24, v25")
        a("v_lshlrev_b32 v25, 16, v24\nv_and_b32 v24, 0xffff0000, v24")
        if d == 0: a("v_add_f32 v28, v24, v25")
        else: a("v_add_f32 v28, v28, v24\nv_add_f32 v28, v28, v25")
    for ctl in ("quad_perm:[1,0,3,2]", "quad_perm:[2,3,0,1]", "row_half_mirror", "row_mirror"):
        a(dpp("v_add_f32", 28, 28, 28, ctl))
    allrows("v_add_f32", 28, 29)
    a("v_cvt_pk_bf16_f32 v28, v28, v28\nv_and_b32 v28, 0xffff0000, v28")
    a("v_mul_f32 v28, %s, v28\nv_exp_f32 v28, v28\nv_add_f32 v28, 1.0, v28\nv_rcp_f32 v28, v28" % f32(-math.log2(math.e)))
    a("v_cvt_pk_bf16_f32 v28, v28, v28\nv_and_b32 v%d, 0xffff0000, v28" % GA)
    a("v_sub_f32 v28, 1.0, v%d\nv_cvt_pk_bf16_f32 v28, v28, v28\nv_and_b32 v%d, 0xffff0000, v28" % (GA, G_))
    a("ds_write_b32 v6, v%d offset:%d" % (GA, L_CNT + C_G))
    ldswait("vb", 6, 4, L_CNT + C_VDB, "eq", 8, slp=4)
    stamp(4)
    a("s_mul_i32 s76, s%d, %d\ns_add_u32 s76, s76, %d" % (2 if wqx else 92, PBS, WS_PB))
    if BL: a("s_mov_b32 s55, s76\ns_getreg_b32 s79, hwreg(HW_REG_XCC_ID, 0, 4)\ns_add_u32 s79, s79, s70\ns_add_u32 s79, s79, 1")
    for h in range(2):
        a("ds_read_b128 v[16:19], v6 offset:%d\nds_read_b128 v[20:23], v6 offset:%d" % (L_MW + 32 * h, L_MW + 32 * h + 16))
        a("ds_read_b128 v[24:27], v6 offset:%d\nds_read_b128 v[28:31], v6 offset:%d" % (L_LW + 32 * h, L_LW + 32 * h + 16))
        a("s_waitcnt lgkmcnt(0)")
        mx = 88 + 4 * h
        a("v_max3_f32 v%d, v16, v17, v18\nv_max3_f32 v%d, v%d, v19, v20\nv_max3_f32 v%d, v%d, v21, v22\nv_max_f32 v%d, v%d, v23" % (mx, mx, mx, mx, mx, mx, mx))
        for w in range(8): a("v_sub_f32 v%d, v%d, v%d" % (16 + w, 16 + w, mx))
        for w in range(8): a("v_exp_f32 v%d, v%d" % (16 + w, 16 + w))
        a("v_mul_f32 v%d, v16, v24" % (mx + 2))
        for w in range(1, 8): a("v_fmac_f32 v%d, v%d, v%d" % (mx + 2, 16 + w, 24 + w))
        o = 96 + 4 * h
        for half in range(2):
            for w in range(4):
                a("ds_read_b128 v[%d:%d], v1 offset:%d" % (32 + 4 * w, 35 + 4 * w, L_ACCB + h * 8192 + (half * 4 + w) * 1024))
            a("s_waitcnt lgkmcnt(0)")
            for w in range(4):
                for k in range(4):
                    if half == 0 and w == 0: a("v_mul_f32 v%d, v%d, v16" % (o + k, 32 + k))
                    else: a("v_fmac_f32 v%d, v%d, v%d" % (o + k, 32 + 4 * w + k, 16 + half * 4 + w))
        if BH:
            a("v_cvt_pk_bf16_f32 v%d, v%d, v%d\nv_cvt_pk_bf16_f32 v%d, v%d, v%d\nv_lshlrev_b32 v5, 3, v0" % (o, o, o + 1, o + 1, o + 2, o + 3))
            a("buffer_store_dwordx2 v[%d:%d], v5, s[48:51], s76 offen offset:%d%s" % (o, o + 1, 512 * h, BST))
        else:
            a("buffer_store_dwordx4 v[%d:%d], v1, s[48:51], s76 offen offset:%d sc1" % (o, o + 3, 1024 * h))
    a("v_and_b32 v4, 1, v0\nv_cmp_eq_u32 vcc, 1, v4")
    a("v_cndmask_b32 v88, v88, v92, vcc\nv_cndmask_b32 v90, v90, v94, vcc\nv_mov_b32 v89, s%d\nv_mov_b32 v91, s%d" % ((79, 79) if BL else (70, 70)))
    a("s_waitcnt vmcnt(0)")
    a("s_mov_b64 exec, 0xff")
    a("buffer_store_dwordx4 v[88:91], v1, s[48:51], s76 offen offset:%d%s" % (MLO, BST))
    a("s_mov_b64 exec, -1")
    stamp(5)
    if not BL: a("s_mov_b32 s79, 0x01010101")
    a("v_and_b32 v4, 31, v0\nv_mul_u32_u24 v%d, %d, v4" % (MLV, PBS))
    if BH:
        a("v_lshrrev_b32 v5, 3, v0\nv_mul_u32_u24 v%d, %d, v5\nv_and_b32 v16, 7, v0\nv_lshl_add_u32 v%d, v16, 4, v%d" % (PV, PBS, PV, PV))
        a("v_lshlrev_b32 v66, 4, v5")
        a("v_lshrrev_b32 v4, 3, v4\nv_lshl_or_b32 v67, v16, 2, v4\nv_lshlrev_b32 v67, 2, v67")
        a("v_lshrrev_b32 v5, 4, v0\nv_lshlrev_b32 v5, 3, v5\nv_lshl_or_b32 v71, v16, 5, v5")
    else:
        a("v_lshrrev_b32 v5, 4, v0\nv_mul_u32_u24 v%d, %d, v5\nv_and_b32 v16, 15, v0\nv_lshl_add_u32 v%d, v16, 4, v%d" % (PV, PBS, PV, PV))
        a("v_lshlrev_b32 v66, 5, v5")
        a("v_and_b32 v16, 3, v0\nv_lshrrev_b32 v4, 2, v4\nv_lshl_or_b32 v67, v16, 3, v4\nv_lshlrev_b32 v67, 2, v67")
    a("s_and_b32 s76, s2, 0xe0\ns_mul_i32 s76, s76, %d\ns_add_u32 s76, s76, %d" % (PBS, WS_PB))
    a("s_bfe_u32 s77, s2, 0x10004\ns_lshl4_add_u32 s54, s77, s76\ns_add_u32 s54, s54, %d" % MLO)
    a("s_and_b32 s77, s2, 28\ns_lshl_b32 s77, s77, %d\ns_add_u32 s52, s76, s77" % (5 if BH else 6))
    ldswait("kb", 6, 4, L_CNT + C_KD, "ge", BTRIG, slp=8)
    a("s_mov_b32 s83, %d" % spin)
    if BL:
        a("s_mov_b32 s53, s94\ns_mov_b32 s69, 1")
        a("L_b_w:")
        a("buffer_load_dwordx4 v[24:27], v%d, s[48:51], s54 offen sc1" % MLV)
        a("s_waitcnt vmcnt(0)")
        a("v_xor_b32 v4, s79, v25\nv_xor_b32 v5, s79, v27\nv_or_b32 v4, v4, v5\nv_cmp_ne_u32 vcc, 0, v4")
        a("s_cbranch_vccz L_b_g")
        a("v_xor_b32 v16, s70, v25\nv_xor_b32 v5, s70, v27\nv_or_b32 v16, v16, v5\nv_cmp_eq_u32 s[76:77], 0, v16")
        a("s_nop 0\ns_cmp_lg_u64 s[76:77], 0\ns_cselect_b32 s78, 1, s53\ns_min_u32 s53, s53, s78")
        a("s_andn2_b64 s[76:77], vcc, s[76:77]")
        a("s_cmp_eq_u32 s53, 0\ns_cbranch_scc1 L_b_n")
        a("s_sub_u32 s53, s53, 1\ns_cmp_lg_u32 s53, 0\ns_cbranch_scc1 L_b_n")
        a("v_lshlrev_b32 v5, 3, v0\nv_mov_b32 v89, s70\nv_mov_b32 v91, s70")
        a("buffer_store_dwordx2 v[96:97], v5, s[48:51], s55 offen sc1")
        a("buffer_store_dwordx2 v[100:101], v5, s[48:51], s55 offen offset:512 sc1")
        a("s_waitcnt vmcnt(0)\ns_mov_b64 exec, 0xff")
        a("buffer_store_dwordx4 v[88:91], v1, s[48:51], s55 offen offset:%d sc1" % MLO)
        a("s_mov_b64 exec, -1")
        a("L_b_n:")
        a("s_mov_b32 s69, 2")
        a("s_cmp_eq_u64 s[76:77], 0\ns_cbranch_scc1 L_b_g")
        a("s_sub_u32 s83, s83, 1\ns_cbranch_scc1 L_b_g")
        a("s_mov_b32 s69, 1\ns_sleep 32\ns_branch L_b_w")
    else:
        a("L_b_w:")
        if "clear" in dis or CK: a("v_mov_b32 v4, s79")
        else: a("buffer_load_dword v4, v2, s[40:43], 0 offen sc1")
        a("buffer_load_dwordx4 v[24:27], v%d, s[48:51], s54 offen sc1" % MLV)
        a("s_waitcnt vmcnt(0)")
        a("v_xor_b32 v4, s79, v4\nv_xor_b32 v5, s70, v25\nv_xor_b32 v16, s70, v27")
        a("v_or3_b32 v4, v4, v5, v16\nv_cmp_ne_u32 vcc, 0, v4")
        a("s_sub_u32 s83, s83, 1\ns_cbranch_scc1 L_b_g")
        a("s_cbranch_vccz L_b_g\ns_sleep 32\ns_branch L_b_w")
    a("L_b_g:")
    a("s_and_b32 s76, s2, 3\ns_cbranch_scc1 L_b_f")
    for i in range(4 if BH else 8):
        a("buffer_load_dwordx4 v[%d:%d], v%d, s[48:51], s52 offen sc1" % (28 + 4 * i, 31 + 4 * i, PV))
        if i < 7: a("s_add_u32 s52, s52, %d" % ((8 if BH else 4) * PBS))
    a("v_mov_b32 v4, v24")
    for ctl in ("quad_perm:[1,0,3,2]", "quad_perm:[2,3,0,1]", "row_half_mirror", "row_mirror"):
        a(dpp("v_max_f32", 4, 4, 4, ctl))
    allrows("v_max_f32", 4, 5)
    a("v_sub_f32 v24, v24, v4\nv_exp_f32 v24, v24\nv_mul_f32 v26, v26, v24")
    for ctl in ("quad_perm:[1,0,3,2]", "quad_perm:[2,3,0,1]", "row_half_mirror", "row_mirror"):
        a(dpp("v_add_f32", 26, 26, 26, ctl))
    a("v_mov_b32 v5, v26\nv_permlane16_swap_b32 v5, v26\nv_add_f32 v26, v26, v5")
    a("v_rcp_f32 v26, v26\nv_mul_f32 v24, v24, v%d\nv_mul_f32 v24, v24, v26" % G_)
    a("ds_write_b32 v67, v24 offset:%d" % L_ACCB)
    if BH:
        a("ds_read_b128 v[16:19], v66 offset:%d" % L_ACCB)
        a("s_waitcnt vmcnt(0) lgkmcnt(0)")
        AC2 = 44
        for i in range(4):
            for d in range(4):
                a("v_lshlrev_b32 v20, 16, v%d\nv_and_b32 v21, 0xffff0000, v%d" % (28 + 4 * i + d, 28 + 4 * i + d))
                for e in range(2):
                    if i == 0: a("v_mul_f32 v%d, v%d, v16" % (AC2 + 2 * d + e, 20 + e))
                    else: a("v_fmac_f32 v%d, v%d, v%d" % (AC2 + 2 * d + e, 20 + e, 16 + i))
        for j in range(4): a("v_permlane32_swap_b32 v%d, v%d" % (AC2 + j, AC2 + j + 4))
        for j in range(4): a("v_add_f32 v%d, v%d, v%d" % (AC2 + j, AC2 + j, AC2 + j + 4))
        for j in range(2): a("v_permlane16_swap_b32 v%d, v%d" % (AC2 + j, AC2 + j + 2))
        for j in range(2): a("v_add_f32 v%d, v%d, v%d" % (AC2 + j, AC2 + j, AC2 + j + 2))
        for j in range(2): a(dpp("v_add_f32", AC2 + j, AC2 + j, AC2 + j, "row_ror:8"))
        a("ds_write_b64 v71, v[%d:%d] offset:%d" % (AC2, AC2 + 1, L_ACCB + 1024))
    else:
        a("ds_read_b128 v[16:19], v66 offset:%d\nds_read_b128 v[20:23], v66 offset:%d" % (L_ACCB, L_ACCB + 16))
        a("s_waitcnt vmcnt(0) lgkmcnt(0)")
        for i in range(8):
            for r in range(4):
                if i == 0: a("v_mul_f32 v%d, v%d, v16" % (24 + r, 28 + r))
                else: a("v_fmac_f32 v%d, v%d, v%d" % (24 + r, 28 + 4 * i + r, 16 + i))
        for r in range(4): allrows("v_add_f32", 24 + r, 5)
        a("ds_write_b128 v1, v[24:27] offset:%d" % (L_ACCB + 1024))
    a("s_mov_b64 exec, 0xffff")
    a("ds_read_b128 v[16:19], v1 offset:%d" % (L_ACCB + 1024))
    a("s_lshl_b32 s76, s2, 6\ns_add_u32 s76, s76, %d" % WS_OB)
    a("s_waitcnt lgkmcnt(0)")
    for k in range(3): a("v_perm_b32 v%d, v19, v%d, s%d" % (16 + k, 16 + k, 80 + k))
    a("v_xor_b32 v19, s70, v16\nv_bitop3_b32 v19, v19, v17, v18 %s" % X3)
    a("buffer_store_dwordx4 v[16:19], v1, s[48:51], s76 offen sc1")
    a("L_b_f:")
    a("s_mov_b64 exec, 1")
    a("v_mov_b32 v4, s69\nds_write_b32 v6, v4 offset:%d" % (L_CNT + C_YB))
    a("s_mov_b64 exec, -1")
    a("L_b_rd:")
    a("s_mov_b32 s76, 9\ns_cmp_ge_u32 s2, 224\ns_cbranch_scc1 L_fin")
    ldswait("yb", 6, 4, L_CNT + C_YB, "lg", 0, slp=8)
    a("s_mov_b32 s69, s76")
    for r in (P0, P0 + 1, P0 + 2, P1, P1 + 1, P1 + 2): a("v_mov_b32 v%d, 0" % r)
    a("v_mov_b32 v%d, %s\nv_mov_b32 v%d, %s\nv_mov_b32 v%d, 1.0" % (LM0, f32(-1e30), LM1, f32(-1e30), G_))
    a("ds_read_b32 v%d, v6 offset:%d" % (GA, L_CNT + C_G))
    a("s_mov_b32 s83, %d\ns_mov_b64 exec, 0xff\nv_mov_b32 v%d, 0" % (spin, LM0))
    a("L_o_w:")
    a("buffer_load_dwordx4 v[%d:%d], v1, s[48:51], s73 offen sc1" % (P0, P0 + 3))
    a("s_waitcnt vmcnt(0)")
    a("v_bitop3_b32 v4, v%d, v%d, v%d %s\nv_xor_b32 v5, s70, v%d\nv_cmp_ne_u32 vcc, v4, v5" % (P0, P0 + 1, P0 + 2, X3, P0 + 3))
    a("s_cbranch_vccz L_o_g")
    a("s_sub_u32 s83, s83, 1\ns_cbranch_scc1 L_o_g")
    a("s_sleep 32\ns_branch L_o_w")
    a("L_o_g:")
    a("s_mov_b64 exec, -1")
    a("s_mov_b32 s61, 0\ns_mov_b32 s74, 1")
    a("s_waitcnt lgkmcnt(0)")
    stamp(6)
    a("s_branch L_t_pg")
    a("L_t_a:")
    a("s_mov_b32 s61, 4\ns_mov_b32 s74, %d\ns_movk_i32 s58, 512\ns_mov_b32 s66, 8" % spin)
    a("v_mov_b32 v%d, v%d" % (G_, GA))
    th = WST
    if nto is not None: NTW = " nt" if nto else ""
    for i in range(8):
        if i == 0 or th[i] != th[i - 1]: ldswait("eb%d" % i, 6, 4, L_CNT + C_VDA, "ge", th[i], slp=EXS)
        rg = i & 3
        if i < 4: a("buffer_load_dwordx4 v[%d:%d], v%d, s[32:35], 0 offen%s" % (WB + 4 * rg, WB + 4 * rg + 3, 12 + rg, NTW))
        else: a("buffer_load_dwordx4 v[%d:%d], v%d, s[44:47], 0 offen%s" % (WC + 4 * rg, WC + 4 * rg + 3, 12 + rg, NTW))
    if EP:
        a("buffer_load_dwordx4 v[%d:%d], v%d, s[48:51], s62 offen sc1" % (P0, P0 + 3, PVA))
        a("buffer_load_dwordx4 v[%d:%d], v%d, s[48:51], s72 offen sc1" % (P1, P1 + 3, PVA))
    for rg in range(4):
        a("s_waitcnt vmcnt(%d)" % (7 - rg + (2 if EP else 0)))
        a("v_mfma_f32_16x16x32_bf16 v[%d:%d], v[%d:%d], v[%d:%d], %s" % (ACC, ACC + 3, EE + rg * 4, EE + rg * 4 + 3, WB + 4 * rg, WB + 4 * rg + 3, "0" if rg == 0 else "v[%d:%d]" % (ACC, ACC + 3)))
    stamp(8)
    if not EP: ldswait("va", 6, 4, L_CNT + C_VDA, "ge", VAT, slp=LSL)
    stamp(9)
    a("s_mov_b32 s83, %d" % spin)
    if EP: a("s_branch L_t_pc")
    a("L_t_pw:")
    a("buffer_load_dwordx4 v[%d:%d], v%d, s[48:51], s62 offen sc1" % (P0, P0 + 3, PVA))
    a("buffer_load_dwordx4 v[%d:%d], v%d, s[48:51], s72 offen sc1" % (P1, P1 + 3, PVA))
    a("L_t_pc:")
    a("s_waitcnt vmcnt(1)")
    a("v_bitop3_b32 v4, v%d, v%d, v%d %s\nv_xor_b32 v4, v4, v%d" % (P0, P0 + 1, P0 + 2, X3, P0 + 3))
    a("v_mov_b32_dpp v%d, v%d quad_perm:[0,0,2,2] row_mask:0xf bank_mask:0xf" % (LM0, P0 + 3))
    a("s_waitcnt vmcnt(0)")
    a("v_bitop3_b32 v5, v%d, v%d, v%d %s\nv_xor_b32 v5, v5, v%d" % (P1, P1 + 1, P1 + 2, X3, P1 + 3))
    a(dpp("v_xor_b32", 4, 4, 4, "quad_perm:[1,0,3,2]"))
    a("v_mov_b32_dpp v%d, v%d quad_perm:[0,0,2,2] row_mask:0xf bank_mask:0xf" % (LM1, P1 + 3))
    a(dpp("v_xor_b32", 5, 5, 5, "quad_perm:[1,0,3,2]"))
    a("v_bitop3_b32 v4, v4, v5, s70 bitop3:0x7e\nv_cmp_ne_u32 vcc, 0, v4")
    a("s_cbranch_vccz L_t_pg0")
    if PMASK: a("s_mov_b64 exec, vcc")
    if PSLP: a("s_sleep %d" % PSLP)
    a("s_sub_u32 s83, s83, 1\ns_cbranch_scc0 L_t_pw")
    a("L_t_pg0:")
    if PMASK: a("s_mov_b64 exec, -1")
    stamp(10)
    a("L_t_pg:")
    a("v_max_f32 v4, v%d, v%d" % (LM0, LM1))
    a("v_perm_b32 v%d, v%d, v%d, s63\nv_perm_b32 v%d, v%d, v%d, s63" % (P0 + 3, P0 + 1, P0, P1 + 3, P1 + 1, P1))
    a(dpp("v_max_f32", 4, 4, 4, "row_ror:8"))
    a("v_mov_b32 v5, v4")
    a("v_lshl_or_b32 v%d, v%d, 24, v%d\nv_lshl_or_b32 v%d, v%d, 24, v%d" % (P0 + 3, P0 + 2, P0 + 3, P1 + 3, P1 + 2, P1 + 3))
    a("v_permlane16_swap_b32 v5, v4\nv_max_f32 v4, v5, v4\nv_mov_b32 v5, v4\nv_permlane32_swap_b32 v5, v4\nv_max_f32 v4, v5, v4")
    a("v_sub_f32 v24, v%d, v4\nv_sub_f32 v26, v%d, v4\nv_exp_f32 v24, v24\nv_exp_f32 v26, v26" % (LM0, LM1))
    for r in (0, 2): a("v_pk_mul_f32 v[%d:%d], v[%d:%d], v[24:25] op_sel_hi:[1,0]" % (16 + r, 17 + r, P0 + r, P0 + r + 1))
    a("v_add_f32 v28, v24, v26")
    for r in (0, 2): a("v_pk_fma_f32 v[%d:%d], v[%d:%d], v[26:27], v[%d:%d] op_sel_hi:[1,0,1]" % (16 + r, 17 + r, P1 + r, P1 + r + 1, 16 + r, 17 + r))
    a(dpp("v_add_f32", 28, 28, 28, "row_ror:8"))
    a("v_mov_b32 v5, v28")
    a("v_permlane16_swap_b32 v16, v17\nv_permlane16_swap_b32 v18, v19\nv_permlane16_swap_b32 v5, v28")
    a("v_add_f32 v16, v16, v17\nv_add_f32 v18, v18, v19\nv_add_f32 v28, v28, v5\nv_mov_b32 v5, v28")
    a("v_permlane32_swap_b32 v16, v18\nv_add_f32 v16, v16, v18")
    a("v_permlane32_swap_b32 v5, v28\nv_add_f32 v28, v28, v5")
    a(dpp("v_add_f32", 16, 16, 16, "row_ror:8"))
    a("v_rcp_f32 v28, v28\nv_mul_f32 v16, v16, v%d" % G_)
    a("v_mov_b32_dpp v16, v16 row_shr:4 row_mask:0xf bank_mask:0x6")
    a("v_mul_f32 v16, v16, v28\nv_cvt_pk_bf16_f32 v16, v16, v16")
    for rg in range(4):
        for k in range(4):
            a(dpp("v_and_b32", EE + rg * 4 + k, 16, 8 + k, "quad_perm:[%d,%d,%d,%d]" % (rg, rg, rg, rg)))
        if rg: a("v_mfma_f32_16x16x32_bf16 v[%d:%d], v[%d:%d], v[%d:%d], v[%d:%d]" % (ACC, ACC + 3, EE + rg * 4 - 4, EE + rg * 4 - 1, WC + 4 * rg - 4, WC + 4 * rg - 1, ACC, ACC + 3))
    a("v_mfma_f32_16x16x32_bf16 v[%d:%d], v[%d:%d], v[%d:%d], v[%d:%d]" % (ACC, ACC + 3, EE + 12, EE + 15, WC + 12, WC + 15, ACC, ACC + 3))
    a("s_mov_b32 exec_lo, 0x00ff00ff\ns_mov_b32 exec_hi, 0xff00ff00")
    a("ds_write_b128 v%d, v[%d:%d] offset:%d" % (YV + 1, ACC, ACC + 3, L_QP))
    a("s_mov_b64 exec, 1")
    a("ds_add_rtn_u32 v4, v6, v7 offset:%d" % (L_CNT + C_YARR))
    a("s_mov_b32 exec_lo, -1")
    for k in range(4): a("ds_read_b128 v[%d:%d], v1 offset:%d" % (16 + 4 * k, 19 + 4 * k, L_QP + 512 * k))
    a("s_waitcnt lgkmcnt(0)\nv_readfirstlane_b32 s76, v4")
    for r in (0, 2): a("v_pk_add_f32 v[%d:%d], v[%d:%d], v[%d:%d]" % (16 + r, 17 + r, 16 + r, 17 + r, 20 + r, 21 + r))
    for r in (0, 2): a("v_pk_add_f32 v[%d:%d], v[%d:%d], v[%d:%d]" % (24 + r, 25 + r, 24 + r, 25 + r, 28 + r, 29 + r))
    a("s_sub_u32 s76, s76, s61\ns_cmp_lg_u32 s76, 3\ns_cbranch_scc1 L_t_nst")
    for r in (0, 2): a("v_pk_add_f32 v[%d:%d], v[%d:%d], v[%d:%d]" % (16 + r, 17 + r, 16 + r, 17 + r, 24 + r, 25 + r))
    for k in range(3): a("v_perm_b32 v%d, v19, v%d, s%d" % (16 + k, 16 + k, 80 + k))
    a("s_cmp_eq_u32 s69, %d" % (1 if YLOC else 7))
    a("v_xor_b32 v19, s70, v16\nv_bitop3_b32 v19, v19, v17, v18 %s" % X3)
    a("s_cbranch_scc0 L_t_yg2")
    a("buffer_store_dwordx4 v[16:19], v1, s[56:59], 0 offen")
    a("L_t_ys:")
    stamp(11)
    a("L_t_nst:")
    a("s_mov_b64 exec, -1")
    a("s_cmp_lg_u32 s76, 0\ns_cbranch_scc1 L_t_next")
    a("s_bitcmp1_b32 s2, 0\ns_cbranch_scc1 L_t_next")
    a("s_mov_b32 s83, s74")
    a("L_t_yw:")
    a("buffer_load_dwordx4 v[16:19], v%d, s[48:51], s60 offen sc1" % YV)
    a("s_waitcnt vmcnt(0)")
    a("v_bitop3_b32 v4, v16, v17, v18 %s\nv_xor_b32 v5, s70, v19\nv_perm_b32 v19, v17, v16, s63\nv_cmp_ne_u32 vcc, v4, v5\nv_lshl_or_b32 v19, v18, 24, v19" % X3)
    a("s_cbranch_vccz L_t_yg")
    if YMASK: a("s_mov_b64 exec, vcc")
    a("s_sub_u32 s83, s83, 1\ns_cmp_lg_u32 s83, 0\ns_cbranch_scc1 L_t_yw")
    a("L_t_yg:")
    if YMASK: a("s_mov_b64 exec, -1")
    stamp(12)
    a("v_permlane16_swap_b32 v16, v17\nv_permlane16_swap_b32 v18, v19")
    a("v_add_f32 v16, v16, v17\nv_add_f32 v18, v18, v19")
    a("v_permlane32_swap_b32 v16, v18\nv_add_f32 v16, v16, v18")
    for ctl in ("quad_perm:[1,0,3,2]", "quad_perm:[2,3,0,1]", "row_half_mirror", "row_mirror"):
        a(dpp("v_add_f32", 16, 16, 16, ctl))
    a("v_cvt_pk_bf16_f32 v16, v16, v16")
    a("buffer_store_short v16, v%d, s[64:67], 0 offen%s" % (OV, OST))
    stamp(13)
    a("s_cmp_eq_u32 s61, 0\ns_cbranch_scc1 L_t_next")
    a("s_cmp_lg_u32 s2, 0\ns_cbranch_scc1 L_t_next")
    a("v_mov_b32 v4, s70\nv_mov_b32 v5, 0x%x\ns_mov_b64 exec, 1" % WS_EPOCH)
    a("buffer_store_dword v4, v5, s[48:51], 0 offen" + EST)
    a("s_mov_b64 exec, -1")
    a("L_t_next:")
    a("s_cmp_lg_u32 s61, 0\ns_cbranch_scc1 L_fin")
    ldswait("y4", 6, 4, L_CNT + C_YARR, "ge", 4, slp=2)
    a("s_branch L_t_a")
    a.flush()
    a("L_t_yg2:")
    a("buffer_store_dwordx4 v[16:19], v1, s[56:59], 0 offen sc1\ns_branch L_t_ys")
    a("L_fin:")
    if dbgt:
        a("s_lshl_b32 s84, s2, 7\ns_add_u32 s84, s84, %d\ns_add_u32 s84, s84, s30\ns_addc_u32 s85, s31, 0\ns_mov_b32 s86, 128\ns_mov_b32 s87, 0x20000" % STAMP_OFF)
        a("v_mov_b32 v16, v63\nv_mov_b32 v17, 0\nv_lshlrev_b32 v18, 3, v0")
        a("s_mov_b32 s77, 0\ns_cmp_eq_u32 s71, 3\ns_cselect_b32 s78, 0xc00f, 0\ns_or_b32 s77, s77, s78\ns_cmp_eq_u32 s71, 2\ns_cselect_b32 s78, 0x30, 0\ns_or_b32 s77, s77, s78")
        a("s_cmp_eq_u32 s76, 3\ns_cselect_b32 s78, 0xf40, 0\ns_or_b32 s77, s77, s78\ns_cmp_eq_u32 s76, 0\ns_cselect_b32 s78, 0x3080, 0\ns_or_b32 s77, s77, s78")
        a("s_cbranch_scc0 L_end\ns_mov_b32 exec_lo, s77\ns_mov_b32 exec_hi, 0")
        a("buffer_store_dwordx2 v[16:17], v18, s[84:87], 0 offen")
    a("s_endpgm")
    a.flush()
    a("L_end:")
    a("s_endpgm")
    a("L_code_end:")
    a.raw('.section .rodata,"a"\n.p2align 6\n.amdhsa_kernel %s' % NAME)
    a.raw("  .amdhsa_next_free_vgpr 168\n  .amdhsa_next_free_sgpr 102\n  .amdhsa_accum_offset 168")
    a.raw("  .amdhsa_group_segment_fixed_size 0\n  .amdhsa_kernarg_size 112\n  .amdhsa_user_sgpr_count 2\n  .amdhsa_user_sgpr_kernarg_segment_ptr 1\n  .amdhsa_system_sgpr_workgroup_id_x 1\n.end_amdhsa_kernel")
    open(fname, "w").write(a.text())
    return a

if __name__ == "__main__":
    kw = dict(dbgt=2, G=1, W0=6, WS_=[(6, 3)])
    gen("g_a.s", NS=16, **kw)
    gen("g_b.s", NS=14, **kw)
    gen("g_c.s", NS=16, wqx=2, dis=("wo",), **kw)
    gen("g_d.s", NS=16, wqx=2, dis=("wo", "apass", "bchain"), **kw)
```

```python
import gen19
kw = dict(dbgt=0, G=1, PMASK=1, YMASK=1, DW=3, WOL=-5, WBL=5, LAY=1, amap=2, QM=1, FIN=8, WST=[1,2,3,4,5,6,7,8], NS=14, W0=3, ntw=True)
gen19.gen("w_a.s", **kw)
gen19.gen("w_x0.s", xl=0, **kw)
```

```python
import sys, math, struct
from asmlib import Asm
NAME = "gated_mix__mha_block_cached__gqa_block_cached__decode_kernel"
HEADER = open("gated_mix__mha_block_cached__gqa_block_cached__decode.s.ref").read().split("; Override launch")[0]

WS_Q = 0x0
WS_EPOCH = 0x8000
WS_CNT = 0x10000
WS_Y = 0x100000
WS_PB = 0x200000
WS_PA = 0x400000
WS_OB = 0x380000
WS_END = 0x800000
YS = 640; PAS = 1152
STAMP_OFF = 200 * 1024 * 1024
L_Q = 0; L_QP = 1536; L_MW = 3584; L_LW = 3712; L_CNT = 3840; L_ACCB = 4096; L_ACCA = 20480; L_LIST = 28672; LDS_BYTES = 29184
C_QARR, C_QRDY, C_QARDY, C_KD, C_VDB, C_VDA, C_LS, C_CLR, C_YB, C_PRG, C_TAG, C_YARR, C_G, C_PC, C_FST = 0, 4, 8, 12, 16, 20, 24, 32, 36, 40, 44, 48, 52, 56, 60
L_YB = L_ACCB
SC = math.log2(math.e) / 16.0
def f32(x): return "0x%08x" % struct.unpack("<I", struct.pack("<f", x))[0]

def gen(fname, W0=4, G=2, BUD=60, RAMP=4, nt=True, round_s=True, spin=400000, ntw=True, dbgt=0, dis=(), NPOLL=3, PSL=6, BTRIG=1, xl=1, prio=None, touch=0, WS_=None, wperm=0, QT=16, CLT=1, YINC=1, WQW=8, SP=0, HP=3, wqx=0, amap=1, NS=14, ATL=4, VAT=8, PSLP=0, PMASK=0, LSL=1, bmap=0, wqm=0, FIN=0, dumat=0, LB=1, PP=1, YP=1, PD=2, YD=2, YMASK=0, CSTR=4352, SPS=1, TH=0, FK=0, DW=4, WOL=None, EXS=2, WBL=None, WST=None, CK=1, BH=1, PBS=1152, OVL=1, WPAT=None, LAY=0, OST='', EST=' sc1', BST=' sc1', BL=1, BK=12, PST=' sc1', QM=0, CP=0, YLOC=1, EP=0, NC=1, nto=None, SW=0, SWN=16):
    a = Asm()
    if not BH: PBS = 2176
    MLO = 1024 if BH else 2048
    X3 = "bitop3:0x96"
    if BL:
        assert BH and CK and not bmap
        BST = ""
    NT = (" " + nt if isinstance(nt, str) else " nt") if nt else ""
    NTW = (" " + ntw if isinstance(ntw, str) else " nt") if ntw else ""
    a.raw(HEADER.rstrip("\n"))
    a.raw("; @launch grid=(256,1,1) block=(768,1,1) lds=%d" % LDS_BYTES)
    a.raw('.amdgcn_target "amdgcn-amd-amdhsa--gfx950"\n.text\n.globl %s\n.p2align 8\n.type %s,@function\n%s:' % (NAME, NAME, NAME))
    SB = 4
    def stamp(idx):
        if not dbgt: return
        a("s_memrealtime s[88:89]\ns_waitcnt lgkmcnt(0)\nv_writelane_b32 v63, s88, %d" % idx)

    def allrows(op, x, t):
        a("v_mov_b32 v%d, v%d" % (t, x))
        a("v_permlane16_swap_b32 v%d, v%d" % (t, x))
        a("%s v%d, v%d, v%d" % (op, x, t, x))
        a("v_mov_b32 v%d, v%d" % (t, x))
        a("v_permlane32_swap_b32 v%d, v%d" % (t, x))
        a("%s v%d, v%d, v%d" % (op, x, t, x))
    def dpp(op, d, s0, s1, ctrl, bank=0xf):
        return "%s_dpp v%d, v%d, v%d %s row_mask:0xf bank_mask:0x%x" % (op, d, s0, s1, ctrl, bank)
    def masks(M, t0, t1):
        a("v_and_b32 v%d, 1, v0\nv_lshlrev_b32 v%d, 4, v%d" % (t0, t0, t0))
        a("v_mov_b32 v%d, 0xffff\nv_lshlrev_b32 v%d, v%d, v%d" % (t1, t0, t0, t1))
        a("v_bfe_u32 v%d, v0, 1, 2" % t1)
        for k in range(4):
            a("v_cmp_eq_u32 vcc, %d, v%d" % (k, t1))
            a("v_cndmask_b32 v%d, 0, v%d, vcc" % (M + k, t0))
    def ldswait(lab, vz, vt, off, cmp, val, slp=1, sreg=76, cnt=83):
        a("s_mov_b32 s%d, %d" % (cnt, spin * 8))
        a("L_%s_w:" % lab)
        a("ds_read_b32 v%d, v%d offset:%d\ns_waitcnt lgkmcnt(0)\nv_readfirstlane_b32 s%d, v%d" % (vt, vz, off, sreg, vt))
        a("s_sub_u32 s%d, s%d, 1\ns_cbranch_scc1 L_%s_g" % (cnt, cnt, lab))
        a("s_cmp_%s_u32 s%d, %d\ns_cbranch_scc1 L_%s_g\ns_sleep %d\ns_branch L_%s_w" % (cmp, sreg, val, lab, slp, lab))
        a("L_%s_g:" % lab)

    a("s_cmp_ge_u32 s2, 256\ns_cbranch_scc1 L_end")
    a("s_load_dwordx16 s[4:19], s[0:1], 0")
    if bmap == 1: a("s_mov_b32 s92, s2")
    if xl == 2: a("s_add_u32 s3, s2, 2\ns_and_b32 s3, s3, 7\ns_and_b32 s2, s2, 0xf8\ns_or_b32 s2, s2, s3")
    if xl == 3: a("s_lshr_b32 s3, s2, 3\ns_add_u32 s3, s3, s2\ns_and_b32 s3, s3, 7\ns_and_b32 s2, s2, 0xf8\ns_or_b32 s2, s2, s3")
    if xl == 1: a("s_and_b32 s3, s2, 7\ns_lshr_b32 s2, s2, 3\ns_lshl_b32 s3, s3, 5\ns_add_u32 s2, s2, s3")
    a("s_load_dwordx8 s[20:27], s[0:1], 64")
    a("s_load_dwordx4 s[28:31], s[0:1], 96")
    if dbgt: a("s_memrealtime s[90:91]")
    if amap:
        a("s_bfe_u32 s93, s2, 0x40001\ns_lshl_b32 s93, s93, 4\ns_lshr_b32 s3, s2, 5\ns_lshl1_add_u32 s93, s3, s93\ns_and_b32 s3, s2, 1\ns_add_u32 s93, s93, s3")
        if amap == 2:
            a("s_lshr_b32 s3, s2, 1\ns_and_b32 s3, s3, 16\ns_xor_b32 s93, s93, s3\ns_lshl_b32 s3, s2, 1\ns_and_b32 s3, s3, 128\ns_xor_b32 s93, s93, s3")
    else:
        a("s_mov_b32 s93, s2")
    if bmap == 0: a("s_mov_b32 s92, s2")
    if bmap == 2: a("s_mov_b32 s92, s93")
    assert not (bmap and wqx)
    a("v_lshrrev_b32 v1, 6, v0\nv_and_b32 v0, 63, v0\nv_readfirstlane_b32 s3, v1")
    a("s_nop 0\ns_cmp_lt_u32 s3, 4\ns_cbranch_scc1 L_helper")

    OFF = 1; T = [2, 3, 4, 5]; MC = 6; LS = 7; M = 8; E = 12; X = 16; S = 32; RING = 40
    QA = 104; TB = [112, 128]; ONES = 144; ACL = 148; TK = [152, 154]; AD = 156; AV = 158; TV = 159; SD = 160; WA = 161; RA = 162; R8 = 163
    SO = 52
    NP = 16 + 2 * NS
    NL = 2 * NP
    NT_ = (16 - NS) * 16
    PO = NS // 2 * 32768 + (NS & 1) * 2048
    assert NS % 2 == 0 or (NS == 15 and LAY)
    a("s_sub_u32 s3, s3, 4")
    if SP: a("s_setprio %d" % SP)
    a("v_lshrrev_b32 v2, 4, v0\nv_and_b32 v3, 15, v0\nv_lshlrev_b32 v2, 9, v2\nv_lshl_or_b32 v%d, v3, 4, v2" % OFF)
    a("s_add_u32 s80, s3, s93\ns_and_b32 s80, s80, 7\ns_lshl_b32 s79, s80, 12")
    a("s_lshl_b32 s77, s92, 17\ns_add_u32 s77, s77, s79")
    for j in range(1, 8): a("s_mov_b32 s%d, 0x%x" % (SO + j, j * 32768))
    a("s_mov_b32 s34, 0x19000\ns_mov_b32 s35, 0x20000\ns_mov_b32 s38, 0x19000\ns_mov_b32 s39, 0x20000")
    a("s_waitcnt lgkmcnt(0)")
    if not LB: a("s_barrier")
    if dbgt == 3: a("s_memrealtime s[84:85]")
    a("s_add_u32 s32, s16, s77\ns_addc_u32 s33, s17, 0")
    a("s_add_u32 s36, s18, s77\ns_addc_u32 s37, s19, 0")
    pairs = [(32, j) for j in range(8)] + [(36, j) for j in range(8)] + [(40, j) for j in range(NS)] + [(44, j) for j in range(NS)]
    def slot(n): return RING + (n % 16 if n < 24 else n % 8) * 8
    def prev_in_slot(n): return n - 16 if n < 24 else n - 8
    def atomic(k):
        a("s_mov_b64 exec, 1")
        a("global_atomic_add_x2 v[%d:%d], v%d, v[%d:%d], s[30:31] sc0 sc1" % (TK[k], TK[k] + 1, AV, AD, AD + 1))
        a("s_mov_b64 exec, -1")
    VP = 164; DU = 165; DV = 166
    nreq = [0]
    def request():
        nreq[0] += 1; u = nreq[0]
        a("s_cbranch_scc0 L_rql%d" % u)
        a("global_atomic_add_x2 v[%d:%d], v%d, v[%d:%d], s[30:31] sc0 sc1" % (TK[0], TK[0] + 1, AV, AD, AD + 1))
        a("s_branch L_rqe%d" % u)
        a("L_rql%d:" % u)
        a("buffer_load_dword v%d, v%d, s[60:63], 0 offen" % (DU, DV))
        a("L_rqe%d:" % u)
        a("s_mov_b64 exec, -1")
    def claim(off):
        a("s_mov_b64 exec, 1\nds_add_rtn_u32 v%d, v%d, v%d offset:%d\ns_mov_b64 exec, -1" % (VP, AD + 1, AD, L_CNT + off))
    st = {"issued": 0, "landed": 0, "at": None}
    def issue_load(i):
        n = i >> 1; c = i & 1
        srd, j = pairs[n]; r = slot(n) + 4 * c
        if dbgt == 2 and c == 0 and n % 6 == 0 and n > 0: a("s_memrealtime s[%d:%d]" % (84 + 2 * (n // 6 - 1) + (4 if n // 6 > 3 else 0), 85 + 2 * (n // 6 - 1) + (4 if n // 6 > 3 else 0)))
        if i == NL - ATL - 1 and NT_:
            claim(C_FST)
            a("v_mov_b32 v%d, 0x%x" % (DV, 0x400000))
        if i == NL - ATL and NT_:
            a("s_waitcnt lgkmcnt(0)\nv_readfirstlane_b32 s76, v%d\ns_mov_b64 exec, 1\ns_cmp_eq_u32 s76, %d\ns_cselect_b32 s80, %d, 0" % (VP, FK, L_LIST))
            request(); st["at"] = i
        so = "0" if j < 2 else "s%d" % (SO + (j >> 1))
        a("buffer_load_dwordx4 v[%d:%d], v%d, s[%d:%d], %s offen offset:%d%s" % (r, r + 3, OFF, srd, srd + 3, so, (j & 1) * 2048 + c * 256, NT))
    def Wn(i):
        w = W0
        for (frm, ww) in (WS_ or []):
            if i >= frm: w = ww
        if WPAT and 3 <= i < NL - 6: w = WPAT[i % len(WPAT)]
        if st.get("alt") and i < 3 + SWN: w = SW
        return w
    extra = {"n": 0}
    def wait_landed(k):
        if k > st["landed"]:
            cnt = st["issued"] - k + extra["n"]
            if st["at"] is not None and k <= st["at"]: cnt += 1
            a("s_waitcnt vmcnt(%d)" % cnt); st["landed"] = k
    def issue_event():
        i = st["issued"]
        wait_landed(i + G - Wn(i))
        for t in range(G): issue_load(i + t)
        st["issued"] = i + G
    while st["issued"] + G <= Wn(0): issue_event()
    if dbgt == 3: a("s_memrealtime s[86:87]")
    if LB: a("s_barrier")
    if dbgt == 3: a("s_memrealtime s[88:89]\ns_waitcnt vmcnt(%d)\ns_memrealtime s[94:95]\ns_memrealtime s[96:97]\ns_memrealtime s[98:99]" % (W0 - 1))
    a("s_lshr_b32 s81, s93, 4\ns_lshl_b32 s78, s81, 22\ns_and_b32 s76, s93, 15\ns_mul_i32 s76, s76, %d\ns_add_u32 s76, s76, s78\ns_add_u32 s76, s76, s79\ns_add_u32 s78, s78, %d" % ((262144, PO) if LAY else (NS * 16384, NS * 262144)))
    nrec = ((NS + 1) // 2 - 1) * 32768 + 4096
    a("s_add_u32 s40, s6, s76\ns_addc_u32 s41, s7, 0\ns_mov_b32 s42, 0x%x\ns_mov_b32 s43, 0x20000" % nrec)
    a("s_add_u32 s44, s8, s76\ns_addc_u32 s45, s9, 0\ns_mov_b32 s46, 0x%x\ns_mov_b32 s47, 0x20000" % nrec)
    prec = 0x400000 - PO if LAY else NT_ // 2 * 32768
    a("s_add_u32 s60, s6, s78\ns_addc_u32 s61, s7, 0\ns_mov_b32 s62, 0x%x\ns_mov_b32 s63, 0x20000" % prec)
    a("s_add_u32 s64, s8, s78\ns_addc_u32 s65, s9, 0\ns_mov_b32 s66, 0x%x\ns_mov_b32 s67, 0x20000" % prec)
    a("s_mul_i32 s81, s81, %d\ns_add_u32 s81, s81, %d" % (CSTR, WS_CNT))
    a("s_mov_b32 s48, s30\ns_mov_b32 s49, s31\ns_mov_b32 s50, 0x%x\ns_mov_b32 s51, 0x20000" % WS_END)
    a("s_mul_i32 s75, s93, %d\ns_add_u32 s75, s75, %d" % (PAS, WS_PA))
    masks(M, T[0], T[1])
    a("s_mov_b32 s82, %s" % f32(SC))
    a("v_mov_b32 v%d, 0" % T[0])
    a("v_mov_b32 v%d, 1" % T[1])
    def pre():
        while st["issued"] < 32:
            if QT and st["issued"] <= QT < st["issued"] + G:
                a("s_mov_b64 exec, 1\nds_add_u32 v%d, v%d offset:%d\ns_mov_b64 exec, -1" % (T[0], T[1], L_CNT + C_PRG))
            issue_event()
    if SW:
        a("s_and_b32 s76, s2, 0x13\ns_cmp_eq_u32 s76, 3\ns_cbranch_scc1 L_swa")
        sv = dict(st)
        pre(); fin = dict(st)
        a("s_branch L_swj")
        st.clear(); st.update(sv); st["alt"] = 1
        a("L_swa:")
        pre(); del st["alt"]
        assert st == fin
        a("L_swj:")
    else:
        pre()
    ldswait("sq", T[0], T[1], L_CNT + C_QRDY, "lg", 0)

    chunks = []
    class Rec:
        def __init__(self): self.l = []
        def __call__(self, t): self.l += [x for x in t.split("\n") if x.strip()]
    def phase(ph, n0, ng):
        nonlocal a
        real = a
        def begin():
            nonlocal a
            a = Rec(); return a
        def done(need=None, pre=None):
            chunks.append((need, pre or [], a.l))
        nh = 2 if ph == 0 else 1
        Q = X if ph == 0 else QA
        sc = [S + j for j in range(8)] if ph == 0 else ([X + 8 + j for j in range(8)] + [S + j for j in range(8)])[:ng]
        begin()
        a("v_and_b32 v%d, 15, v0\nv_lshlrev_b32 v%d, 4, v%d" % (T[0], T[0], T[0]))
        for h in range(nh):
            for c in range(2):
                a("ds_read_b128 v[%d:%d], v%d offset:%d" % (Q + h * 8 + c * 4, Q + h * 8 + c * 4 + 3, T[0], L_Q + ph * 1024 + h * 512 + c * 256))
        if ph == 1:
            a("v_mov_b32 v%d, 0\nds_read_b32 v%d, v%d offset:%d" % (AD + 1, T[1], AD + 1, L_CNT + C_TAG))
            a("v_mov_b32 v%d, 1\nv_mov_b32 v%d, s81" % (AD, AV))
            for k in range(4): a("v_mov_b32 v%d, 0x3f803f80" % (ONES + k))
            a("v_and_b32 v%d, 15, v0\nv_and_b32 v%d, 16, v0\nv_lshlrev_b32 v%d, 3, v0\nv_lshl_or_b32 v%d, v%d, 5, v%d" % (WA, RA, R8, WA, WA, RA))
            a("s_lshl_b32 s76, s3, 10\nv_add_u32 v%d, s76, v%d\nv_lshlrev_b32 v%d, 4, v0" % (WA, WA, RA))
        a("s_waitcnt lgkmcnt(0)")
        if ph == 1: a("v_readfirstlane_b32 s74, v%d\ns_mov_b32 s83, %d" % (T[1], spin))
        done()
        pend = []
        for j in range(ng):
            begin()
            n = n0 + j; r = slot(n)
            ta, tb = (T[0], T[1]) if j % 2 == 0 else (T[2], T[3])
            dots = []
            for k in range(8):
                dots.append("v_dot2_f32_bf16 v%d, v%d, v%d, %s" % (ta, r + k, Q + k, "0" if k == 0 else "v%d" % ta))
                if nh == 2:
                    dots.append("v_dot2_f32_bf16 v%d, v%d, v%d, %s" % (tb, r + k, Q + 8 + k, "0" if k == 0 else "v%d" % tb))
            step = 3 if nh == 2 else 2
            for i, dline in enumerate(dots):
                a(dline)
                if i % step == step - 1 and pend: a(pend.pop(0))
            while pend: a(pend.pop(0))
            done(n)
            s_ = sc[j]
            pend = [dpp("v_add_f32", s_, ta, ta, "row_ror:8")]
            if nh == 2: pend.append(dpp("v_add_f32", s_, tb, tb, "row_ror:8", 0xc))
            pend += [dpp("v_add_f32", s_, s_, s_, "quad_perm:[1,0,3,2]"), dpp("v_add_f32", s_, s_, s_, "quad_perm:[2,3,0,1]"), dpp("v_add_f32", s_, s_, s_, "row_half_mirror")]
        begin()
        while pend: a(pend.pop(0))
        if round_s:
            for s_ in sc: a("v_cvt_pk_bf16_f32 v%d, v%d, v%d" % (s_, s_, s_))
            for s_ in sc: a("v_and_b32 v%d, 0xffff0000, v%d" % (s_, s_))
        done(); begin()
        a("v_max3_f32 v%d, v%d, v%d, v%d" % (MC, sc[0], sc[1], sc[2]))
        i = 3
        while i + 1 < ng:
            a("v_max3_f32 v%d, v%d, v%d, v%d" % (MC, MC, sc[i], sc[i + 1])); i += 2
        if i < ng: a("v_max_f32 v%d, v%d, v%d" % (MC, MC, sc[i]))
        allrows("v_max_f32", MC, T[0])
        a("v_mul_f32 v%d, s82, v%d" % (MC, MC))
        a("v_and_b32 v%d, 8, v0\nv_lshlrev_b32 v%d, 2, v%d\ns_lshl_b32 s76, s3, 2\nv_add_u32 v%d, s76, v%d" % (T[3], T[3], T[3], T[3], T[3]))
        a("v_mov_b32 v%d, 0\nv_mov_b32 v%d, 1" % (T[1], T[2]))
        if ph == 1:
            a("s_mov_b64 exec, 1")
            a("ds_add_u32 v%d, v%d offset:%d" % (T[1], T[2], L_CNT + C_KD))
            a("s_mov_b64 exec, -1")
        done(); begin()
        for s_ in sc: a("v_fma_f32 v%d, v%d, s82, -v%d" % (s_, s_, MC))
        for s_ in sc: a("v_exp_f32 v%d, v%d" % (s_, s_))
        done(); begin()
        L_ = LS if ph == 0 else ACL
        a("v_add_f32 v%d, v%d, v%d" % (L_, sc[0], sc[1]))
        for s_ in sc[2:]: a("v_add_f32 v%d, v%d, v%d" % (L_, L_, s_))
        for s_ in sc: a("v_cvt_pk_bf16_f32 v%d, v%d, v%d" % (s_, s_, s_))
        allrows("v_add_f32", L_, T[0])
        if ph == 0:
            a("s_mov_b64 exec, 0x101")
            a("ds_write_b32 v%d, v%d offset:%d" % (T[3], MC, L_MW))
            a("ds_write_b32 v%d, v%d offset:%d" % (T[3], LS, L_LW))
            a("s_mov_b64 exec, -1")
            a("v_and_b32 v%d, 15, v0\nv_and_b32 v%d, 16, v0\nv_lshl_or_b32 v%d, v%d, 5, v%d" % (T[0], T[3], T[0], T[0], T[3]))
            a("v_lshrrev_b32 v%d, 5, v0\nv_lshl_or_b32 v%d, v%d, 13, v%d" % (T[3], T[0], T[3], T[0]))
            a("s_lshl_b32 s76, s3, 10\nv_add_u32 v%d, s76, v%d" % (T[0], T[0]))
        else:
            for k in range(1, 4): a("v_mov_b32 v%d, 0" % (ACL + k))
        done()
        for j in range(ng):
            n = n0 + ng + j; r = slot(n)
            begin()
            pre = ["v_and_b32 v%d, v%d, v%d" % (E + k, sc[j], M + k) for k in range(4)]
            a("v_mfma_f32_16x16x32_bf16 v[%d:%d], v[%d:%d], v[%d:%d], %s" % (X, X + 3, E, E + 3, r, r + 3, "0" if j == 0 else "v[%d:%d]" % (X, X + 3)))
            a("v_mfma_f32_16x16x32_bf16 v[%d:%d], v[%d:%d], v[%d:%d], %s" % (X + 4, X + 7, E, E + 3, r + 4, r + 7, "0" if j == 0 else "v[%d:%d]" % (X + 4, X + 7)))
            if ph == 0 and j == ng - 1:
                for c in range(2):
                    a("ds_write_b128 v%d, v[%d:%d] offset:%d" % (T[0], X + c * 4, X + c * 4 + 3, L_ACCB + c * 512))
                a("s_mov_b64 exec, 1")
                a("ds_add_u32 v%d, v%d offset:%d" % (T[1], T[2], L_CNT + C_VDB))
                a("s_mov_b64 exec, -1")
            done(n, pre)
        a = real

    phase(0, 0, 8)
    phase(1, 16, NS)

    def acquire(lab, mid=None):
        a("s_mov_b64 exec, 1")
        a("v_lshrrev_b32 v%d, 3, v%d\nv_lshlrev_b32 v%d, 2, v%d" % (T[1], VP, T[1], T[1]))
        a("s_cmp_eq_u32 s80, 0\ns_cbranch_scc1 L_rd%s" % lab)
        a("L_tk%s:" % lab)
        a("v_readfirstlane_b32 s69, v%d\nv_add_u32 v%d, 1, v%d\nv_mov_b32 v%d, s80" % (TK[0] + 1, TK[0], TK[0], T[2]))
        a("s_cmp_lg_u32 s69, s74\ns_cbranch_scc1 L_tr%s" % lab)
        a("L_tg%s:" % lab)
        a("ds_write_b32 v%d, v%d" % (T[2], TK[0]))
        a("L_rd%s:" % lab)
        a("ds_read_b32 v%d, v%d offset:%d" % (T[2], T[1], L_LIST))
        a("v_readfirstlane_b32 s77, v%d\nv_readfirstlane_b32 s80, v%d" % (VP, T[1]))
        if mid:
            a("s_mov_b64 exec, -1"); mid(); a("s_mov_b64 exec, 1")
        a("s_and_b32 s77, s77, 7\ns_add_u32 s80, s80, %d" % (L_LIST + 4))
        a("L_sw%s:" % lab)
        a("s_waitcnt lgkmcnt(0)\nv_readfirstlane_b32 s68, v%d" % T[2])
        a("s_nop 0\ns_sub_u32 s68, s68, 1\ns_cbranch_scc1 L_sp%s" % lab)
        a("L_sg%s:" % lab)
        if WOL is not None and WOL >= 0: a("ds_max_u32 v%d, v%d offset:%d" % (AD + 1, T[2], L_CNT + C_LS))
        if NS == 15:
            a("s_min_u32 s76, s68, %d\ns_lshl_b32 s76, s76, 6\ns_add_u32 s76, s76, s77\ns_lshl_b32 s76, s76, 12" % NT_)
        elif LAY and NS == 14:
            a("s_min_u32 s76, s68, %d\ns_lshr_b32 s69, s76, 1\ns_lshl_b32 s69, s69, 6\ns_add_u32 s69, s69, s77\ns_and_b32 s76, s76, 1\ns_lshl1_add_u32 s76, s69, s76\ns_lshl_b32 s76, s76, 11" % NT_)
        elif LAY:
            a("s_bfe_u32 s69, s68, 0x40001\ns_lshr_b32 s76, s68, 5\ns_lshl3_add_u32 s69, s69, s76\ns_lshl3_add_u32 s69, s69, s77\ns_and_b32 s76, s68, 1\ns_lshl1_add_u32 s76, s69, s76\ns_lshl_b32 s76, s76, 11")
            a("s_cmp_ge_u32 s68, %d\ns_cselect_b32 s76, 0x400000, s76" % NT_)
        else:
            a("s_min_u32 s76, s68, %d\ns_lshr_b32 s69, s76, 1\ns_lshl3_add_u32 s69, s69, s77\ns_and_b32 s76, s76, 1\ns_lshl1_add_u32 s76, s69, s76\ns_lshl_b32 s76, s76, 11" % NT_)
        a("s_cmp_ge_u32 s68, %d\ns_cselect_b32 s69, 9, s77\ns_cmp_eq_u32 s69, %d\ns_cselect_b32 s80, s80, 0" % (NT_, TH))
        request()
        a("v_add_u32 v%d, s76, v%d" % (TV, OFF))
    retries = []
    def tload(b, kv, tv=TV, which=(0, 1)):
        r = TB[b] + 8 * kv; srd = 60 + 4 * kv
        if 0 in which: a("buffer_load_dwordx4 v[%d:%d], v%d, s[%d:%d], 0 offen%s" % (r, r + 3, tv, srd, srd + 3, NT))
        if 1 in which: a("buffer_load_dwordx4 v[%d:%d], v%d, s[%d:%d], 0 offen offset:256%s" % (r + 4, r + 7, tv, srd, srd + 3, NT))

    assert DW == 3
    TF = max(NT_ - FIN, 0)
    def early(b, lab):
        if not FIN: return
        a("s_cmp_lt_u32 s68, %d\ns_cbranch_scc1 L_fa%s" % (TF, lab))
        tload(b, 0, which=(1,)); tload(b, 1)
        a("L_fa%s:" % lab)
    consumed = 0; budget = 0; dyn_stage = 0
    for (need, pre, lines) in chunks:
        def can_issue(): return st["issued"] < NL and prev_in_slot((st["issued"] + G - 1) // 2) < consumed
        for l in pre: a(l)
        while can_issue() and ((need is not None and 2 * need + 2 > st["landed"] and st["issued"] + G - Wn(st["issued"]) <= 2 * need + 2) or (budget > 0 and budget + len(lines) > BUD) or st["issued"] - 32 < RAMP):
            issue_event(); budget = 0
        if need == NP - 2 and NT_: claim(C_PC)
        if need == NP - 1 and NT_:
            assert st["landed"] == NL - 2
            if FIN: a("s_waitcnt vmcnt(5)\ns_cmp_ge_u32 s68, %d\ns_cbranch_scc1 L_fbp" % TF)
            wait_landed(2 * need + 1); tload(0, 0, which=(1,)); extra["n"] += 1
        if need is not None: wait_landed(2 * need + 2)
        if need == NP - 2 and dbgt == 2: a("s_memrealtime s[70:71]")
        if need == NP - 2 and NT_:
            assert st["issued"] == NL and st["landed"] > st["at"]
            a("s_waitcnt lgkmcnt(0)")
            acquire("p"); retries.append("p")
            tload(0, 0, which=(0,)); extra["n"] += 2
            early(0, "p")
        if need == NP - 1 and NT_:
            tload(0, 1, which=(0,))
            if FIN: a("L_fbp:")
        for l in lines: a(l)
        budget += len(lines) + len(pre)
        if need is not None: consumed = need + 1
    assert st["issued"] == NL
    if dbgt == 2: a("s_mov_b32 s72, 0")
    if NT_:
        a("s_cmp_ge_u32 s68, %d\ns_cbranch_scc1 L_dend" % NT_)
        if FIN: a("s_cmp_ge_u32 s68, %d\ns_cbranch_scc1 L_dloop" % TF)
        a("s_waitcnt vmcnt(2)"); tload(0, 1, which=(1,))
        a.flush()
        a("L_dloop:")
    for b in range(2 if NT_ else 0):
        r = TB[b]; lab = "d%d" % b
        if dbgt == 2: a("s_add_u32 s72, s72, 1")
        claim(C_PC)
        a("s_waitcnt vmcnt(2) lgkmcnt(0)")
        def dots():
            for k in range(8):
                a("v_dot2_f32_bf16 v%d, v%d, v%d, %s" % (SD, r + k, QA + k, "0" if k == 0 else "v%d" % SD))
        acquire(lab, dots if OVL else None); retries.append(lab)
        tload(1 - b, 0, which=(0,))
        early(1 - b, lab)
        if not OVL: dots()
        for ctl in ("row_ror:8", "quad_perm:[1,0,3,2]", "quad_perm:[2,3,0,1]", "row_half_mirror"):
            a(dpp("v_add_f32", SD, SD, SD, ctl))
        if round_s: a("v_cvt_pk_bf16_f32 v%d, v%d, v%d\nv_and_b32 v%d, 0xffff0000, v%d" % (SD, SD, SD, SD, SD))
        a("v_fma_f32 v%d, v%d, s82, -v%d" % (T[0], SD, MC))
        a("v_cmp_lt_f32 vcc, 0, v%d\ns_cbranch_vccnz L_rs%d" % (T[0], b))
        a("L_rb%d:" % b)
        a("v_exp_f32 v%d, v%d\nv_cvt_pk_bf16_f32 v%d, v%d, v%d" % (T[0], T[0], T[0], T[0], T[0]))
        for k in range(4): a("v_and_b32 v%d, v%d, v%d" % (E + k, T[0], M + k))
        a("v_mfma_f32_16x16x32_bf16 v[%d:%d], v[%d:%d], v[%d:%d], v[%d:%d]" % (ACL, ACL + 3, E, E + 3, ONES, ONES + 3, ACL, ACL + 3))
        if FIN: a("s_waitcnt vmcnt(5)\ns_cmp_ge_u32 s68, %d\ns_cbranch_scc1 L_fb%s" % (TF, lab))
        a("s_waitcnt vmcnt(3)"); tload(1 - b, 0, which=(1,))
        a("s_waitcnt vmcnt(3)"); tload(1 - b, 1, which=(0,))
        if FIN: a("L_fb%s:" % lab)
        a("v_mfma_f32_16x16x32_bf16 v[%d:%d], v[%d:%d], v[%d:%d], v[%d:%d]" % (X, X + 3, E, E + 3, r + 8, r + 11, X, X + 3))
        a("v_mfma_f32_16x16x32_bf16 v[%d:%d], v[%d:%d], v[%d:%d], v[%d:%d]" % (X + 4, X + 7, E, E + 3, r + 12, r + 15, X + 4, X + 7))
        a("s_cmp_ge_u32 s68, %d\ns_cbranch_scc1 L_dend" % NT_)
        if FIN: a("s_cmp_ge_u32 s68, %d\ns_cbranch_scc1 %s" % (TF, "L_dl1" if b == 0 else "L_dloop"))
        a("s_waitcnt vmcnt(2)"); tload(1 - b, 1, which=(1,))
        if FIN and b == 0: a("L_dl1:")
    if NT_:
        a("s_branch L_dloop")
        a("L_dend:")
        a("s_nop 2")
    a("s_lshl_b32 s76, s3, 3\nv_mov_b32 v%d, s76\nv_mov_b32 v%d, v%d" % (T[0], LS, ACL))
    a("s_mov_b32 s53, 0x03020105\ns_mov_b32 s54, 0x03020106\ns_mov_b32 s55, 0x03020107")
    if CK: a("s_mov_b32 s56, 0xaaaaaaaa\ns_mov_b32 s57, 0xaaaaaaaa")
    a("s_mov_b32 exec_hi, 0")
    for c in range(2):
        a("ds_write_b128 v%d, v[%d:%d] offset:%d" % (WA, X + c * 4, X + c * 4 + 3, L_ACCA + c * 512))
    a("s_mov_b64 exec, 1")
    a("ds_write_b64 v%d, v[%d:%d] offset:%d" % (T[0], MC, LS, L_MW + 64))
    a("ds_add_rtn_u32 v%d, v%d, v%d offset:%d" % (T[3], AD + 1, AD, L_CNT + C_VDA))
    a("s_mov_b64 exec, -1")
    G0 = RING; ML = RING + 32
    a("L_mrg:")
    for k in range(4):
        a("ds_read_b128 v[%d:%d], v%d offset:%d" % (ML + 4 * k, ML + 4 * k + 3, AD + 1, L_MW + 64 + 16 * k))
    if not CK: a("ds_read_b32 v%d, v%d offset:%d" % (T[2], AD + 1, L_CNT + C_CLR))
    for w in range(8):
        a("ds_read_b128 v[%d:%d], v%d offset:%d" % (G0 + 4 * w, G0 + 4 * w + 3, RA, L_ACCA + w * 1024))
    a("s_waitcnt lgkmcnt(8)")
    mw = [ML + 2 * w for w in range(8)]
    a("v_max3_f32 v%d, v%d, v%d, v%d\nv_max3_f32 v%d, v%d, v%d, v%d" % (MC, mw[0], mw[1], mw[2], T[0], mw[3], mw[4], mw[5]))
    a("v_readfirstlane_b32 s79, v%d" % T[3])
    if not CK: a("v_readfirstlane_b32 s78, v%d" % T[2])
    a("v_max3_f32 v%d, v%d, v%d, v%d\nv_max_f32 v%d, v%d, v%d" % (MC, MC, mw[6], mw[7], MC, MC, T[0]))
    a("s_cmp_lg_u32 s79, 7\ns_cbranch_scc1 %s" % ("L_sst" if dbgt >= 2 else "L_end"))
    for w in range(8): a("v_sub_f32 v%d, v%d, v%d" % (mw[w], mw[w], MC))
    for w in range(8): a("v_exp_f32 v%d, v%d" % (mw[w], mw[w]))
    if not CK: a("s_cmp_lg_u32 s78, 2\ns_cbranch_scc1 L_mwait")
    a("v_mul_f32 v%d, v%d, v%d\nv_mul_f32 v%d, v%d, v%d" % (LS, mw[0], mw[0] + 1, T[0], mw[1], mw[1] + 1))
    for w in (2, 4, 6):
        a("v_fmac_f32 v%d, v%d, v%d\nv_fmac_f32 v%d, v%d, v%d" % (LS, mw[w], mw[w] + 1, T[0], mw[w + 1], mw[w + 1] + 1))
    a("v_add_f32 v%d, v%d, v%d" % (LS, LS, T[0]))
    a("v_rcp_f32 v%d, v%d\nv_log_f32 v%d, v%d" % (T[0], LS, LS, LS))
    if CK: a("v_add_f32 v%d, v%d, v%d\nv_xor_b32 v%d, s74, v%d" % (LS, MC, LS, MC, LS))
    a("s_waitcnt lgkmcnt(0)")
    for k in (0, 2):
        a("v_pk_mul_f32 v[%d:%d], v[%d:%d], v[%d:%d] op_sel_hi:[1,0]" % (G0 + k, G0 + k + 1, G0 + k, G0 + k + 1, mw[0], mw[0] + 1))
        a("v_pk_mul_f32 v[%d:%d], v[%d:%d], v[%d:%d] op_sel_hi:[1,0]" % (G0 + 16 + k, G0 + 17 + k, G0 + 16 + k, G0 + 17 + k, mw[4], mw[4] + 1))
    for w in (1, 2, 3):
        for base in (0, 4):
            for k in (0, 2):
                d = G0 + 4 * base + k; s0 = G0 + 4 * (base + w) + k
                a("v_pk_fma_f32 v[%d:%d], v[%d:%d], v[%d:%d], v[%d:%d] op_sel_hi:[1,0,1]" % (d, d + 1, s0, s0 + 1, mw[base + w], mw[base + w] + 1, d, d + 1))
    for k in (2, 0):
        a("v_pk_add_f32 v[%d:%d], v[%d:%d], v[%d:%d]" % (G0 + k, G0 + k + 1, G0 + k, G0 + k + 1, G0 + 16 + k, G0 + 17 + k))
    for k in (2, 0):
        a("v_pk_mul_f32 v[%d:%d], v[%d:%d], v[%d:%d] op_sel_hi:[1,0]" % (G0 + k, G0 + k + 1, G0 + k, G0 + k + 1, T[0], T[0] + 1))
    for k in (2, 0, 1):
        a("v_perm_b32 v%d, v%d, v%d, s%d" % (G0 + k, G0 + 3, G0 + k, 53 + k))
    if CK:
        a("v_bitop3_b32 v%d, v%d, v%d, v%d %s" % (T[2], G0, G0 + 1, G0 + 2, X3))
        a("v_xor_b32 v%d, v%d, v%d" % (MC, MC, T[2]))
        a(dpp("v_xor_b32", MC, T[2], MC, "quad_perm:[1,0,3,2]"))
        a("v_cndmask_b32 v%d, v%d, v%d, s[56:57]" % (G0 + 3, LS, MC))
    else:
        a("v_add_f32 v%d, v%d, v%d" % (G0 + 3, MC, LS))
    if PST == "half": a("s_mov_b32 exec_hi, 0")
    CPS = 256 * PAS + 1280
    for c in range(NC):
        a("buffer_store_dwordx4 v[%d:%d], v%d, s[48:51], s75 offen%s" % (G0, G0 + 3, RA, PST))
        if c < NC - 1: a("s_add_u32 s75, s75, %d" % CPS)
    if max(WST + [VAT]) > 8: a("s_mov_b64 exec, 1\nds_add_u32 v%d, v%d offset:%d\ns_waitcnt lgkmcnt(0)" % (AD + 1, AD, L_CNT + C_VDA))
    if dbgt >= 2:
        a("L_sst:")
        a("s_mov_b64 exec, -1\ns_memrealtime s[100:101]\ns_waitcnt lgkmcnt(0)\nv_mov_b32 v100, 0\nv_mov_b32 v101, 0")
        for i, r in enumerate([90, 84, 86, 88, 94, 96, 98, 70, 83, 100, 72]):
            a("v_writelane_b32 v100, s%d, %d" % (r, i))
        a("s_lshl3_add_u32 s76, s2, s3\ns_add_u32 s76, s76, 256\ns_lshl_b32 s76, s76, 7\ns_add_u32 s76, s76, %d\ns_add_u32 s52, s76, s30\ns_addc_u32 s53, s31, 0\ns_mov_b32 s54, 128\ns_mov_b32 s55, 0x20000" % STAMP_OFF)
        a("v_lshlrev_b32 v102, 3, v0\nbuffer_store_dwordx2 v[100:101], v102, s[52:55], 0 offen")
    a("s_endpgm")
    a.flush()
    if not CK:
        a("L_mwait:")
        a("s_waitcnt lgkmcnt(0)\ns_sleep 4\ns_sub_u32 s83, s83, 1\ns_cbranch_scc0 L_mrg\ns_endpgm")
    for b in range(2 if NT_ else 0):
        a.flush()
        a("L_rs%d:" % b)
        a("v_max_f32 v%d, 0, v%d" % (T[1], T[0]))
        allrows("v_max_f32", T[1], T[2])
        a("v_add_f32 v%d, v%d, v%d\nv_sub_f32 v%d, v%d, v%d" % (MC, MC, T[1], T[0], T[0], T[1]))
        a("v_sub_f32 v%d, 0, v%d\nv_exp_f32 v%d, v%d" % (T[1], T[1], T[1], T[1]))
        for k in range(8): a("v_mul_f32 v%d, v%d, v%d" % (X + k, X + k, T[1]))
        a("v_mul_f32 v%d, v%d, v%d" % (ACL, ACL, T[1]))
        a("s_branch L_rb%d" % b)
    for lab in retries:
        a.flush()
        a("L_tr%s:" % lab)
        a("v_mov_b32 v%d, -1\ns_sub_u32 s83, s83, 1\ns_cbranch_scc1 L_tg%s" % (TK[0], lab))
        a("s_sleep 8")
        a("global_atomic_add_x2 v[%d:%d], v%d, v[%d:%d], s[30:31] sc0 sc1" % (TK[0], TK[0] + 1, AV, AD, AD + 1))
        a("s_waitcnt vmcnt(0)\ns_branch L_tk%s" % lab)
        a("L_sp%s:" % lab)
        a("s_sub_u32 s83, s83, 1\ns_cbranch_scc1 L_sg%s" % lab)
        a("s_sleep %d\nds_read_b32 v%d, v%d offset:%d\ns_branch L_sw%s" % (SPS, T[2], T[1], L_LIST, lab))

    a.flush()
    a("L_helper:")
    a("s_setprio %d" % HP)
    W = 104
    W2 = 64
    XV = 16; AC = 20
    a("v_mov_b32 v4, 0\nv_mov_b32 v5, 0\nv_mov_b32 v6, 0\nv_mov_b32 v7, 0")
    a("v_lshlrev_b32 v1, 4, v0")
    a("v_and_b32 v3, 48, v1\nds_write_b128 v3, v[4:7] offset:%d" % L_CNT)
    a("v_lshlrev_b32 v10, 3, v0\nds_write_b64 v10, v[4:5] offset:%d" % L_LIST)
    if wqm:
        XV = 16; AC = 24; PT = 32
        a("v_lshrrev_b32 v8, 3, v0\nv_mul_u32_u24 v8, 14, v8\ns_mul_i32 s76, s3, 112\nv_add_u32 v8, s76, v8")
        a("v_lshlrev_b32 v9, 1, v8\nv_and_b32 v11, 0x70, v1\nv_lshl_or_b32 v8, v8, 13, v11")
        if wqm == 2:
            a("s_lshr_b32 s76, s2, 2\ns_lshl_b32 s76, s76, 7")
        else:
            a("s_lshr_b32 s76, s2, 4\ns_lshl_b32 s76, s76, 9")
            a("s_and_b32 s77, s2, 3\ns_lshl_b32 s77, s77, 7\ns_add_u32 s76, s76, s77")
        for i in range(1, 14): a("s_mov_b32 s%d, %d" % (52 + i, i * 8192))
        a("s_sub_u32 s34, 3670016, s76\ns_bitcmp1_b32 s2, " + ("0" if wqm == 2 else "3") + "\ns_cselect_b32 s34, 0, s34\ns_mov_b32 s35, 0x20000\ns_mov_b32 s38, 896\ns_mov_b32 s39, 0x20000")
    else:
        a("v_lshrrev_b32 v8, 2, v0\ns_lshl_b32 s76, s3, 4\nv_add_u32 v8, s76, v8")
        a("v_lshlrev_b32 v9, %d, v8" % (2 if QM else 4))
        a("v_lshl_or_b32 v8, v8, %d, v3" % (14 if QM else 16))
        a("s_lshr_b32 s76, s2, 4\ns_lshl_b32 s76, s76, 9")
        a("s_and_b32 s77, s2, 3\ns_lshl_b32 s77, s77, 7\ns_add_u32 s76, s76, s77")
        a("s_bfe_u32 s77, s2, 0x10003\ns_lshl_b32 s77, s77, 6\ns_add_u32 s76, s76, s77")
        for i in range(1, 8): a("s_mov_b32 s%d, %d" % (52 + i, ((i >> 1) * 128 + (i & 1)) * 8192 if QM else i * 8192))
        a("s_sub_u32 s34, 3670016, s76\ns_mov_b32 s35, 0x20000\ns_mov_b32 s38, 896\ns_mov_b32 s39, 0x20000")
    a("s_mov_b32 s50, 0x%x\ns_mov_b32 s51, 0x20000" % WS_END)
    if CP:
        a("s_getpc_b64 s[40:41]")
        a("L_pc:")
        a("s_sub_u32 s40, s40, L_pc-%s\ns_subb_u32 s41, s41, 0\ns_mov_b32 s42, L_code_end-%s\ns_mov_b32 s43, 0x20000" % (NAME, NAME))
        a("s_and_b32 s78, s2, 31\ns_lshl2_add_u32 s78, s78, s3\ns_lshl_b32 s78, s78, 8\nv_lshl_add_u32 v40, v0, 7, s78")
        a("s_mov_b64 exec, 3\nbuffer_load_dword v41, v40, s[40:43], 0 offen\ns_mov_b64 exec, -1")
    if wqx:
        a("v_lshrrev_b32 v8, 4, v0\ns_mul_i32 s77, s3, 28\nv_add_u32 v8, s77, v8\nv_and_b32 v11, 15, v0\nv_lshlrev_b32 v11, 4, v11\nv_lshl_or_b32 v8, v8, 13, v11")
        a("s_lshr_b32 s76, s2, 5\ns_lshl_b32 s76, s76, 10\ns_and_b32 s77, s2, 3\ns_lshl_b32 s77, s77, 8\ns_add_u32 s76, s76, s77")
        a("s_bfe_u32 s77, s2, 0x20003\ns_mul_i32 s77, s77, %d\ns_add_u32 s92, s76, s77" % (112 * 8192))
        for i in range(1, 7): a("s_mov_b32 s%d, %d" % (52 + i, i * 32768))
        a("s_mov_b32 s59, 0\ns_sub_u32 s34, 3670016, s92")
        a("s_lshr_b32 s76, s2, 4\ns_lshl_b32 s76, s76, 9")
        a("s_and_b32 s77, s2, 3\ns_lshl_b32 s77, s77, 7\ns_add_u32 s76, s76, s77")
        a("s_bfe_u32 s77, s2, 0x10003\ns_lshl_b32 s77, s77, 6\ns_add_u32 s76, s76, s77")
    a("s_bitcmp1_b32 s2, %d" % (1 if wqm == 2 else 2))
    a("s_waitcnt lgkmcnt(0)")
    if not LB or "helper" in dis or LB == 2: a("s_barrier")
    if "helper" in dis:
        a("v_mov_b32 v6, 0\nv_mov_b32 v7, 2\nds_write_b32 v6, v7 offset:%d\nds_write_b32 v6, v7 offset:%d" % (L_CNT + C_QRDY, L_CNT + C_CLR))
        a("s_lshl_b32 s84, s2, 7\ns_add_u32 s84, s84, %d\ns_add_u32 s84, s84, s30\ns_addc_u32 s85, s31, 0\ns_mov_b32 s86, 128\ns_mov_b32 s87, 0x20000" % STAMP_OFF)
        a("v_mov_b32 v16, s90\nv_mov_b32 v17, 0\nbuffer_store_dwordx2 v[16:17], v6, s[84:87], 0 offen\ns_endpgm")
    a("s_cselect_b32 s32, s20, s10\ns_cselect_b32 s33, s21, s11\ns_cselect_b32 s77, 0x2000, 0")
    a("s_add_u32 s32, s32, s%d\ns_addc_u32 s33, s33, 0\ns_mov_b32 s36, s4\ns_mov_b32 s37, s5" % (92 if wqx else 76))
    if QM:
        for k in range(4): a("buffer_load_dword v%d, v9, s[36:39], 0 offen offset:%d" % (XV + k, 256 * k))
        a("v_add_u32 v11, %d, v8" % (384 * 8192))
    else:
        a("buffer_load_dwordx4 v[%d:%d], v9, s[36:39], 0 offen" % (XV, XV + 3))
    def wql(i):
        if QM and i >= 6:
            a("buffer_load_dwordx4 v[%d:%d], v11, s[32:35], %s offen%s" % (W + 4 * i, W + 4 * i + 3, "0" if i == 6 else "s53", NTW)); return
        a("buffer_load_dwordx4 v[%d:%d], v8, s[32:35], %s offen%s" % (W + 4 * i, W + 4 * i + 3, "0" if i == 0 else "s%d" % (52 + i), NTW))
    if wqm: a("buffer_load_dwordx3 v[%d:%d], v9, s[36:39], 0 offen offset:16" % (XV + 4, XV + 6))
    for i in range(14 if wqm else WQW):
        if wqx == 2 or (wqx and i == 7): continue
        wql(i)
    a("s_load_dword s70, s[30:31], 0x%x" % WS_EPOCH)
    if LB == 1: a("s_barrier")
    a("s_add_u32 s75, s76, s77\ns_lshl_b32 s75, s75, 1")
    a("s_mov_b32 s48, s30\ns_mov_b32 s49, s31")
    a("s_lshl_b32 s74, s2, 12")
    a("s_mov_b32 s76, 0x05040100\ns_mov_b32 s77, 0x07060302")
    if wqm:
        a("v_lshrrev_b32 v4, 4, v0\nv_lshlrev_b32 v4, 3, v4\nv_lshl_or_b32 v4, v11, 1, v4\ns_lshl_b32 s78, s3, 8\nv_add_u32 v4, s78, v4")
        a("v_and_b32 v5, 31, v0\nv_lshlrev_b32 v5, 3, v5\nv_add_u32 v5, %d, v5" % L_QP)
    else:
        a("v_lshrrev_b32 v4, 4, v0\ns_lshl_b32 s78, s3, 2\nv_add_u32 v4, s78, v4\nv_lshlrev_b32 v4, 7, v4\nv_lshl_or_b32 v4, v3, 1, v4")
        a("v_and_b32 v5, 31, v0\nv_lshlrev_b32 v5, 2, v5\nv_lshrrev_b32 v6, 5, v0\nv_lshl_or_b32 v5, v6, 10, v5")
        a("v_add_u32 v5, %d, v5" % L_QP)
    a("v_mov_b32 v6, 0\nv_mov_b32 v7, 1\nv_lshlrev_b32 v2, 2, v0")
    if dbgt: a("v_mov_b32 v63, 0\nv_writelane_b32 v63, s90, 0")
    a("s_lshr_b32 s72, s%d, 5\ns_lshl_b32 s72, s72, 11\ns_add_u32 s72, s72, 0x4000" % (2 if wqx else 92))
    a("s_lshr_b32 s73, s93, 4\ns_lshl_b32 s73, s73, 10")
    a("v_lshlrev_b32 v10, 3, v0")
    for i in range(WQW, 8):
        a("s_waitcnt vmcnt(%d)" % (WQW - 1)); wql(i)
    a("s_setprio 3")
    if wqm:
        for k in range(7):
            a("s_waitcnt vmcnt(%d)" % (12 - 2 * k))
            w0 = W + 8 * k; w1 = w0 + 4
            for d in range(4):
                a("v_perm_b32 v%d, v%d, v%d, s76" % (PT + 2 * d, w1 + d, w0 + d))
                a("v_perm_b32 v%d, v%d, v%d, s77" % (PT + 1 + 2 * d, w1 + d, w0 + d))
            for e in range(8):
                a("v_dot2_f32_bf16 v%d, v%d, v%d, %s" % (AC + e, PT + e, XV + k, "0" if k == 0 else "v%d" % (AC + e)))
        a("s_waitcnt lgkmcnt(0)")
        stamp(1)
        for j in range(4): a("v_permlane32_swap_b32 v%d, v%d" % (AC + j, AC + j + 4))
        for j in range(4): a("v_add_f32 v%d, v%d, v%d" % (AC + j, AC + j, AC + j + 4))
        for j in range(2): a("v_permlane16_swap_b32 v%d, v%d" % (AC + j, AC + j + 2))
        for j in range(2): a("v_add_f32 v%d, v%d, v%d" % (AC + j, AC + j, AC + j + 2))
        for j in range(2): a(dpp("v_add_f32", AC + j, AC + j, AC + j, "row_ror:8"))
        a("ds_write_b64 v4, v[%d:%d] offset:%d" % (AC, AC + 1, L_QP))
        a("s_mov_b64 exec, 1")
        a("ds_add_rtn_u32 v9, v6, v7 offset:%d" % (L_CNT + C_QARR))
        a("s_mov_b64 exec, -1")
        a("ds_read2_b64 v[28:31], v5 offset0:0 offset1:32\nds_read2_b64 v[32:35], v5 offset0:64 offset1:96")
        a("s_waitcnt lgkmcnt(0)\nv_readfirstlane_b32 s71, v9")
        a("s_mul_i32 s70, s70, 0x9e3779b1\ns_add_u32 s70, s70, 0x7f4a7c15")
        a("s_cmp_lg_u32 s71, 3\ns_cbranch_scc1 L_h_wq")
        a("v_pk_add_f32 v[28:29], v[28:29], v[30:31]\nv_pk_add_f32 v[32:33], v[32:33], v[34:35]\nv_pk_add_f32 v[28:29], v[28:29], v[32:33]")
        a("v_cvt_pk_bf16_f32 v28, v28, v29\nv_mov_b32 v29, s70")
        a("s_bitcmp1_b32 s2, %d\ns_cselect_b32 exec_lo, 0, -1\ns_mov_b32 exec_hi, 0" % (0 if wqm == 2 else 3))
        a("buffer_store_dwordx2 v[28:29], v10, s[48:51], s75 offen sc1")
    else:
        if dbgt == 3:
            a("s_waitcnt vmcnt(8)"); stamp(14)
            a("s_waitcnt vmcnt(7)"); stamp(15)
        a("s_waitcnt vmcnt(0) lgkmcnt(0)")
        stamp(1)
    if not wqm:
        for k in range(4):
            w0 = W + 8 * k; w1 = w0 + 4
            for d in range(4):
                a("v_perm_b32 v%d, v%d, v%d, s76" % (28 + 2 * d, w1 + d, w0 + d))
                a("v_perm_b32 v%d, v%d, v%d, s77" % (29 + 2 * d, w1 + d, w0 + d))
            for e in range(8):
                a("v_dot2_f32_bf16 v%d, v%d, v%d, %s" % (AC + e, 28 + e, XV + k, "0" if k == 0 else "v%d" % (AC + e)))
        for e in range(8): a(dpp("v_add_f32", AC + e, AC + e, AC + e, "row_ror:4"))
        for e in range(8): a(dpp("v_add_f32", AC + e, AC + e, AC + e, "row_ror:8"))
        a("s_mov_b32 exec_lo, 0x000f000f\ns_mov_b32 exec_hi, 0x000f000f")
        a("ds_write_b128 v4, v[%d:%d] offset:%d" % (AC, AC + 3, L_QP))
        a("ds_write_b128 v4, v[%d:%d] offset:%d" % (AC + 4, AC + 7, L_QP + 16))
        a("s_mov_b64 exec, 1")
        a("ds_add_rtn_u32 v9, v6, v7 offset:%d" % (L_CNT + C_QARR))
        a("s_mov_b64 exec, -1")
        for i in range(4):
            a("ds_read2_b32 v[%d:%d], v5 offset0:%d offset1:%d" % (28 + 2 * i, 29 + 2 * i, 64 * i, 64 * i + 32))
        a("s_waitcnt lgkmcnt(0)\nv_readfirstlane_b32 s71, v9")
        a("s_mul_i32 s70, s70, 0x9e3779b1\ns_add_u32 s70, s70, 0x7f4a7c15")
        a("s_cmp_lg_u32 s71, 3\ns_cbranch_scc1 L_h_wq")
        a("v_add_f32 v28, v28, v29\nv_add_f32 v30, v30, v31\nv_add_f32 v32, v32, v33\nv_add_f32 v34, v34, v35")
        a("v_add_f32 v28, v28, v30\nv_add_f32 v32, v32, v34\nv_add_f32 v28, v28, v32")
        a("v_mov_b32 v29, v28\nv_permlane32_swap_b32 v29, v28\nv_add_f32 v28, v28, v29")
        a("v_mov_b32_dpp v29, v28 quad_perm:[1,0,3,2] row_mask:0xf bank_mask:0xf")
        a("s_getreg_b32 s79, hwreg(HW_REG_XCC_ID, 0, 4)\ns_xor_b32 s79, s79, s70")
        a("v_cvt_pk_bf16_f32 v28, v28, v29\nv_mov_b32 v29, s79")
        a("s_mov_b32 exec_lo, 0x55555555\ns_mov_b32 exec_hi, 0")
        if "qst" not in dis: a("buffer_store_dwordx2 v[28:29], v2, s[48:51], s75 offen%s" % ("" if "qpl" in dis else " sc1"))
    a("s_mov_b64 exec, 0xffff")
    a("v_mov_b32 v30, 0\nv_mov_b32 v31, s70\nds_write_b32 v6, v31 offset:%d" % (L_CNT + C_TAG))
    a("s_cmp_ge_u32 s2, 16\ns_cbranch_scc1 L_h_noci")
    a("s_mul_i32 s76, s2, %d\ns_add_u32 s76, s76, %d" % (CSTR, WS_CNT))
    a("buffer_store_dwordx2 v[30:31], v10, s[48:51], s76 offen sc1")
    a("L_h_noci:")
    a("s_mov_b64 exec, -1")
    stamp(2)
    ldswait("prg", 6, 4, L_CNT + C_PRG, "ge", 4, slp=2)
    a("s_mov_b32 s83, %d" % spin)
    if "qld" in dis: a("v_mov_b32 v16, 0\nv_mov_b32 v18, 0\nv_mov_b32 v20, 0\nv_mov_b32 v22, 0\nv_mov_b32 v24, 0\nv_mov_b32 v26, 0\nv_mov_b32 v4, 0\ns_branch L_h_fg")
    if "q1" in dis: a("s_mov_b32 s83, 0")
    a("L_h_fw:")
    a("buffer_load_dwordx4 v[16:19], v1, s[48:51], s72 offen sc1")
    a("buffer_load_dwordx4 v[20:23], v1, s[48:51], s72 offen offset:1024 sc1")
    a("buffer_load_dwordx4 v[24:27], v1, s[48:51], s73 offen sc1")
    a("s_waitcnt vmcnt(0)")
    assert not wqm
    a("v_xor_b32 v4, s79, v17\nv_xor_b32 v5, s79, v19\nv_xor_b32 v8, s79, v21\nv_xor_b32 v9, s79, v23\nv_xor_b32 v11, s79, v25\nv_xor_b32 v12, s79, v27")
    a("v_or3_b32 v4, v4, v5, v8\nv_or_b32 v4, v4, v9\nv_or3_b32 v9, v4, v11, v12\nv_cmp_lt_u32 vcc, 15, v9")
    a("s_sub_u32 s83, s83, 1\ns_cbranch_scc1 L_h_fg")
    a("s_cbranch_vccnz L_h_fw")
    a("L_h_fg:")
    a("ds_write2_b32 v10, v16, v18 offset0:0 offset1:1")
    a("ds_write2_b32 v10, v20, v22 offset0:128 offset1:129")
    a("v_add_u32 v10, 1024, v10")
    a("ds_write2_b32 v10, v24, v26 offset0:0 offset1:1")
    if "q1" in dis: a("v_mov_b32 v4, 0")
    a("v_cmp_ne_u32 vcc, 0, v4\ns_nop 0\ns_cmp_lg_u64 vcc, 0\ns_cselect_b32 s76, 1, %d\nv_mov_b32 v5, s76" % BK)
    a("s_mov_b64 exec, 1")
    a("ds_write_b32 v6, v5 offset:%d" % (L_CNT + C_QRDY))
    a("s_mov_b64 exec, -1")
    stamp(3)
    a("L_h_wq:")
    ldswait("bq", 6, 4, L_CNT + C_QRDY, "lg", 0, slp=4)
    a("s_max_u32 s94, s76, 1")
    assert CK and BH and BL and WST
    WB = 104; WC = 136
    G_ = 60; GA = 61; OV = 62; YV = 64; PV = 68; MLV = 69; PVA = 70; EE = 32; ACC = 72
    P0 = 76; P1 = 80; LM0 = 84; LM1 = 85
    a("v_lshrrev_b32 v4, 4, v0\nv_and_b32 v5, 8, v0\nv_lshl_add_u32 v12, v5, 1, v4\nv_mul_u32_u24 v12, 896, v12\nv_and_b32 v16, 0x70, v1\nv_add_u32 v12, v12, v16")
    for rg in range(1, 4): a("v_add_u32 v%d, %d, v12" % (12 + rg, rg * 3584))
    a("s_and_b32 s76, s2, 31\ns_lshl2_add_u32 s73, s76, s71\ns_mul_i32 s76, s73, 28672\ns_lshr_b32 s78, s2, 5\ns_min_u32 s78, s78, 6\ns_lshl_b32 s78, s78, 7\ns_add_u32 s76, s76, s78")
    a("s_sub_u32 s34, 28672, s78\ns_mov_b32 s46, s34\ns_mov_b32 s47, 0x20000")
    a("s_add_u32 s32, s22, s76\ns_addc_u32 s33, s23, 0\ns_add_u32 s44, s12, s76\ns_addc_u32 s45, s13, 0")
    a("v_lshrrev_b32 v17, 3, v0\nv_mul_u32_u24 v%d, %d, v17\nv_add_u32 v%d, v%d, v16" % (PVA, PAS, PVA, PVA))
    a("v_lshrrev_b32 v17, 1, v0\nv_mul_u32_u24 v%d, %d, v17\nv_and_b32 v17, 1, v0\nv_lshl_add_u32 v%d, v17, 8, v%d" % (YV, YS, YV, YV))
    a("v_lshrrev_b32 v17, 5, v0\nv_lshlrev_b32 v17, 8, v17\nv_lshl_or_b32 v17, v16, 1, v17\nv_and_b32 v18, 16, v0\ns_lshl_b32 s76, s71, 9\nv_or3_b32 v%d, v17, v18, s76" % (YV + 1))
    a("v_and_b32 v17, 15, v0\nv_lshlrev_b32 v4, 1, v4\nv_lshl_or_b32 v%d, v17, 20, v4" % OV)
    masks(8, 4, 5)
    a("s_mov_b32 s63, 0x0c04000c")
    a("s_lshr_b32 s76, s73, 3\ns_mul_i32 s76, s76, %d\ns_and_b32 s77, s73, 7\ns_lshl_b32 s77, s77, 7\ns_add_u32 s62, s76, s77\ns_add_u32 s62, s62, %d" % (16 * PAS, WS_PA))
    if NC > 1: a("s_lshr_b32 s76, s2, 5\ns_mul_i32 s76, s76, %d\ns_lshr_b32 s76, s76, 3\ns_min_u32 s76, s76, %d\ns_mul_i32 s76, s76, %d\ns_add_u32 s62, s62, s76" % (8 if NC == 7 else NC, NC - 1, CPS))
    a("s_add_u32 s72, s62, %d" % (8 * PAS))
    a("s_lshl_b32 s73, s73, 7\ns_add_u32 s73, s73, %d" % WS_OB)
    a("s_mul_i32 s68, s2, %d\ns_add_u32 s68, s68, %d" % (YS, WS_Y))
    a("s_add_u32 s56, s30, s68\ns_addc_u32 s57, s31, 0\ns_mov_b32 s58, 0\ns_mov_b32 s59, 0x20000")
    a("s_and_b32 s76, s2, 0xe0\ns_mul_i32 s60, s76, %d\ns_bfe_u32 s77, s2, 0x40001\ns_lshl4_add_u32 s60, s77, s60\ns_add_u32 s60, s60, %d" % (YS, WS_Y))
    a("s_lshl3_add_u32 s77, s77, s78")
    a("s_add_u32 s64, s26, s77\ns_addc_u32 s65, s27, 0\ns_mov_b32 s66, 0\ns_mov_b32 s67, 0x20000")
    a("s_mov_b32 s80, 0x03020105\ns_mov_b32 s81, 0x03020106\ns_mov_b32 s82, 0x03020107")
    a("s_cmp_lg_u32 s71, 2\ns_cbranch_scc1 L_b_rd")
    a("s_mov_b32 s52, s24\ns_mov_b32 s53, s25\ns_mov_b32 s54, 896\ns_mov_b32 s55, 0x20000")
    a("buffer_load_dwordx4 v[16:19], v1, s[36:39], 0 offen")
    a("buffer_load_dwordx4 v[20:23], v1, s[52:55], 0 offen")
    a("s_waitcnt vmcnt(0)")
    for d in range(4):
        a("v_lshlrev_b32 v24, 16, v%d\nv_and_b32 v25, 0xffff0000, v%d\nv_lshlrev_b32 v26, 16, v%d\nv_and_b32 v27, 0xffff0000, v%d" % (16 + d, 16 + d, 20 + d, 20 + d))
        a("v_mul_f32 v24, v24, v26\nv_mul_f32 v25, v25, v27\nv_cvt_pk_bf16_f32 v24, v24, v25")
        a("v_lshlrev_b32 v25, 16, v24\nv_and_b32 v24, 0xffff0000, v24")
        if d == 0: a("v_add_f32 v28, v24, v25")
        else: a("v_add_f32 v28, v28, v24\nv_add_f32 v28, v28, v25")
    for ctl in ("quad_perm:[1,0,3,2]", "quad_perm:[2,3,0,1]", "row_half_mirror", "row_mirror"):
        a(dpp("v_add_f32", 28, 28, 28, ctl))
    allrows("v_add_f32", 28, 29)
    a("v_cvt_pk_bf16_f32 v28, v28, v28\nv_and_b32 v28, 0xffff0000, v28")
    a("v_mul_f32 v28, %s, v28\nv_exp_f32 v28, v28\nv_add_f32 v28, 1.0, v28\nv_rcp_f32 v28, v28" % f32(-math.log2(math.e)))
    a("v_cvt_pk_bf16_f32 v28, v28, v28\nv_and_b32 v%d, 0xffff0000, v28" % GA)
    a("v_sub_f32 v28, 1.0, v%d\nv_cvt_pk_bf16_f32 v28, v28, v28\nv_and_b32 v%d, 0xffff0000, v28" % (GA, G_))
    a("ds_write_b32 v6, v%d offset:%d" % (GA, L_CNT + C_G))
    ldswait("vb", 6, 4, L_CNT + C_VDB, "eq", 8, slp=4)
    stamp(4)
    a("s_mul_i32 s76, s%d, %d\ns_add_u32 s76, s76, %d" % (2 if wqx else 92, PBS, WS_PB))
    if BL: a("s_mov_b32 s55, s76\ns_getreg_b32 s79, hwreg(HW_REG_XCC_ID, 0, 4)\ns_add_u32 s79, s79, s70\ns_add_u32 s79, s79, 1")
    for h in range(2):
        a("ds_read_b128 v[16:19], v6 offset:%d\nds_read_b128 v[20:23], v6 offset:%d" % (L_MW + 32 * h, L_MW + 32 * h + 16))
        a("ds_read_b128 v[24:27], v6 offset:%d\nds_read_b128 v[28:31], v6 offset:%d" % (L_LW + 32 * h, L_LW + 32 * h + 16))
        a("s_waitcnt lgkmcnt(0)")
        mx = 88 + 4 * h
        a("v_max3_f32 v%d, v16, v17, v18\nv_max3_f32 v%d, v%d, v19, v20\nv_max3_f32 v%d, v%d, v21, v22\nv_max_f32 v%d, v%d, v23" % (mx, mx, mx, mx, mx, mx, mx))
        for w in range(8): a("v_sub_f32 v%d, v%d, v%d" % (16 + w, 16 + w, mx))
        for w in range(8): a("v_exp_f32 v%d, v%d" % (16 + w, 16 + w))
        a("v_mul_f32 v%d, v16, v24" % (mx + 2))
        for w in range(1, 8): a("v_fmac_f32 v%d, v%d, v%d" % (mx + 2, 16 + w, 24 + w))
        o = 96 + 4 * h
        for half in range(2):
            for w in range(4):
                a("ds_read_b128 v[%d:%d], v1 offset:%d" % (32 + 4 * w, 35 + 4 * w, L_ACCB + h * 8192 + (half * 4 + w) * 1024))
            a("s_waitcnt lgkmcnt(0)")
            for w in range(4):
                for k in range(4):
                    if half == 0 and w == 0: a("v_mul_f32 v%d, v%d, v16" % (o + k, 32 + k))
                    else: a("v_fmac_f32 v%d, v%d, v%d" % (o + k, 32 + 4 * w + k, 16 + half * 4 + w))
        if BH:
            a("v_cvt_pk_bf16_f32 v%d, v%d, v%d\nv_cvt_pk_bf16_f32 v%d, v%d, v%d\nv_lshlrev_b32 v5, 3, v0" % (o, o, o + 1, o + 1, o + 2, o + 3))
            a("buffer_store_dwordx2 v[%d:%d], v5, s[48:51], s76 offen offset:%d%s" % (o, o + 1, 512 * h, BST))
        else:
            a("buffer_store_dwordx4 v[%d:%d], v1, s[48:51], s76 offen offset:%d sc1" % (o, o + 3, 1024 * h))
    a("v_and_b32 v4, 1, v0\nv_cmp_eq_u32 vcc, 1, v4")
    a("v_cndmask_b32 v88, v88, v92, vcc\nv_cndmask_b32 v90, v90, v94, vcc\nv_mov_b32 v89, s%d\nv_mov_b32 v91, s%d" % ((79, 79) if BL else (70, 70)))
    a("s_waitcnt vmcnt(0)")
    a("s_mov_b64 exec, 0xff")
    a("buffer_store_dwordx4 v[88:91], v1, s[48:51], s76 offen offset:%d%s" % (MLO, BST))
    a("s_mov_b64 exec, -1")
    stamp(5)
    if not BL: a("s_mov_b32 s79, 0x01010101")
    a("v_and_b32 v4, 31, v0\nv_mul_u32_u24 v%d, %d, v4" % (MLV, PBS))
    if BH:
        a("v_lshrrev_b32 v5, 3, v0\nv_mul_u32_u24 v%d, %d, v5\nv_and_b32 v16, 7, v0\nv_lshl_add_u32 v%d, v16, 4, v%d" % (PV, PBS, PV, PV))
        a("v_lshlrev_b32 v66, 4, v5")
        a("v_lshrrev_b32 v4, 3, v4\nv_lshl_or_b32 v67, v16, 2, v4\nv_lshlrev_b32 v67, 2, v67")
        a("v_lshrrev_b32 v5, 4, v0\nv_lshlrev_b32 v5, 3, v5\nv_lshl_or_b32 v71, v16, 5, v5")
    else:
        a("v_lshrrev_b32 v5, 4, v0\nv_mul_u32_u24 v%d, %d, v5\nv_and_b32 v16, 15, v0\nv_lshl_add_u32 v%d, v16, 4, v%d" % (PV, PBS, PV, PV))
        a("v_lshlrev_b32 v66, 5, v5")
        a("v_and_b32 v16, 3, v0\nv_lshrrev_b32 v4, 2, v4\nv_lshl_or_b32 v67, v16, 3, v4\nv_lshlrev_b32 v67, 2, v67")
    a("s_and_b32 s76, s2, 0xe0\ns_mul_i32 s76, s76, %d\ns_add_u32 s76, s76, %d" % (PBS, WS_PB))
    a("s_bfe_u32 s77, s2, 0x10004\ns_lshl4_add_u32 s54, s77, s76\ns_add_u32 s54, s54, %d" % MLO)
    a("s_and_b32 s77, s2, 28\ns_lshl_b32 s77, s77, %d\ns_add_u32 s52, s76, s77" % (5 if BH else 6))
    ldswait("kb", 6, 4, L_CNT + C_KD, "ge", BTRIG, slp=8)
    a("s_mov_b32 s83, %d" % spin)
    if BL:
        a("s_mov_b32 s53, s94\ns_mov_b32 s69, 1")
        a("L_b_w:")
        a("buffer_load_dwordx4 v[24:27], v%d, s[48:51], s54 offen sc1" % MLV)
        a("s_waitcnt vmcnt(0)")
        a("v_xor_b32 v4, s79, v25\nv_xor_b32 v5, s79, v27\nv_or_b32 v4, v4, v5\nv_cmp_ne_u32 vcc, 0, v4")
        a("s_cbranch_vccz L_b_g")
        a("v_xor_b32 v16, s70, v25\nv_xor_b32 v5, s70, v27\nv_or_b32 v16, v16, v5\nv_cmp_eq_u32 s[76:77], 0, v16")
        a("s_nop 0\ns_cmp_lg_u64 s[76:77], 0\ns_cselect_b32 s78, 1, s53\ns_min_u32 s53, s53, s78")
        a("s_andn2_b64 s[76:77], vcc, s[76:77]")
        a("s_cmp_eq_u32 s53, 0\ns_cbranch_scc1 L_b_n")
        a("s_sub_u32 s53, s53, 1\ns_cmp_lg_u32 s53, 0\ns_cbranch_scc1 L_b_n")
        a("v_lshlrev_b32 v5, 3, v0\nv_mov_b32 v89, s70\nv_mov_b32 v91, s70")
        a("buffer_store_dwordx2 v[96:97], v5, s[48:51], s55 offen sc1")
        a("buffer_store_dwordx2 v[100:101], v5, s[48:51], s55 offen offset:512 sc1")
        a("s_waitcnt vmcnt(0)\ns_mov_b64 exec, 0xff")
        a("buffer_store_dwordx4 v[88:91], v1, s[48:51], s55 offen offset:%d sc1" % MLO)
        a("s_mov_b64 exec, -1")
        a("L_b_n:")
        a("s_mov_b32 s69, 2")
        a("s_cmp_eq_u64 s[76:77], 0\ns_cbranch_scc1 L_b_g")
        a("s_sub_u32 s83, s83, 1\ns_cbranch_scc1 L_b_g")
        a("s_mov_b32 s69, 1\ns_sleep 32\ns_branch L_b_w")
    else:
        a("L_b_w:")
        if "clear" in dis or CK: a("v_mov_b32 v4, s79")
        else: a("buffer_load_dword v4, v2, s[40:43], 0 offen sc1")
        a("buffer_load_dwordx4 v[24:27], v%d, s[48:51], s54 offen sc1" % MLV)
        a("s_waitcnt vmcnt(0)")
        a("v_xor_b32 v4, s79, v4\nv_xor_b32 v5, s70, v25\nv_xor_b32 v16, s70, v27")
        a("v_or3_b32 v4, v4, v5, v16\nv_cmp_ne_u32 vcc, 0, v4")
        a("s_sub_u32 s83, s83, 1\ns_cbranch_scc1 L_b_g")
        a("s_cbranch_vccz L_b_g\ns_sleep 32\ns_branch L_b_w")
    a("L_b_g:")
    a("s_and_b32 s76, s2, 3\ns_cbranch_scc1 L_b_f")
    for i in range(4 if BH else 8):
        a("buffer_load_dwordx4 v[%d:%d], v%d, s[48:51], s52 offen sc1" % (28 + 4 * i, 31 + 4 * i, PV))
        if i < 7: a("s_add_u32 s52, s52, %d" % ((8 if BH else 4) * PBS))
    a("v_mov_b32 v4, v24")
    for ctl in ("quad_perm:[1,0,3,2]", "quad_perm:[2,3,0,1]", "row_half_mirror", "row_mirror"):
        a(dpp("v_max_f32", 4, 4, 4, ctl))
    allrows("v_max_f32", 4, 5)
    a("v_sub_f32 v24, v24, v4\nv_exp_f32 v24, v24\nv_mul_f32 v26, v26, v24")
    for ctl in ("quad_perm:[1,0,3,2]", "quad_perm:[2,3,0,1]", "row_half_mirror", "row_mirror"):
        a(dpp("v_add_f32", 26, 26, 26, ctl))
    a("v_mov_b32 v5, v26\nv_permlane16_swap_b32 v5, v26\nv_add_f32 v26, v26, v5")
    a("v_rcp_f32 v26, v26\nv_mul_f32 v24, v24, v%d\nv_mul_f32 v24, v24, v26" % G_)
    a("ds_write_b32 v67, v24 offset:%d" % L_ACCB)
    if BH:
        a("ds_read_b128 v[16:19], v66 offset:%d" % L_ACCB)
        a("s_waitcnt vmcnt(0) lgkmcnt(0)")
        AC2 = 44
        for i in range(4):
            for d in range(4):
                a("v_lshlrev_b32 v20, 16, v%d\nv_and_b32 v21, 0xffff0000, v%d" % (28 + 4 * i + d, 28 + 4 * i + d))
                for e in range(2):
                    if i == 0: a("v_mul_f32 v%d, v%d, v16" % (AC2 + 2 * d + e, 20 + e))
                    else: a("v_fmac_f32 v%d, v%d, v%d" % (AC2 + 2 * d + e, 20 + e, 16 + i))
        for j in range(4): a("v_permlane32_swap_b32 v%d, v%d" % (AC2 + j, AC2 + j + 4))
        for j in range(4): a("v_add_f32 v%d, v%d, v%d" % (AC2 + j, AC2 + j, AC2 + j + 4))
        for j in range(2): a("v_permlane16_swap_b32 v%d, v%d" % (AC2 + j, AC2 + j + 2))
        for j in range(2): a("v_add_f32 v%d, v%d, v%d" % (AC2 + j, AC2 + j, AC2 + j + 2))
        for j in range(2): a(dpp("v_add_f32", AC2 + j, AC2 + j, AC2 + j, "row_ror:8"))
        a("ds_write_b64 v71, v[%d:%d] offset:%d" % (AC2, AC2 + 1, L_ACCB + 1024))
    else:
        a("ds_read_b128 v[16:19], v66 offset:%d\nds_read_b128 v[20:23], v66 offset:%d" % (L_ACCB, L_ACCB + 16))
        a("s_waitcnt vmcnt(0) lgkmcnt(0)")
        for i in range(8):
            for r in range(4):
                if i == 0: a("v_mul_f32 v%d, v%d, v16" % (24 + r, 28 + r))
                else: a("v_fmac_f32 v%d, v%d, v%d" % (24 + r, 28 + 4 * i + r, 16 + i))
        for r in range(4): allrows("v_add_f32", 24 + r, 5)
        a("ds_write_b128 v1, v[24:27] offset:%d" % (L_ACCB + 1024))
    a("s_mov_b64 exec, 0xffff")
    a("ds_read_b128 v[16:19], v1 offset:%d" % (L_ACCB + 1024))
    a("s_lshl_b32 s76, s2, 6\ns_add_u32 s76, s76, %d" % WS_OB)
    a("s_waitcnt lgkmcnt(0)")
    for k in range(3): a("v_perm_b32 v%d, v19, v%d, s%d" % (16 + k, 16 + k, 80 + k))
    a("v_xor_b32 v19, s70, v16\nv_bitop3_b32 v19, v19, v17, v18 %s" % X3)
    a("buffer_store_dwordx4 v[16:19], v1, s[48:51], s76 offen sc1")
    a("L_b_f:")
    a("s_mov_b64 exec, 1")
    a("v_mov_b32 v4, s69\nds_write_b32 v6, v4 offset:%d" % (L_CNT + C_YB))
    a("s_mov_b64 exec, -1")
    a("L_b_rd:")
    a("s_mov_b32 s76, 9\ns_cmp_ge_u32 s2, 224\ns_cbranch_scc1 L_fin")
    ldswait("yb", 6, 4, L_CNT + C_YB, "lg", 0, slp=8)
    a("s_mov_b32 s69, s76")
    for r in (P0, P0 + 1, P0 + 2, P1, P1 + 1, P1 + 2): a("v_mov_b32 v%d, 0" % r)
    a("v_mov_b32 v%d, %s\nv_mov_b32 v%d, %s\nv_mov_b32 v%d, 1.0" % (LM0, f32(-1e30), LM1, f32(-1e30), G_))
    a("ds_read_b32 v%d, v6 offset:%d" % (GA, L_CNT + C_G))
    a("s_mov_b32 s83, %d\ns_mov_b64 exec, 0xff\nv_mov_b32 v%d, 0" % (spin, LM0))
    a("L_o_w:")
    a("buffer_load_dwordx4 v[%d:%d], v1, s[48:51], s73 offen sc1" % (P0, P0 + 3))
    a("s_waitcnt vmcnt(0)")
    a("v_bitop3_b32 v4, v%d, v%d, v%d %s\nv_xor_b32 v5, s70, v%d\nv_cmp_ne_u32 vcc, v4, v5" % (P0, P0 + 1, P0 + 2, X3, P0 + 3))
    a("s_cbranch_vccz L_o_g")
    a("s_sub_u32 s83, s83, 1\ns_cbranch_scc1 L_o_g")
    a("s_sleep 32\ns_branch L_o_w")
    a("L_o_g:")
    a("s_mov_b64 exec, -1")
    a("s_mov_b32 s61, 0\ns_mov_b32 s74, 1")
    a("s_waitcnt lgkmcnt(0)")
    stamp(6)
    a("s_branch L_t_pg")
    a("L_t_a:")
    a("s_mov_b32 s61, 4\ns_mov_b32 s74, %d\ns_movk_i32 s58, 512\ns_mov_b32 s66, 8" % spin)
    a("v_mov_b32 v%d, v%d" % (G_, GA))
    th = WST
    if nto is not None: NTW = " nt" if nto else ""
    for i in range(8):
        if i == 0 or th[i] != th[i - 1]: ldswait("eb%d" % i, 6, 4, L_CNT + C_VDA, "ge", th[i], slp=EXS)
        rg = i & 3
        if i < 4: a("buffer_load_dwordx4 v[%d:%d], v%d, s[32:35], 0 offen%s" % (WB + 4 * rg, WB + 4 * rg + 3, 12 + rg, NTW))
        else: a("buffer_load_dwordx4 v[%d:%d], v%d, s[44:47], 0 offen%s" % (WC + 4 * rg, WC + 4 * rg + 3, 12 + rg, NTW))
    if EP:
        a("buffer_load_dwordx4 v[%d:%d], v%d, s[48:51], s62 offen sc1" % (P0, P0 + 3, PVA))
        a("buffer_load_dwordx4 v[%d:%d], v%d, s[48:51], s72 offen sc1" % (P1, P1 + 3, PVA))
    for rg in range(4):
        a("s_waitcnt vmcnt(%d)" % (7 - rg + (2 if EP else 0)))
        a("v_mfma_f32_16x16x32_bf16 v[%d:%d], v[%d:%d], v[%d:%d], %s" % (ACC, ACC + 3, EE + rg * 4, EE + rg * 4 + 3, WB + 4 * rg, WB + 4 * rg + 3, "0" if rg == 0 else "v[%d:%d]" % (ACC, ACC + 3)))
    stamp(8)
    if not EP: ldswait("va", 6, 4, L_CNT + C_VDA, "ge", VAT, slp=LSL)
    stamp(9)
    a("s_mov_b32 s83, %d" % spin)
    if EP: a("s_branch L_t_pc")
    a("L_t_pw:")
    a("buffer_load_dwordx4 v[%d:%d], v%d, s[48:51], s62 offen sc1" % (P0, P0 + 3, PVA))
    a("buffer_load_dwordx4 v[%d:%d], v%d, s[48:51], s72 offen sc1" % (P1, P1 + 3, PVA))
    a("L_t_pc:")
    a("s_waitcnt vmcnt(1)")
    a("v_bitop3_b32 v4, v%d, v%d, v%d %s\nv_xor_b32 v4, v4, v%d" % (P0, P0 + 1, P0 + 2, X3, P0 + 3))
    a("v_mov_b32_dpp v%d, v%d quad_perm:[0,0,2,2] row_mask:0xf bank_mask:0xf" % (LM0, P0 + 3))
    a("s_waitcnt vmcnt(0)")
    a("v_bitop3_b32 v5, v%d, v%d, v%d %s\nv_xor_b32 v5, v5, v%d" % (P1, P1 + 1, P1 + 2, X3, P1 + 3))
    a(dpp("v_xor_b32", 4, 4, 4, "quad_perm:[1,0,3,2]"))
    a("v_mov_b32_dpp v%d, v%d quad_perm:[0,0,2,2] row_mask:0xf bank_mask:0xf" % (LM1, P1 + 3))
    a(dpp("v_xor_b32", 5, 5, 5, "quad_perm:[1,0,3,2]"))
    a("v_bitop3_b32 v4, v4, v5, s70 bitop3:0x7e\nv_cmp_ne_u32 vcc, 0, v4")
    a("s_cbranch_vccz L_t_pg0")
    if PMASK: a("s_mov_b64 exec, vcc")
    if PSLP: a("s_sleep %d" % PSLP)
    a("s_sub_u32 s83, s83, 1\ns_cbranch_scc0 L_t_pw")
    a("L_t_pg0:")
    if PMASK: a("s_mov_b64 exec, -1")
    stamp(10)
    a("L_t_pg:")
    a("v_max_f32 v4, v%d, v%d" % (LM0, LM1))
    a("v_perm_b32 v%d, v%d, v%d, s63\nv_perm_b32 v%d, v%d, v%d, s63" % (P0 + 3, P0 + 1, P0, P1 + 3, P1 + 1, P1))
    a(dpp("v_max_f32", 4, 4, 4, "row_ror:8"))
    a("v_mov_b32 v5, v4")
    a("v_lshl_or_b32 v%d, v%d, 24, v%d\nv_lshl_or_b32 v%d, v%d, 24, v%d" % (P0 + 3, P0 + 2, P0 + 3, P1 + 3, P1 + 2, P1 + 3))
    a("v_permlane16_swap_b32 v5, v4\nv_max_f32 v4, v5, v4\nv_mov_b32 v5, v4\nv_permlane32_swap_b32 v5, v4\nv_max_f32 v4, v5, v4")
    a("v_sub_f32 v24, v%d, v4\nv_sub_f32 v26, v%d, v4\nv_exp_f32 v24, v24\nv_exp_f32 v26, v26" % (LM0, LM1))
    for r in (0, 2): a("v_pk_mul_f32 v[%d:%d], v[%d:%d], v[24:25] op_sel_hi:[1,0]" % (16 + r, 17 + r, P0 + r, P0 + r + 1))
    a("v_add_f32 v28, v24, v26")
    for r in (0, 2): a("v_pk_fma_f32 v[%d:%d], v[%d:%d], v[26:27], v[%d:%d] op_sel_hi:[1,0,1]" % (16 + r, 17 + r, P1 + r, P1 + r + 1, 16 + r, 17 + r))
    a(dpp("v_add_f32", 28, 28, 28, "row_ror:8"))
    a("v_mov_b32 v5, v28")
    a("v_permlane16_swap_b32 v16, v17\nv_permlane16_swap_b32 v18, v19\nv_permlane16_swap_b32 v5, v28")
    a("v_add_f32 v16, v16, v17\nv_add_f32 v18, v18, v19\nv_add_f32 v28, v28, v5\nv_mov_b32 v5, v28")
    a("v_permlane32_swap_b32 v16, v18\nv_add_f32 v16, v16, v18")
    a("v_permlane32_swap_b32 v5, v28\nv_add_f32 v28, v28, v5")
    a(dpp("v_add_f32", 16, 16, 16, "row_ror:8"))
    a("v_rcp_f32 v28, v28\nv_mul_f32 v16, v16, v%d" % G_)
    a("v_mov_b32_dpp v16, v16 row_shr:4 row_mask:0xf bank_mask:0x6")
    a("v_mul_f32 v16, v16, v28\nv_cvt_pk_bf16_f32 v16, v16, v16")
    for rg in range(4):
        for k in range(4):
            a(dpp("v_and_b32", EE + rg * 4 + k, 16, 8 + k, "quad_perm:[%d,%d,%d,%d]" % (rg, rg, rg, rg)))
        if rg: a("v_mfma_f32_16x16x32_bf16 v[%d:%d], v[%d:%d], v[%d:%d], v[%d:%d]" % (ACC, ACC + 3, EE + rg * 4 - 4, EE + rg * 4 - 1, WC + 4 * rg - 4, WC + 4 * rg - 1, ACC, ACC + 3))
    a("v_mfma_f32_16x16x32_bf16 v[%d:%d], v[%d:%d], v[%d:%d], v[%d:%d]" % (ACC, ACC + 3, EE + 12, EE + 15, WC + 12, WC + 15, ACC, ACC + 3))
    a("s_mov_b32 exec_lo, 0x00ff00ff\ns_mov_b32 exec_hi, 0xff00ff00")
    a("ds_write_b128 v%d, v[%d:%d] offset:%d" % (YV + 1, ACC, ACC + 3, L_QP))
    a("s_mov_b64 exec, 1")
    a("ds_add_rtn_u32 v4, v6, v7 offset:%d" % (L_CNT + C_YARR))
    a("s_mov_b32 exec_lo, -1")
    for k in range(4): a("ds_read_b128 v[%d:%d], v1 offset:%d" % (16 + 4 * k, 19 + 4 * k, L_QP + 512 * k))
    a("s_waitcnt lgkmcnt(0)\nv_readfirstlane_b32 s76, v4")
    for r in (0, 2): a("v_pk_add_f32 v[%d:%d], v[%d:%d], v[%d:%d]" % (16 + r, 17 + r, 16 + r, 17 + r, 20 + r, 21 + r))
    for r in (0, 2): a("v_pk_add_f32 v[%d:%d], v[%d:%d], v[%d:%d]" % (24 + r, 25 + r, 24 + r, 25 + r, 28 + r, 29 + r))
    a("s_sub_u32 s76, s76, s61\ns_cmp_lg_u32 s76, 3\ns_cbranch_scc1 L_t_nst")
    for r in (0, 2): a("v_pk_add_f32 v[%d:%d], v[%d:%d], v[%d:%d]" % (16 + r, 17 + r, 16 + r, 17 + r, 24 + r, 25 + r))
    for k in range(3): a("v_perm_b32 v%d, v19, v%d, s%d" % (16 + k, 16 + k, 80 + k))
    a("s_cmp_eq_u32 s69, %d" % (1 if YLOC else 7))
    a("v_xor_b32 v19, s70, v16\nv_bitop3_b32 v19, v19, v17, v18 %s" % X3)
    a("s_cbranch_scc0 L_t_yg2")
    a("buffer_store_dwordx4 v[16:19], v1, s[56:59], 0 offen")
    a("L_t_ys:")
    stamp(11)
    a("L_t_nst:")
    a("s_mov_b64 exec, -1")
    a("s_cmp_lg_u32 s76, 0\ns_cbranch_scc1 L_t_next")
    a("s_bitcmp1_b32 s2, 0\ns_cbranch_scc1 L_t_next")
    a("s_mov_b32 s83, s74")
    a("L_t_yw:")
    a("buffer_load_dwordx4 v[16:19], v%d, s[48:51], s60 offen sc1" % YV)
    a("s_waitcnt vmcnt(0)")
    a("v_bitop3_b32 v4, v16, v17, v18 %s\nv_xor_b32 v5, s70, v19\nv_perm_b32 v19, v17, v16, s63\nv_cmp_ne_u32 vcc, v4, v5\nv_lshl_or_b32 v19, v18, 24, v19" % X3)
    a("s_cbranch_vccz L_t_yg")
    if YMASK: a("s_mov_b64 exec, vcc")
    a("s_sub_u32 s83, s83, 1\ns_cmp_lg_u32 s83, 0\ns_cbranch_scc1 L_t_yw")
    a("L_t_yg:")
    if YMASK: a("s_mov_b64 exec, -1")
    stamp(12)
    a("v_permlane16_swap_b32 v16, v17\nv_permlane16_swap_b32 v18, v19")
    a("v_add_f32 v16, v16, v17\nv_add_f32 v18, v18, v19")
    a("v_permlane32_swap_b32 v16, v18\nv_add_f32 v16, v16, v18")
    for ctl in ("quad_perm:[1,0,3,2]", "quad_perm:[2,3,0,1]", "row_half_mirror", "row_mirror"):
        a(dpp("v_add_f32", 16, 16, 16, ctl))
    a("v_cvt_pk_bf16_f32 v16, v16, v16")
    a("buffer_store_short v16, v%d, s[64:67], 0 offen%s" % (OV, OST))
    stamp(13)
    a("s_cmp_eq_u32 s61, 0\ns_cbranch_scc1 L_t_next")
    a("s_cmp_lg_u32 s2, 0\ns_cbranch_scc1 L_t_next")
    a("v_mov_b32 v4, s70\nv_mov_b32 v5, 0x%x\ns_mov_b64 exec, 1" % WS_EPOCH)
    a("buffer_store_dword v4, v5, s[48:51], 0 offen" + EST)
    a("s_mov_b64 exec, -1")
    a("L_t_next:")
    a("s_cmp_lg_u32 s61, 0\ns_cbranch_scc1 L_fin")
    ldswait("y4", 6, 4, L_CNT + C_YARR, "ge", 4, slp=2)
    a("s_branch L_t_a")
    a.flush()
    a("L_t_yg2:")
    a("buffer_store_dwordx4 v[16:19], v1, s[56:59], 0 offen sc1\ns_branch L_t_ys")
    a("L_fin:")
    if dbgt:
        a("s_lshl_b32 s84, s2, 7\ns_add_u32 s84, s84, %d\ns_add_u32 s84, s84, s30\ns_addc_u32 s85, s31, 0\ns_mov_b32 s86, 128\ns_mov_b32 s87, 0x20000" % STAMP_OFF)
        a("v_mov_b32 v16, v63\nv_mov_b32 v17, 0\nv_lshlrev_b32 v18, 3, v0")
        a("s_mov_b32 s77, 0\ns_cmp_eq_u32 s71, 3\ns_cselect_b32 s78, 0xc00f, 0\ns_or_b32 s77, s77, s78\ns_cmp_eq_u32 s71, 2\ns_cselect_b32 s78, 0x30, 0\ns_or_b32 s77, s77, s78")
        a("s_cmp_eq_u32 s76, 3\ns_cselect_b32 s78, 0xf40, 0\ns_or_b32 s77, s77, s78\ns_cmp_eq_u32 s76, 0\ns_cselect_b32 s78, 0x3080, 0\ns_or_b32 s77, s77, s78")
        a("s_cbranch_scc0 L_end\ns_mov_b32 exec_lo, s77\ns_mov_b32 exec_hi, 0")
        a("buffer_store_dwordx2 v[16:17], v18, s[84:87], 0 offen")
    a("s_endpgm")
    a.flush()
    a("L_end:")
    a("s_endpgm")
    a("L_code_end:")
    a.raw('.section .rodata,"a"\n.p2align 6\n.amdhsa_kernel %s' % NAME)
    a.raw("  .amdhsa_next_free_vgpr 168\n  .amdhsa_next_free_sgpr 102\n  .amdhsa_accum_offset 168")
    a.raw("  .amdhsa_group_segment_fixed_size 0\n  .amdhsa_kernarg_size 112\n  .amdhsa_user_sgpr_count 2\n  .amdhsa_user_sgpr_kernarg_segment_ptr 1\n  .amdhsa_system_sgpr_workgroup_id_x 1\n.end_amdhsa_kernel")
    open(fname, "w").write(a.text())
    return a

if __name__ == "__main__":
    kw = dict(dbgt=2, G=1, W0=6, WS_=[(6, 3)])
    gen("g_a.s", NS=16, **kw)
    gen("g_b.s", NS=14, **kw)
    gen("g_c.s", NS=16, wqx=2, dis=("wo",), **kw)
    gen("g_d.s", NS=16, wqx=2, dis=("wo", "apass", "bchain"), **kw)
```

```python
import gen19
kw = dict(dbgt=0, G=1, PMASK=1, YMASK=1, DW=3, WOL=-5, WBL=5, LAY=1, amap=2, QM=1, FIN=8, WST=[1,2,3,4,5,6,7,8], NS=14, W0=3, ntw=True, SW=4, SWN=22)
gen19.gen("x_a.s", **kw)
gen19.gen("x_x0.s", xl=0, **kw)
```
